```python
import torch

def _softmax(x, axis=-1):
    return torch.softmax(x, dim=axis)

def _gelu(x):
    return torch.nn.functional.gelu(x, approximate='tanh')

def _silu(x):
    return torch.nn.functional.silu(x)

def _sigmoid(x):
    return torch.sigmoid(x)

def _layernorm(x, axis=-1, eps=1e-05):
    m = x.mean(dim=axis, keepdim=True)
    v = x.var(dim=axis, keepdim=True, unbiased=False)
    return (x - m) / torch.sqrt(v + eps)

def _scatter_add(tgt, idx, src, axis=0):
    return tgt.clone().index_add_(axis, idx, src)

def _segment_sum(src, seg, n):
    out = torch.zeros((n,) + src.shape[1:], dtype=src.dtype)
    return out.index_add_(0, seg, src)

def _pad(x, pw):
    flat = tuple((v for pair in reversed(pw) for v in pair))
    return torch.nn.functional.pad(x, flat)
kernel_name = 'standalone__dit_block__diffusion'

def setup_inputs():

    _w = lambda a: (lambda t: t.to(torch.bfloat16) if t.is_floating_point() else t)(torch.as_tensor(a))
    B, N, D = (2, 1024, 384)
    F = 4 * D
    return {'x': _w((lambda *s: torch.randn(*s, dtype=torch.bfloat16) * 0.05)(B, N, D)), 'c': _w((lambda *s: torch.randn(*s, dtype=torch.bfloat16) * 0.2)(B, D)), 'wqkv': _w((lambda *s: torch.randn(*s, dtype=torch.bfloat16) * 0.05)(D, 3 * D)), 'wo': _w((lambda *s: torch.randn(*s, dtype=torch.bfloat16) * 0.05)(D, D)), 'w_mod': _w((lambda *s: torch.randn(*s, dtype=torch.bfloat16) * 0.2)(D, 6 * D)), 'w_fc1': _w((lambda *s: torch.randn(*s, dtype=torch.bfloat16) * 0.05)(D, F)), 'w_fc2': _w((lambda *s: torch.randn(*s, dtype=torch.bfloat16) * 0.05)(F, D))}

def reference(x, c, wqkv, wo, w_mod, w_fc1, w_fc2):
    B, N, D = x.shape
    H = 2
    Dh = D // H
    mod = (_silu(c) @ w_mod).reshape(B, 6, 1, D)
    shift_a, scale_a, gate_a, shift_m, scale_m, gate_m = [mod[:, i] for i in range(6)]
    h = _layernorm(x, axis=-1) * (1 + scale_a) + shift_a
    qkv = (h @ wqkv).reshape(B, N, 3, H, Dh)
    q, k, v = (qkv[:, :, 0].clone(), qkv[:, :, 1].clone(), qkv[:, :, 2].clone())
    attn = _softmax(torch.einsum('bqhd,bkhd->bhqk', q, k) * Dh ** (-0.5), axis=-1)
    a = torch.einsum('bhqk,bkhd->bqhd', attn, v).reshape(B, N, D) @ wo
    x = x + gate_a * a
    h2 = _layernorm(x, axis=-1) * (1 + scale_m) + shift_m
    m = _gelu(h2 @ w_fc1) @ w_fc2
    return x + gate_m * m
```

```python
MOD=0; UV=0x8000; LSE=0x10000; WQKV_P=0x20000; WO_P=0x100000; FC2_P=0x180000; FC1_P=0x300000
Q_P=0x600000; K_P=0x780000; VT_P=0x900000; O_P=0xB00000; X1_P=0x1100000; G_P=0x1300000; WS_END=0x1900000
ACT=0x180000
SZ=dict(x=2*1024*384*2,c=2*384*2,wqkv=384*1152*2,wo=384*384*2,wmod=384*2304*2,fc1=384*1536*2,fc2=1536*384*2,out=2*1024*384*2,dbg=256,ws=WS_END)
KOFF=dict(x=0,c=8,wqkv=16,wo=24,wmod=32,fc1=40,fc2=48,out=56,dbg=64,ws=72)

class K:
    def __init__(s,name,grid,block,lds,vgpr,sgpr=96,agpr=0):
        s.name=name; s.grid=grid; s.block=block; s.lds=lds; s.vgpr=vgpr; s.sgpr=sgpr; s.agpr=agpr; s.L=[]
    def __call__(s,txt):
        for l in txt.strip('\n').split('\n'):
            l=l.strip()
            if l: s.L.append(('' if l.endswith(':') else '    ')+l)
    def lab(s,n): return f"L_{s.name}_{n}"
    def srds(s,lst):
        for b,r in lst: s(f"s_load_dwordx2 s[{r}:{r+1}], s[0:1], {KOFF[b]}")
        for b,r in lst:
            s(f"s_mov_b32 s{r+2}, {SZ[b]:#x}"); s(f"s_mov_b32 s{r+3}, 0x20000")
    def text(s):
        return f".globl {s.name}\n.p2align 8\n.type {s.name},@function\n{s.name}:\n"+'\n'.join(s.L)+"\n"
    def desc(s):
        acc=(s.vgpr+3)//4*4
        tot=acc+s.agpr if s.agpr else s.vgpr
        return f""".p2align 6
.amdhsa_kernel {s.name}
  .amdhsa_next_free_vgpr {tot}
  .amdhsa_next_free_sgpr {s.sgpr}
  .amdhsa_accum_offset {acc}
  .amdhsa_group_segment_fixed_size 0
  .amdhsa_kernarg_size 80
  .amdhsa_user_sgpr_count 2
  .amdhsa_user_sgpr_kernarg_segment_ptr 1
  .amdhsa_system_sgpr_workgroup_id_x 1
.end_amdhsa_kernel
"""
    def launch(s): return f"; @launch kernel={s.name} grid=({s.grid},1,1) block=({s.block},1,1) lds={s.lds}\n"

def vr(a,n): return f"v[{a}:{a+n-1}]" if n>1 else f"v{a}"

def xreduce(k,regs,tmp,op):
    for sw in ("v_permlane32_swap_b32","v_permlane16_swap_b32"):
        for r,t in zip(regs,tmp): k(f"v_mov_b32 v{t}, v{r}")
        k("s_nop 1")
        for r,t in zip(regs,tmp): k(f"{sw} v{r}, v{t}")
        k("s_nop 1")
        for r,t in zip(regs,tmp): k(f"{op} v{r}, v{r}, v{t}")

def build(kernels,path):
    hdr=open('standalone__dit_block__diffusion.s.ref').read().split('; Override')[0]
    s=hdr+''.join(k.launch() for k in kernels)
    s+='.amdgcn_target "amdgcn-amd-amdhsa--gfx950"\n.text\n'
    seen=set(); uniq=[]
    for k in kernels:
        if k.name not in seen: seen.add(k.name); uniq.append(k)
    s+=''.join(k.text() for k in uniq)
    s+='.section .rodata,"a"\n'+''.join(k.desc() for k in uniq)
    open(path,'w').write(s)

def gemm_loop(k, items, breg0, nbuf, mf):
    n=len(items)
    def rd(i):
        a,o=items[i]; k(f"ds_read_b128 {vr(breg0+4*(i%nbuf),4)}, v{a} offset:{o}")
    pre=min(nbuf-1,n)
    for i in range(pre): rd(i)
    issued=pre
    for i in range(n):
        if issued<n:
            rd(issued); issued+=1
        k(f"s_waitcnt lgkmcnt({issued-i-1})")
        mf(i, breg0+4*(i%nbuf))
```

```python
from common import *
def k0():
    k=K("k0_kernel",216,256,4096,64)
    k(f"s_cmp_ge_u32 s2, 216\ns_cbranch_scc1 {k.lab('end')}")
    k.srds([('ws',8),('c',12),('wmod',16),('wqkv',20),('wo',24),('fc2',28)])
    k(f"s_cmp_ge_u32 s2, 72\ns_cbranch_scc1 {k.lab('pack')}")
    k("""
    v_and_b32 v1, 3, v0
    v_lshrrev_b32 v2, 2, v0
    s_mov_b32 s3, 4608
    v_mul_lo_u32 v3, v2, s3
    v_lshl_add_u32 v3, v1, 4, v3
    v_lshlrev_b32 v4, 1, v2
    s_lshl_b32 s4, s2, 6
    s_waitcnt lgkmcnt(0)
    """)
    for b in range(2):
        for i in range(6): k(f"buffer_load_ushort v{40+b*6+i}, v4, s[12:15], 0 offen offset:{b*768+i*128}")
    for i in range(6):
        k(f"buffer_load_dwordx4 {vr(8+4*i,4)}, v3, s[16:19], s4 offen")
        if i<5: k(f"s_add_u32 s4, s4, {64*4608}")
    k("s_waitcnt vmcnt(6)")
    for r in range(40,52):
        k(f"v_lshlrev_b32 v{r}, 16, v{r}\nv_mul_f32 v5, 0xbfb8aa3b, v{r}\nv_exp_f32 v5, v5\ns_nop 0\nv_add_f32 v5, 1.0, v5\nv_rcp_f32 v5, v5\ns_nop 0\nv_mul_f32 v{r}, v{r}, v5\nv_cvt_pk_bf16_f32 v{r}, v{r}, v{r}\nv_lshlrev_b32 v{r}, 16, v{r}")
    A=[32,52]
    for i in range(6):
        k(f"s_waitcnt vmcnt({5-i})")
        for j in range(4):
            k(f"v_lshlrev_b32 v5, 16, v{8+4*i+j}\nv_and_b32 v6, 0xffff0000, v{8+4*i+j}")
            for b in range(2):
                if i==0:
                    k(f"v_mul_f32 v{A[b]+2*j}, v5, v{40+b*6}\nv_mul_f32 v{A[b]+2*j+1}, v6, v{40+b*6}")
                else:
                    k(f"v_fmac_f32 v{A[b]+2*j}, v5, v{40+b*6+i}\nv_fmac_f32 v{A[b]+2*j+1}, v6, v{40+b*6+i}")
    regs=[A[b]+j for b in range(2) for j in range(8)]
    for ror in (4,8):
        k("s_nop 1")
        for r in regs: k(f"v_add_f32_dpp v{r}, v{r}, v{r} row_ror:{ror} row_mask:0xf bank_mask:0xf")
    k("""
    v_lshrrev_b32 v5, 4, v0
    v_lshlrev_b32 v5, 8, v5
    v_lshl_add_u32 v5, v1, 6, v5
    v_and_b32 v6, 15, v0
    v_cmp_gt_u32 vcc, 4, v6
    s_and_saveexec_b64 s[6:7], vcc
    ds_write_b128 v5, v[32:35]
    ds_write_b128 v5, v[36:39] offset:16
    ds_write_b128 v5, v[52:55] offset:32
    ds_write_b128 v5, v[56:59] offset:48
    s_mov_b64 exec, s[6:7]
    s_waitcnt lgkmcnt(0)
    s_barrier
    v_readfirstlane_b32 s5, v0
    s_nop 3
    s_cmp_ge_u32 s5, 64
    """)
    k(f"s_cbranch_scc1 {k.lab('end')}")
    k("v_lshlrev_b32 v5, 2, v0")
    for p in range(16): k(f"ds_read_b32 v{8+p}, v5 offset:{p*256}")
    k("s_waitcnt lgkmcnt(0)")
    for p in range(1,16): k(f"v_add_f32 v8, v8, v{8+p}")
    k("""
    v_cvt_pk_bf16_f32 v8, v8, v8
    v_lshlrev_b32 v8, 16, v8
    s_sub_u32 s5, s2, 12
    s_cmp_lt_u32 s5, 12
    s_cselect_b32 s6, 1.0, 0
    s_sub_u32 s5, s2, 48
    s_cmp_lt_u32 s5, 12
    s_cselect_b32 s6, 1.0, s6
    v_add_f32 v8, s6, v8
    v_cvt_pk_bf16_f32 v8, v8, v8
    v_lshlrev_b32 v8, 16, v8
    v_lshrrev_b32 v5, 4, v0
    v_lshlrev_b32 v5, 5, v5
    v_and_b32 v6, 7, v0
    v_lshl_add_u32 v5, v6, 2, v5
    v_bfe_u32 v6, v0, 3, 1
    v_mul_u32_u24 v6, 9216, v6
    v_add_u32 v5, v5, v6
    s_lshl_b32 s4, s2, 7
    buffer_store_dword v8, v5, s[8:11], s4 offen
    s_endpgm
    """)
    k(f"{k.lab('pack')}:")
    k("""
    v_lshrrev_b32 v1, 6, v0
    v_and_b32 v2, 15, v0
    v_readfirstlane_b32 s3, v1
    v_bfe_u32 v3, v0, 4, 2
    v_and_b32 v7, 63, v0
    v_lshlrev_b32 v7, 4, v7
    s_sub_u32 s4, s2, 72
    s_lshl_b32 s4, s4, 2
    s_add_u32 s4, s4, s3
    s_waitcnt lgkmcnt(0)
    s_cmp_ge_u32 s4, 216
    """)
    k(f"s_cbranch_scc1 {k.lab('p2')}")
    def path(srd,stride,nq,dst,natural):
        k(f"s_mov_b32 s5, {(2**32+nq-1)//nq}\ns_mul_hi_u32 s5, s4, s5\ns_mul_i32 s6, s5, {nq}\ns_sub_u32 s6, s4, s6")
        k(f"s_mul_i32 s6, s6, {128*stride}\ns_lshl_b32 s5, s5, 5\ns_add_u32 s6, s6, s5")
        k(f"v_mul_u32_u24 v4, {(8 if natural else 4)*stride}, v3\nv_lshl_add_u32 v4, v2, 1, v4")
        for f in range(4):
            for j in range(8):
                jo = j if natural else (j%4)+16*(j//4)
                k(f"s_add_u32 s7, s6, {(32*f+jo)*stride}")
                k(f"buffer_load_ushort v{24+8*f+j}, v4, s[{srd}:{srd+3}], s7 offen")
        k(f"s_lshl_b32 s5, s4, 12\ns_add_u32 s5, s5, {dst:#x}")
        for f in range(4):
            k(f"s_waitcnt vmcnt({24-8*f+f})")
            for j in range(4): k(f"v_lshl_or_b32 v{8+4*f+j}, v{24+8*f+2*j+1}, 16, v{24+8*f+2*j}")
            k(f"buffer_store_dwordx4 {vr(8+4*f,4)}, v7, s[8:11], s5 offen offset:{f*1024}")
        k("s_endpgm")
    path(20,2304,3,WQKV_P,True)
    k(f"{k.lab('p2')}:\ns_sub_u32 s4, s4, 216\ns_cmp_ge_u32 s4, 72\ns_cbranch_scc1 {k.lab('p3')}")
    path(24,768,3,WO_P,False)
    k(f"{k.lab('p3')}:\ns_sub_u32 s4, s4, 72")
    path(28,768,12,FC2_P,False)
    k(f"{k.lab('end')}:\ns_endpgm")
    return k
```

```python
from common import *
import math, struct
def f2u(x): return struct.unpack('<I',struct.pack('<f',x))[0]

def stats(k, A, S, T):
    k("s_mov_b32 s40, 0x3f803f80")
    for i in range(48):
        c0 = f"v{S+(i%2)}" if i>=2 else "0"
        c1 = f"v{S+2+(i%2)}" if i>=2 else "0"
        k(f"v_dot2_f32_bf16 v{S+(i%2)}, v{A+i}, s40, {c0}")
        k(f"v_dot2_f32_bf16 v{S+2+(i%2)}, v{A+i}, v{A+i}, {c1}")
    k(f"s_nop 2\nv_add_f32 v{S}, v{S}, v{S+1}\nv_add_f32 v{S+1}, v{S+2}, v{S+3}")
    xreduce(k,[S,S+1],[T,T+1],"v_add_f32")
    k(f"""
    v_mul_f32 v{S}, {f2u(1/384):#x}, v{S}
    v_mul_f32 v{S+1}, {f2u(1/384):#x}, v{S+1}
    v_fma_f32 v{S+1}, -v{S}, v{S}, v{S+1}
    v_max_f32 v{S+1}, 0, v{S+1}
    v_add_f32 v{S+1}, {f2u(1e-5):#x}, v{S+1}
    v_rsq_f32 v{S+1}, v{S+1}
    s_nop 0
    """)

def bdma(k, n, sm0, soff, voff):
    for i in range(n):
        if i%4==0:
            if i: k(f"s_add_u32 s{sm0}, s{sm0}, 4096\ns_add_u32 s{soff}, s{soff}, 4096")
            k(f"s_mov_b32 m0, s{sm0}\ns_nop 0")
        k(f"buffer_load_dwordx4 v{voff}, s[8:11], s{soff} offen offset:{(i%4)*1024} lds")

def k1():
    k=K("k1_kernel",216,512,73728+3072,128)
    k(f"s_cmp_ge_u32 s2, 216\ns_cbranch_scc1 {k.lab('end')}")
    k.srds([('ws',8),('x',12),('fc1',16)])
    k("""
    v_lshrrev_b32 v1, 6, v0
    v_and_b32 v2, 15, v0
    v_readfirstlane_b32 s3, v1
    v_bfe_u32 v3, v0, 4, 2
    v_and_b32 v4, 63, v0
    v_lshlrev_b32 v4, 4, v4
    s_cmp_ge_u32 s2, 192
    """)
    k(f"s_cbranch_scc1 {k.lab('side')}")
    A=8; ACC=56; BB=80; S=112
    k(f"""
    s_and_b32 s4, s2, 7
    s_lshr_b32 s5, s2, 3
    s_lshr_b32 s20, s4, 1
    s_lshl_b32 s20, s20, 2
    s_and_b32 s6, s5, 3
    s_add_u32 s20, s20, s6
    s_and_b32 s21, s4, 1
    s_mul_i32 s21, s21, 6
    s_lshr_b32 s6, s5, 2
    s_add_u32 s21, s21, s6
    s_lshl_b32 s22, s20, 3
    s_add_u32 s22, s22, s3
    s_mul_i32 s23, s22, {16*768}
    v_mul_u32_u24 v5, 768, v2
    v_lshl_add_u32 v5, v3, 4, v5
    s_waitcnt lgkmcnt(0)
    """)
    for s in range(12): k(f"buffer_load_dwordx4 {vr(A+4*s,4)}, v5, s[12:15], s23 offen offset:{s*64}")
    k(f"""
    s_min_u32 s24, s3, 2
    s_lshl_b32 s24, s24, 10
    s_lshr_b32 s25, s20, 3
    s_mul_i32 s26, s25, 9216
    s_add_u32 s26, s26, s24
    s_add_u32 s24, s24, 73728
    s_mov_b32 m0, s24
    s_mul_i32 s27, s3, 9216
    buffer_load_dwordx4 v4, s[8:11], s26 offen lds
    s_mul_i32 s28, s21, 73728
    s_add_u32 s28, s28, s27
    s_add_u32 s28, s28, {WQKV_P:#x}
    """)
    bdma(k,9,27,28,4)
    k("s_waitcnt vmcnt(10)")
    stats(k,A,S,S+4)
    k(f"v_mul_f32 v{S}, v{S}, v{S+1}\nv_lshlrev_b32 v6, 5, v3\nv_add_u32 v6, 73728, v6\ns_waitcnt vmcnt(9)\ns_barrier")
    P=BB
    def prd(s):
        b=P+16*(s%2)
        for q in range(2):
            k(f"ds_read_b128 {vr(b+4*q,4)}, v6 offset:{s*128+16*q}")
            k(f"ds_read_b128 {vr(b+8+4*q,4)}, v6 offset:{1536+s*128+16*q}")
    prd(0)
    for s in range(12):
        if s<11: prd(s+1)
        b=P+16*(s%2)
        for j in range(4):
            t=ACC+2*j
            k(f"v_lshlrev_b32 v{t}, 16, v{A+4*s+j}\nv_and_b32 v{t+1}, 0xffff0000, v{A+4*s+j}")
            k(f"v_fma_f32 v{t}, v{t}, v{S+1}, -v{S}\nv_fma_f32 v{t+1}, v{t+1}, v{S+1}, -v{S}")
        k(f"s_waitcnt lgkmcnt({4 if s<11 else 0})")
        for j in range(4):
            t=ACC+2*j
            k(f"v_fma_f32 v{t}, v{t}, v{b+8+2*j}, v{b+2*j}\nv_fma_f32 v{t+1}, v{t+1}, v{b+8+2*j+1}, v{b+2*j+1}")
        for j in range(4):
            t=ACC+2*j
            k(f"v_cvt_pk_bf16_f32 v{A+4*s+j}, v{t}, v{t+1}")
    k(f"v_add_u32 v7, 36864, v4\ns_waitcnt vmcnt(0)\ns_barrier\ns_cmp_ge_u32 s21, 8\ns_cbranch_scc1 {k.lab('v')}")
    items=[((4 if f<36 else 7),(f%36)*1024) for f in range(72)]
    def mfq(i,b):
        cb,s=divmod(i,12); c=vr(ACC+4*cb,4)
        k(f"v_mfma_f32_16x16x32_bf16 {c}, {vr(b,4)}, {vr(A+4*s,4)}, {c if s else 0}")
    gemm_loop(k,items,BB,8,mfq)
    qs=f2u(192**-0.5*math.log2(math.e))
    k(f"""
    s_cmp_lt_u32 s21, 4
    s_cselect_b32 s30, {qs:#x}, 1.0
    s_lshr_b32 s31, s21, 2
    s_mul_i32 s31, s31, {ACT:#x}
    s_and_b32 s32, s21, 3
    s_mul_i32 s32, s32, 3
    s_mul_i32 s33, s22, 12
    s_add_u32 s32, s32, s33
    s_lshl_b32 s32, s32, 10
    s_add_u32 s31, s31, s32
    s_add_u32 s31, s31, {Q_P:#x}
    """)
    for i in range(3):
        for j in range(8): k(f"v_mul_f32 v{ACC+8*i+j}, s30, v{ACC+8*i+j}")
        for j in range(4): k(f"v_cvt_pk_bf16_f32 v{BB+4*i+j}, v{ACC+8*i+2*j}, v{ACC+8*i+2*j+1}")
        k(f"buffer_store_dwordx4 {vr(BB+4*i,4)}, v4, s[8:11], s31 offen offset:{i*1024}")
    k("s_endpgm")
    k(f"{k.lab('v')}:")
    def mfv(i,b):
        cb,s=divmod(i,12); c=vr(ACC+4*cb,4)
        k(f"v_mfma_f32_16x16x32_bf16 {c}, {vr(A+4*s,4)}, {vr(b,4)}, {c if s else 0}")
    gemm_loop(k,items,BB,8,mfv)
    k(f"""
    s_sub_u32 s31, s21, 8
    s_mul_i32 s31, s31, 6
    s_mul_i32 s32, s25, 24
    s_add_u32 s31, s31, s32
    s_lshl_b32 s31, s31, 5
    s_and_b32 s32, s22, 63
    s_lshr_b32 s32, s32, 1
    s_add_u32 s31, s31, s32
    s_lshl_b32 s31, s31, 10
    s_and_b32 s32, s3, 1
    s_lshl_b32 s32, s32, 3
    s_add_u32 s31, s31, s32
    s_add_u32 s31, s31, {VT_P:#x}
    """)
    for cb in range(6):
        for j in range(2): k(f"v_cvt_pk_bf16_f32 v{BB+2*cb+j}, v{ACC+4*cb+2*j}, v{ACC+4*cb+2*j+1}")
        k(f"buffer_store_dwordx2 {vr(BB+2*cb,2)}, v4, s[8:11], s31 offen")
        if cb<5: k("s_add_u32 s31, s31, 32768")
    k("s_endpgm")
    k(f"{k.lab('side')}:")
    k(f"""
    s_sub_u32 s4, s2, 192
    s_lshl_b32 s4, s4, 3
    s_add_u32 s4, s4, s3
    s_and_b32 s5, s4, 1
    s_lshr_b32 s4, s4, 1
    s_lshl_b32 s6, s4, 5
    v_mul_u32_u24 v5, {4*3072}, v3
    v_lshl_add_u32 v5, v2, 1, v5
    v_lshlrev_b32 v6, 4, v3
    s_mul_i32 s20, s5, 9216
    s_add_u32 s20, s20, {1152*4}
    s_mul_i32 s21, s5, 0x120000
    s_mul_i32 s22, s4, 12288
    s_add_u32 s21, s21, s22
    s_add_u32 s21, s21, {FC1_P:#x}
    s_mov_b32 s40, 0x3f803f80
    v_mov_b32 v8, 0
    v_mov_b32 v9, 0
    s_waitcnt lgkmcnt(0)
    """)
    W=16; PA=48; O=112
    for ch in range(3):
        for f in range(4):
            s=ch*4+f
            for j in range(8):
                jo=(j%4)+16*(j//4)
                k(f"s_add_u32 s7, s6, {(32*s+jo)*3072}")
                k(f"buffer_load_ushort v{W+8*f+j}, v5, s[16:19], s7 offen")
            for q in range(2):
                k(f"buffer_load_dwordx4 {vr(PA+16*f+4*q,4)}, v6, s[8:11], s20 offen offset:{s*128+64*q}")
                k(f"buffer_load_dwordx4 {vr(PA+16*f+8+4*q,4)}, v6, s[8:11], s20 offen offset:{1536+s*128+64*q}")
        for f in range(4):
            s=ch*4+f
            k(f"s_waitcnt vmcnt({36-12*f+f})")
            for j in range(8):
                w=W+8*f+j
                k(f"v_lshlrev_b32 v{w}, 16, v{w}\nv_fmac_f32 v9, v{w}, v{PA+16*f+j}\nv_mul_f32 v{w}, v{w}, v{PA+16*f+8+j}")
            for j in range(4): k(f"v_cvt_pk_bf16_f32 v{O+4*f+j}, v{W+8*f+2*j}, v{W+8*f+2*j+1}")
            for j in range(4): k(f"v_dot2_f32_bf16 v8, v{O+4*f+j}, s40, v8")
            k(f"buffer_store_dwordx4 {vr(O+4*f,4)}, v4, s[8:11], s21 offen offset:{f*1024}")
        k("s_add_u32 s21, s21, 4096")
        if ch<2: k("s_waitcnt vmcnt(0)")
    k("s_nop 2")
    xreduce(k,[8,9],[10,11],"v_add_f32")
    k(f"""
    s_mul_i32 s20, s5, 12288
    s_lshl_b32 s6, s4, 6
    s_add_u32 s20, s20, s6
    s_add_u32 s20, s20, {UV:#x}
    s_add_u32 s21, s20, 6144
    v_lshlrev_b32 v5, 2, v2
    buffer_store_dword v8, v5, s[8:11], s20 offen
    buffer_store_dword v9, v5, s[8:11], s21 offen
    """)
    k(f"{k.lab('end')}:\ns_endpgm")
    return k

def k4():
    k=K("k4_kernel",256,512,73728,168)
    k(f"s_cmp_ge_u32 s2, 256\ns_cbranch_scc1 {k.lab('end')}")
    k.srds([('ws',8)])
    A=8; ACC=56; BB=80; S=112; U=120
    k(f"""
    v_lshrrev_b32 v1, 6, v0
    v_and_b32 v2, 15, v0
    v_readfirstlane_b32 s3, v1
    v_bfe_u32 v3, v0, 4, 2
    v_and_b32 v4, 63, v0
    v_lshlrev_b32 v4, 4, v4
    v_lshlrev_b32 v6, 4, v3
    s_and_b32 s4, s2, 7
    s_lshr_b32 s5, s2, 3
    s_lshr_b32 s20, s4, 1
    s_lshl_b32 s20, s20, 2
    s_and_b32 s6, s5, 3
    s_add_u32 s20, s20, s6
    s_and_b32 s21, s4, 1
    s_lshl_b32 s21, s21, 3
    s_lshr_b32 s6, s5, 2
    s_add_u32 s21, s21, s6
    s_lshl_b32 s22, s20, 3
    s_add_u32 s22, s22, s3
    s_mul_i32 s23, s22, 12288
    s_add_u32 s23, s23, {X1_P:#x}
    s_lshr_b32 s25, s20, 3
    s_mul_i32 s27, s3, 9216
    s_mul_i32 s28, s21, 73728
    s_add_u32 s28, s28, s27
    s_mul_i32 s29, s25, 0x120000
    s_add_u32 s28, s28, s29
    s_add_u32 s28, s28, {FC1_P:#x}
    s_mul_i32 s30, s25, 12288
    s_mul_i32 s31, s21, 384
    s_add_u32 s30, s30, s31
    s_add_u32 s30, s30, {UV:#x}
    s_add_u32 s31, s30, 6144
    s_waitcnt lgkmcnt(0)
    """)
    for s in range(12):
        if s and s%4==0: k("s_add_u32 s23, s23, 4096")
        k(f"buffer_load_dwordx4 {vr(A+4*s,4)}, v4, s[8:11], s23 offen offset:{(s%4)*1024}")
    bdma(k,9,27,28,4)
    for cb in range(6):
        k(f"buffer_load_dwordx4 {vr(U+4*cb,4)}, v6, s[8:11], s30 offen offset:{cb*64}")
        k(f"buffer_load_dwordx4 {vr(U+24+4*cb,4)}, v6, s[8:11], s31 offen offset:{cb*64}")
    k("s_waitcnt vmcnt(21)")
    stats(k,A,S,S+4)
    k(f"""
    v_add_u32 v7, 36864, v4
    s_mul_i32 s32, s22, 48
    s_mul_i32 s33, s21, 3
    s_add_u32 s32, s32, s33
    s_lshl_b32 s32, s32, 10
    s_add_u32 s32, s32, {G_P:#x}
    s_mov_b32 s34, {f2u(-2*math.sqrt(2/math.pi)*math.log2(math.e)*0.044715):#x}
    v_mov_b32 v5, {f2u(-2*math.sqrt(2/math.pi)*math.log2(math.e)):#x}
    s_waitcnt vmcnt(0)
    s_barrier
    """)
    items=[((4 if f<36 else 7),(f%36)*1024) for f in range(72)]
    def mfq(i,b):
        cb,s=divmod(i,12); c=vr(ACC+4*cb,4)
        k(f"v_mfma_f32_16x16x32_bf16 {c}, {vr(b,4)}, {vr(A+4*s,4)}, {c if s else 0}")
    gemm_loop(k,items,BB,8,mfq)
    k("s_nop 3")
    for i in range(3):
        R=[ACC+8*i+j for j in range(8)]; T=[BB+16+j for j in range(8)]
        for j in range(8): k(f"v_fma_f32 v{R[j]}, -v{S}, v{U+8*i+j}, v{R[j]}")
        for j in range(8): k(f"v_fma_f32 v{R[j]}, v{R[j]}, v{S+1}, v{U+24+8*i+j}")
        for j in range(8): k(f"v_mul_f32 v{T[j]}, v{R[j]}, v{R[j]}")
        for j in range(8): k(f"v_fma_f32 v{T[j]}, v{T[j]}, s34, v5")
        for j in range(8): k(f"v_mul_f32 v{T[j]}, v{T[j]}, v{R[j]}")
        for j in range(8): k(f"v_exp_f32 v{T[j]}, v{T[j]}")
        for j in range(8): k(f"v_add_f32 v{T[j]}, 1.0, v{T[j]}")
        for j in range(8): k(f"v_rcp_f32 v{T[j]}, v{T[j]}")
        for j in range(8): k(f"v_mul_f32 v{R[j]}, v{R[j]}, v{T[j]}")
        for j in range(4): k(f"v_cvt_pk_bf16_f32 v{BB+4*i+j}, v{R[2*j]}, v{R[2*j+1]}")
        k(f"buffer_store_dwordx4 {vr(BB+4*i,4)}, v4, s[8:11], s32 offen offset:{i*1024}")
    k(f"{k.lab('end')}:\ns_endpgm")
    return k
```

```python
from common import *
from k14 import f2u
PRO="""
    v_lshrrev_b32 v1, 6, v0
    v_and_b32 v2, 15, v0
    v_readfirstlane_b32 s3, v1
    v_bfe_u32 v3, v0, 4, 2
    v_and_b32 v4, 63, v0
    v_lshlrev_b32 v4, 4, v4
    s_and_b32 s4, s2, 7
    s_lshr_b32 s5, s2, 3
"""
def k2():
    QL=0; PL=24576; VL=57344; ML=155648; SL=157696
    k=K("k2_kernel",256,512,159744,128)
    k(f"s_cmp_ge_u32 s2, 256\ns_cbranch_scc1 {k.lab('end')}")
    k.srds([('ws',8)])
    KF=8; SA=56; BB=88; T=120
    k(PRO)
    k(f"""
    s_lshr_b32 s20, s4, 2
    s_bfe_u32 s21, s4, 0x10001
    s_and_b32 s22, s4, 1
    s_lshl_b32 s22, s22, 1
    s_and_b32 s6, s5, 1
    s_add_u32 s22, s22, s6
    s_lshr_b32 s23, s5, 1
    s_lshl_b32 s24, s20, 6
    s_lshl_b32 s6, s23, 2
    s_add_u32 s24, s24, s6
    s_lshr_b32 s6, s3, 1
    s_add_u32 s25, s24, s6
    s_mul_i32 s25, s25, 12
    s_mul_i32 s26, s21, 6
    s_add_u32 s25, s25, s26
    s_and_b32 s6, s3, 1
    s_mul_i32 s6, s6, 3
    s_add_u32 s25, s25, s6
    s_lshl_b32 s25, s25, 10
    s_add_u32 s25, s25, {Q_P:#x}
    s_mul_i32 s6, s3, 3072
    s_mov_b32 m0, s6
    s_lshl_b32 s27, s20, 6
    s_lshl_b32 s6, s22, 4
    s_add_u32 s27, s27, s6
    s_lshl_b32 s6, s3, 1
    s_add_u32 s27, s27, s6
    s_mul_i32 s27, s27, 12
    s_add_u32 s27, s27, s26
    s_lshl_b32 s27, s27, 10
    s_add_u32 s27, s27, {K_P:#x}
    s_mul_i32 s28, s20, 24
    s_mul_i32 s6, s21, 12
    s_add_u32 s28, s28, s6
    s_lshl_b32 s28, s28, 5
    s_lshl_b32 s6, s22, 3
    s_add_u32 s28, s28, s6
    s_add_u32 s28, s28, s3
    s_lshl_b32 s28, s28, 10
    s_add_u32 s28, s28, {VT_P:#x}
    s_lshl_b32 s29, s3, 10
    s_add_u32 s29, s29, {VL}
    s_waitcnt lgkmcnt(0)
    """)
    for i in range(3): k(f"buffer_load_dwordx4 v4, s[8:11], s25 offen offset:{i*1024} lds")
    for kb in range(2):
        for s in range(6):
            if s==4: k("s_add_u32 s27, s27, 4096")
            k(f"buffer_load_dwordx4 {vr(KF+24*kb+4*s,4)}, v4, s[8:11], s27 offen offset:{(s%4)*1024}")
        if kb==0: k("s_add_u32 s27, s27, 8192")
    for i in range(12):
        k(f"s_mov_b32 m0, s29\ns_add_u32 s29, s29, 8192")
        k(f"buffer_load_dwordx4 v4, s[8:11], s28 offen lds\ns_add_u32 s28, s28, 32768")
    k("s_waitcnt vmcnt(12)\ns_barrier")
    items=[(4,QL+(qb*6+s)*1024) for s in range(6) for qb in range(4)]
    def mf1(i,b):
        s,qb=divmod(i,4)
        for kb in range(2):
            c=vr(SA+8*qb+4*kb,4)
            k(f"v_mfma_f32_16x16x32_bf16 {c}, {vr(KF+24*kb+4*s,4)}, {vr(b,4)}, {c if s else 0}")
    gemm_loop(k,items,BB,8,mf1)
    k(f"""
    v_and_b32 v5, 63, v0
    v_lshlrev_b32 v5, 5, v5
    v_lshl_add_u32 v5, v1, 2, v5
    v_add_u32 v5, {ML}, v5
    v_lshlrev_b32 v6, 5, v2
    v_add_u32 v6, {ML}, v6
    s_lshl_b32 s6, s3, 10
    s_add_u32 s6, s6, {PL}
    v_add_u32 v7, s6, v4
    """)
    M=KF
    for qb in range(4):
        r=SA+8*qb
        k(f"v_max3_f32 v{M+qb}, v{r}, v{r+1}, v{r+2}\nv_max3_f32 v{M+qb}, v{M+qb}, v{r+3}, v{r+4}\nv_max3_f32 v{M+qb}, v{M+qb}, v{r+5}, v{r+6}\nv_max_f32 v{M+qb}, v{M+qb}, v{r+7}")
    def treduce(op,addr_off):
        k(f"""
        s_nop 1
        v_permlane32_swap_b32 v{M}, v{M+2}
        v_permlane32_swap_b32 v{M+1}, v{M+3}
        s_nop 1
        {op} v{M}, v{M}, v{M+2}
        {op} v{M+1}, v{M+1}, v{M+3}
        s_nop 1
        v_permlane16_swap_b32 v{M}, v{M+1}
        s_nop 1
        {op} v{M}, v{M}, v{M+1}
        ds_write_b32 v5, v{M} offset:{addr_off}
        """)
    treduce("v_max_f32",0)
    k("s_waitcnt lgkmcnt(0)\ns_barrier")
    G=KF+8
    for qb in range(4):
        for q in range(2): k(f"ds_read_b128 {vr(G+8*qb+4*q,4)}, v6 offset:{qb*512+16*q}")
    for qb in range(4):
        r=G+8*qb; m=T+qb
        k(f"s_waitcnt lgkmcnt({6-2*qb})")
        k(f"v_max3_f32 v{m}, v{r}, v{r+1}, v{r+2}\nv_max3_f32 v{m}, v{m}, v{r+3}, v{r+4}\nv_max3_f32 v{m}, v{m}, v{r+5}, v{r+6}\nv_max_f32 v{m}, v{m}, v{r+7}")
    for qb in range(4):
        r=SA+8*qb
        for j in range(8): k(f"v_sub_f32 v{r+j}, v{r+j}, v{T+qb}")
        for j in range(8): k(f"v_exp_f32 v{r+j}, v{r+j}")
        k("s_nop 0")
        for j in range(4): k(f"v_cvt_pk_bf16_f32 v{BB+4*qb+j}, v{r+2*j}, v{r+2*j+1}")
        k(f"ds_write_b128 v7, {vr(BB+4*qb,4)} offset:{qb*8192}")
        k(f"v_add_f32 v{M+qb}, v{r}, v{r+1}")
        for j in range(2,8): k(f"v_add_f32 v{M+qb}, v{M+qb}, v{r+j}")
    treduce("v_add_f32",SL-ML)
    k(f"""
    s_and_b32 s30, s3, 3
    s_lshr_b32 s31, s3, 2
    s_mul_i32 s6, s30, 24576
    s_add_u32 s6, s6, {VL}
    v_add_u32 v5, s6, v4
    s_lshl_b32 s6, s31, 14
    s_add_u32 s6, s6, {PL}
    v_add_u32 v7, s6, v4
    s_lshl_b32 s6, s31, 10
    v_add_u32 v6, s6, v6
    s_cmp_eq_u32 s31, 0
    s_cselect_b64 vcc, -1, 0
    v_cndmask_b32 v{T}, v{T+2}, v{T}, vcc
    v_cndmask_b32 v{T+1}, v{T+3}, v{T+1}, vcc
    s_waitcnt vmcnt(0) lgkmcnt(0)
    s_barrier
    """)
    for qq in range(2):
        for q in range(2): k(f"ds_read_b128 {vr(G+8*qq+4*q,4)}, v6 offset:{SL-ML+qq*512+16*q}")
    OA=SA
    items=[]
    for ks in range(8):
        items+= [(7,qq*8192+ks*1024) for qq in range(2)] + [(5,j*8192+ks*1024) for j in range(3)]
    st={}
    def mf2(i,b):
        ks,t=divmod(i,5)
        st[t]=b
        if t>=2:
            for qq in range(2):
                c=vr(OA+8*(t-2)+4*qq,4)
                k(f"v_mfma_f32_16x16x32_bf16 {c}, {vr(b,4)}, {vr(st[qq],4)}, {c if ks else 0}")
    n=len(items); B0=80
    def rd(i):
        a,o=items[i]; k(f"ds_read_b128 {vr(B0+4*(i%10),4)}, v{a} offset:{o}")
    for i in range(5): rd(i)
    issued=5
    for i in range(n):
        k(f"s_waitcnt lgkmcnt({issued-i-1})")
        mf2(i,B0+4*(i%10))
        if issued<n: rd(issued); issued+=1
    for qq in range(2):
        r=G+8*qq
        k(f"v_add_f32 v{r}, v{r}, v{r+1}")
        for j in range(2,8): k(f"v_add_f32 v{r}, v{r}, v{r+j}")
        k(f"v_rcp_f32 v{r+1}, v{r}\nv_log_f32 v{r+2}, v{r}")
    k(f"""
    s_lshl_b32 s6, s31, 1
    s_add_u32 s24, s24, s6
    s_mul_i32 s32, s24, 12288
    s_mul_i32 s6, s22, {ACT:#x}
    s_add_u32 s32, s32, s6
    s_add_u32 s32, s32, {O_P:#x}
    s_mul_i32 s33, s21, 12
    s_mul_i32 s6, s30, 3
    s_add_u32 s33, s33, s6
    """)
    for j in range(3):
        k(f"s_lshr_b32 s34, s33, 1\ns_lshl_b32 s34, s34, 10\ns_and_b32 s35, s33, 1\ns_lshl_b32 s35, s35, 3\ns_add_u32 s34, s34, s35\ns_add_u32 s34, s34, s32\ns_add_u32 s35, s34, 12288\ns_add_u32 s33, s33, 1")
        for qq in range(2):
            r=OA+8*j+4*qq
            for t in range(4): k(f"v_mul_f32 v{r+t}, v{r+t}, v{G+8*qq+1}")
            k(f"v_cvt_pk_bf16_f32 v{r}, v{r}, v{r+1}\nv_cvt_pk_bf16_f32 v{r+1}, v{r+2}, v{r+3}")
            k(f"buffer_store_dwordx2 {vr(r,2)}, v4, s[8:11], s{34+qq} offen")
    k(f"""
    s_cmp_lg_u32 s30, 0
    s_cbranch_scc1 {k.lab('end')}
    v_add_f32 v{T}, v{T}, v{G+2}
    v_add_f32 v{T+1}, v{T+1}, v{G+10}
    s_lshl_b32 s6, s22, 1
    s_add_u32 s6, s6, s21
    s_lshl_b32 s6, s6, 13
    s_lshl_b32 s7, s24, 6
    s_add_u32 s6, s6, s7
    s_add_u32 s6, s6, {LSE:#x}
    v_lshlrev_b32 v5, 2, v2
    buffer_store_dword v{T}, v5, s[8:11], s6 offen
    buffer_store_dword v{T+1}, v5, s[8:11], s6 offen offset:64
    """)
    k(f"{k.lab('end')}:\ns_endpgm")
    return k

def k3():
    k=K("k3_kernel",256,512,24576,128)
    k(f"s_cmp_ge_u32 s2, 256\ns_cbranch_scc1 {k.lab('end')}")
    k.srds([('ws',8),('x',12)])
    OP=8; WB=56; LS=104; XG=108; ACC=116
    k(PRO)
    k(f"""
    s_lshl_b32 s20, s4, 3
    s_and_b32 s6, s5, 7
    s_add_u32 s20, s20, s6
    s_lshr_b32 s21, s5, 3
    s_lshl_b32 s22, s20, 1
    s_lshr_b32 s6, s3, 2
    s_add_u32 s23, s22, s6
    s_and_b32 s24, s3, 3
    s_mul_i32 s25, s23, 12288
    s_mul_i32 s6, s24, 3072
    s_add_u32 s25, s25, s6
    s_add_u32 s25, s25, {O_P:#x}
    s_lshr_b32 s6, s24, 1
    s_lshl_b32 s26, s6, 13
    s_lshl_b32 s6, s23, 6
    s_add_u32 s26, s26, s6
    s_add_u32 s26, s26, {LSE:#x}
    v_lshlrev_b32 v5, 2, v2
    s_min_u32 s27, s3, 5
    s_mul_i32 s6, s21, 6
    s_add_u32 s27, s27, s6
    s_mul_i32 s28, s27, 12288
    s_add_u32 s28, s28, {WO_P:#x}
    v_mul_u32_u24 v6, 768, v2
    v_lshl_add_u32 v6, v3, 3, v6
    s_mul_i32 s29, s20, {32*768}
    s_lshl_b32 s6, s27, 5
    s_add_u32 s29, s29, s6
    s_add_u32 s30, s29, {16*768}
    s_lshr_b32 s6, s20, 5
    s_mul_i32 s31, s6, 9216
    s_lshl_b32 s6, s27, 6
    s_add_u32 s31, s31, s6
    s_add_u32 s31, s31, {768*4}
    v_lshlrev_b32 v7, 4, v3
    s_waitcnt lgkmcnt(0)
    """)
    for sp in range(4):
        k(f"buffer_load_dword v{LS+sp}, v5, s[8:11], s26 offen")
        if sp<3: k("s_add_u32 s26, s26, 16384")
    for sp in range(4):
        for i in range(3): k(f"buffer_load_dwordx4 {vr(OP+16*i+4*sp,4)}, v4, s[8:11], s25 offen offset:{i*1024}")
        if sp<3: k(f"s_add_u32 s25, s25, {ACT:#x}")
    for s in range(12):
        if s and s%4==0: k("s_add_u32 s28, s28, 4096")
        k(f"buffer_load_dwordx4 {vr(WB+4*s,4)}, v4, s[8:11], s28 offen offset:{(s%4)*1024}")
    k(f"buffer_load_dwordx2 {vr(XG,2)}, v6, s[12:15], s29 offen\nbuffer_load_dwordx2 {vr(XG+2,2)}, v6, s[12:15], s30 offen")
    k(f"buffer_load_dwordx4 {vr(XG+4,4)}, v7, s[8:11], s31 offen")
    t=ACC
    k(f"""
    s_waitcnt vmcnt(27)
    v_max3_f32 v{t}, v{LS}, v{LS+1}, v{LS+2}
    v_max_f32 v{t}, v{t}, v{LS+3}
    """)
    for sp in range(4): k(f"v_sub_f32 v{LS+sp}, v{LS+sp}, v{t}")
    for sp in range(4): k(f"v_exp_f32 v{LS+sp}, v{LS+sp}")
    k(f"s_nop 0\nv_add_f32 v{t}, v{LS}, v{LS+1}\nv_add_f32 v{t}, v{t}, v{LS+2}\nv_add_f32 v{t}, v{t}, v{LS+3}\nv_rcp_f32 v{t}, v{t}\ns_mul_i32 s6, s3, 3072")
    for sp in range(4): k(f"v_mul_f32 v{LS+sp}, v{LS+sp}, v{t}")
    k("v_add_u32 v5, s6, v4\ns_waitcnt vmcnt(15)")
    for i in range(3):
        for sp in range(4):
            for j in range(4):
                r=OP+16*i+4*sp+j
                k(f"v_and_b32 v124, 0xffff0000, v{r}\nv_lshlrev_b32 v{r}, 16, v{r}")
                op="v_fmac_f32" if sp else "v_mul_f32"
                k(f"{op} v{t+2*j}, v{r}, v{LS+sp}\n{op} v{t+2*j+1}, v124, v{LS+sp}")
        for j in range(4): k(f"v_cvt_pk_bf16_f32 v{OP+16*i+j}, v{t+2*j}, v{t+2*j+1}")
        k(f"ds_write_b128 v5, {vr(OP+16*i,4)} offset:{i*1024}")
    k(f"s_waitcnt lgkmcnt(0)\ns_barrier\ns_cmp_ge_u32 s3, 6\ns_cbranch_scc1 {k.lab('end')}\ns_waitcnt vmcnt(0)")
    items=[(4,(rb*12+s)*1024) for s in range(12) for rb in range(2)]
    def mf(i,b):
        s,rb=divmod(i,2); c=vr(ACC+4*rb,4)
        k(f"v_mfma_f32_16x16x32_bf16 {c}, {vr(WB+4*s,4)}, {vr(b,4)}, {c if s else 0}")
    gemm_loop(k,items,OP,8,mf)
    k(f"""
    s_mul_i32 s32, s22, 12288
    s_lshr_b32 s6, s27, 1
    s_lshl_b32 s6, s6, 10
    s_add_u32 s32, s32, s6
    s_and_b32 s6, s27, 1
    s_lshl_b32 s6, s6, 3
    s_add_u32 s32, s32, s6
    s_add_u32 s32, s32, {X1_P:#x}
    s_add_u32 s33, s32, 12288
    """)
    for rb in range(2):
        for j in range(2):
            x=XG+2*rb+j
            k(f"v_lshlrev_b32 v8, 16, v{x}\nv_and_b32 v9, 0xffff0000, v{x}")
            k(f"v_fma_f32 v8, v{ACC+4*rb+2*j}, v{XG+4+2*j}, v8\nv_fma_f32 v9, v{ACC+4*rb+2*j+1}, v{XG+4+2*j+1}, v9")
            k(f"v_cvt_pk_bf16_f32 v{x}, v8, v9")
        k(f"buffer_store_dwordx2 {vr(XG+2*rb,2)}, v4, s[8:11], s{32+rb} offen")
    k(f"{k.lab('end')}:\ns_endpgm")
    return k

def k5():
    RL=147456
    k=K("k5_kernel",256,512,159744,168)
    k(f"s_cmp_ge_u32 s2, 256\ns_cbranch_scc1 {k.lab('end')}")
    k.srds([('ws',8),('out',12)])
    A=8; ACC=104; BB=116; XG=148
    k(PRO)
    k(f"""
    s_lshl_b32 s20, s4, 2
    s_and_b32 s6, s5, 3
    s_add_u32 s20, s20, s6
    s_lshr_b32 s21, s5, 2
    s_and_b32 s22, s3, 3
    s_lshr_b32 s23, s3, 2
    s_lshl_b32 s24, s20, 2
    s_add_u32 s24, s24, s22
    s_mul_i32 s25, s24, 49152
    s_mul_i32 s6, s23, 24576
    s_add_u32 s25, s25, s6
    s_add_u32 s25, s25, {G_P:#x}
    s_lshl_b32 s26, s22, 10
    s_add_u32 s26, s26, s6
    s_mul_i32 s27, s21, 147456
    s_add_u32 s27, s27, s26
    s_add_u32 s27, s27, {FC2_P:#x}
    v_add_u32 v5, s6, v4
    v_add_u32 v6, 49152, v5
    v_add_u32 v7, 49152, v6
    s_mul_i32 s28, s21, 3
    s_mul_i32 s29, s24, 12288
    s_add_u32 s29, s29, {X1_P:#x}
    s_lshr_b32 s6, s20, 4
    s_mul_i32 s30, s6, 9216
    s_mul_i32 s6, s21, 192
    s_add_u32 s30, s30, s6
    s_add_u32 s30, s30, {1920*4}
    v_lshlrev_b32 v1, 4, v3
    s_waitcnt lgkmcnt(0)
    """)
    for c in range(6):
        for i in range(4): k(f"buffer_load_dwordx4 {vr(A+16*c+4*i,4)}, v4, s[8:11], s25 offen offset:{i*1024}")
        for cb in range(3):
            k(f"s_add_u32 s6, s26, {cb*49152}\ns_mov_b32 m0, s6\ns_add_u32 s7, s27, {cb*49152}")
            k(f"buffer_load_dwordx4 v4, s[8:11], s7 offen lds")
        if c<5: k("s_add_u32 s25, s25, 4096\ns_add_u32 s26, s26, 4096\ns_add_u32 s27, s27, 4096")
    for cb in range(3):
        k(f"s_add_u32 s6, s28, {cb}\ns_lshr_b32 s7, s6, 1\ns_lshl_b32 s7, s7, 10\ns_and_b32 s6, s6, 1\ns_lshl_b32 s6, s6, 3\ns_add_u32 s7, s7, s6\ns_add_u32 s7, s7, s29")
        k(f"buffer_load_dwordx2 {vr(XG+2*cb,2)}, v4, s[8:11], s7 offen")
        k(f"buffer_load_dwordx4 {vr(XG+8+4*cb,4)}, v1, s[8:11], s30 offen offset:{cb*64}")
    for c in range(6):
        k(f"s_waitcnt vmcnt({7*(5-c)+6})\ns_barrier")
        items=[(5+cb,(4*c+i)*1024) for i in range(4) for cb in range(3)]
        def mf(n,b):
            i,cb=divmod(n,3); cc=vr(ACC+4*cb,4)
            k(f"v_mfma_f32_16x16x32_bf16 {cc}, {vr(b,4)}, {vr(A+16*c+4*i,4)}, {cc if (c or i) else 0}")
        gemm_loop(k,items,BB,8,mf)
    k(f"""
    s_mul_i32 s6, s22, 3072
    s_add_u32 s6, s6, {RL}
    v_add_u32 v5, s6, v4
    s_cmp_eq_u32 s23, 0
    s_cbranch_scc1 {k.lab('lo')}
    s_nop 4
    """)
    for cb in range(3): k(f"ds_write_b128 v5, {vr(ACC+4*cb,4)} offset:{cb*1024}")
    k(f"s_waitcnt lgkmcnt(0)\ns_barrier\ns_endpgm\n{k.lab('lo')}:")
    k(f"""
    v_mul_u32_u24 v6, 768, v2
    v_lshl_add_u32 v6, v3, 3, v6
    s_mul_i32 s31, s24, {16*768}
    s_mul_i32 s6, s21, 96
    s_add_u32 s31, s31, s6
    s_barrier
    """)
    for cb in range(3): k(f"ds_read_b128 {vr(BB+4*cb,4)}, v5 offset:{cb*1024}")
    k("s_waitcnt vmcnt(0) lgkmcnt(0)")
    for cb in range(3):
        for t in range(4): k(f"v_add_f32 v{ACC+4*cb+t}, v{ACC+4*cb+t}, v{BB+4*cb+t}")
        for j in range(2):
            x=XG+2*cb+j
            k(f"v_lshlrev_b32 v8, 16, v{x}\nv_and_b32 v9, 0xffff0000, v{x}")
            k(f"v_fma_f32 v8, v{ACC+4*cb+2*j}, v{XG+8+4*cb+2*j}, v8\nv_fma_f32 v9, v{ACC+4*cb+2*j+1}, v{XG+8+4*cb+2*j+1}, v9")
            k(f"v_cvt_pk_bf16_f32 v{x}, v8, v9")
        k(f"buffer_store_dwordx2 {vr(XG+2*cb,2)}, v6, s[12:15], s31 offen offset:{cb*32}")
    k(f"{k.lab('end')}:\ns_endpgm")
    return k
```

```python
import sys
from common import *
from k0 import k0
from k14 import k1,k4
from k235 import k2,k3,k5
out=sys.argv[1] if len(sys.argv)>1 else 'standalone__dit_block__diffusion.s'
build([k0(),k1(),k2(),k3(),k4(),k5()],out)
```

```python
from common import *
from k0 import k0
from k14 import k1,k4
from k235 import k2,k3,k5
e=K("e_kernel",256,256,0,8); e("s_endpgm")
build([k0(),k1(),k2(),k3(),k4(),k5(),e,e,e,e],'plus4.s')
a=[k0(),k1(),k2(),k3(),k4(),k5()]
build(a+a,'twice.s')
```

```python
MOD=0; UV=0x8000; LSE=0x10000; WQKV_P=0x20000; WO_P=0x100000; FC2_P=0x180000; FC1_P=0x300000
Q_P=0x600000; K_P=0x780000; VT_P=0x900000; O_P=0xB00000; X1_P=0x1100000; G_P=0x1300000; XN_P=0x1900000; WS_END=0x1A80000; AQ=0x5000; FL=0xE000
ACT=0x180000
SZ=dict(x=2*1024*384*2,c=2*384*2,wqkv=384*1152*2,wo=384*384*2,wmod=384*2304*2,fc1=384*1536*2,fc2=1536*384*2,out=2*1024*384*2,dbg=256,ws=WS_END)
KOFF=dict(x=0,c=8,wqkv=16,wo=24,wmod=32,fc1=40,fc2=48,out=56,dbg=64,ws=72)

DIAG=False
class K:
    kidx=0
    def __init__(s,name,grid,block,lds,vgpr,sgpr=96,agpr=0):
        s.name=name; s.grid=grid; s.block=block; s.lds=lds; s.vgpr=vgpr; s.sgpr=sgpr; s.agpr=agpr; s.L=[]; s.nst=1
    def __call__(s,txt):
        for l in txt.strip('\n').split('\n'):
            l=l.strip()
            if l: s.L.append(('' if l.endswith(':') else '    ')+l)
    def st(s,i=None):
        if not DIAG: return
        if i is None: i=s.nst
        s.nst=i+1
        s(f"s_memtime s[94:95]\ns_waitcnt lgkmcnt(0)\ns_mov_b32 s{64+i}, s94")
    def fin(s):
        if not DIAG: return
        idx=int(s.name[1])
        L=["    s_memrealtime s[60:61]","    s_memtime s[94:95]"]+[f"    s_mov_b32 s{64+i}, 0" for i in range(24)]+["    v_readfirstlane_b32 s96, v0","    s_waitcnt lgkmcnt(0)","    s_mov_b32 s64, s94"]
        body=[('    s_branch '+s.lab('dump') if l.strip()=='s_endpgm' else l) for l in s.L]
        D=[s.lab('dump')+':','    s_waitcnt vmcnt(0)','    s_memtime s[94:95]','    s_memrealtime s[62:63]',
           '    s_load_dwordx2 s[88:89], s[0:1], 72','    s_mov_b32 s90, 0x2000000','    s_mov_b32 s91, 0x20000','    s_mov_b64 exec, -1',
           '    s_waitcnt lgkmcnt(0)','    s_mov_b32 s87, s94','    s_lshr_b32 s92, s96, 6',
           '    s_lshl_b32 s93, s2, 3','    s_add_u32 s93, s93, s92','    s_lshl_b32 s93, s93, 7',f'    s_add_u32 s93, s93, {0x1B00000+idx*0x48000:#x}',
           '    v_mov_b32 v0, 0']
        regs=[60,62]+[64+i for i in range(24)]
        for j,r in enumerate(regs):
            D+=[f'    v_mov_b32 v1, s{r}',f'    buffer_store_dword v1, v0, s[88:91], s93 offen offset:{4*j}']
        D+=['    s_endpgm']
        s.L=L+body+D; s.sgpr=100
    def lab(s,n): return f"L_{s.name}_{n}"
    def srds(s,lst):
        for b,r in lst: s(f"s_load_dwordx2 s[{r}:{r+1}], s[0:1], {KOFF[b]}")
        for b,r in lst:
            s(f"s_mov_b32 s{r+2}, {SZ[b]:#x}"); s(f"s_mov_b32 s{r+3}, 0x20000")
    def text(s):
        return f".globl {s.name}\n.p2align 8\n.type {s.name},@function\n{s.name}:\n"+'\n'.join(s.L)+"\n"
    def desc(s):
        acc=(s.vgpr+3)//4*4
        tot=acc+s.agpr if s.agpr else s.vgpr
        return f""".p2align 6
.amdhsa_kernel {s.name}
  .amdhsa_next_free_vgpr {tot}
  .amdhsa_next_free_sgpr {s.sgpr}
  .amdhsa_accum_offset {acc}
  .amdhsa_group_segment_fixed_size 0
  .amdhsa_kernarg_size 80
  .amdhsa_user_sgpr_count 2
  .amdhsa_user_sgpr_kernarg_segment_ptr 1
  .amdhsa_system_sgpr_workgroup_id_x 1
.end_amdhsa_kernel
"""
    def launch(s): return f"; @launch kernel={s.name} grid=({s.grid},1,1) block=({s.block},1,1) lds={s.lds}\n"

def vr(a,n): return f"v[{a}:{a+n-1}]" if n>1 else f"v{a}"

def xreduce(k,regs,tmp,op):
    for sw in ("v_permlane32_swap_b32","v_permlane16_swap_b32"):
        for r,t in zip(regs,tmp): k(f"v_mov_b32 v{t}, v{r}")
        k("s_nop 1")
        for r,t in zip(regs,tmp): k(f"{sw} v{r}, v{t}")
        k("s_nop 1")
        for r,t in zip(regs,tmp): k(f"{op} v{r}, v{r}, v{t}")

def build(kernels,path):
    hdr=open('standalone__dit_block__diffusion.s.ref').read().split('; Override')[0]
    s=hdr+''.join(k.launch() for k in kernels)
    s+='.amdgcn_target "amdgcn-amd-amdhsa--gfx950"\n.text\n'
    seen=set(); uniq=[]
    for k in kernels:
        if k.name not in seen: seen.add(k.name); uniq.append(k)
    for k in uniq: k.fin()
    s+=''.join(k.text() for k in uniq)
    s+='.section .rodata,"a"\n'+''.join(k.desc() for k in uniq)
    open(path,'w').write(s)

def gemm_loop(k, items, breg0, nbuf, mf):
    n=len(items)
    def rd(i):
        a,o=items[i]; k(f"ds_read_b128 {vr(breg0+4*(i%nbuf),4)}, v{a} offset:{o}")
    pre=min(nbuf-1,n)
    for i in range(pre): rd(i)
    issued=pre
    for i in range(n):
        if issued<n:
            rd(issued); issued+=1
        k(f"s_waitcnt lgkmcnt({issued-i-1})")
        mf(i, breg0+4*(i%nbuf))
```

```python
from common import *
from k14 import stats
def k0():
    k=K("k0_kernel",248,256,4096,72)
    k(f"s_cmp_ge_u32 s2, 248\ns_cbranch_scc1 {k.lab('end')}")
    k.srds([('ws',8),('c',12),('wmod',16),('wqkv',20),('wo',24),('fc2',28),('x',32),('fc1',36)])
    k(f"s_cmp_ge_u32 s2, 72\ns_cbranch_scc1 {k.lab('pack')}")
    k("""
    v_and_b32 v1, 3, v0
    v_lshrrev_b32 v2, 2, v0
    s_mov_b32 s3, 4608
    v_mul_lo_u32 v3, v2, s3
    v_lshl_add_u32 v3, v1, 4, v3
    v_lshlrev_b32 v4, 1, v2
    s_lshl_b32 s4, s2, 6
    s_waitcnt lgkmcnt(0)
    """)
    for b in range(2):
        for i in range(6): k(f"buffer_load_ushort v{40+b*6+i}, v4, s[12:15], 0 offen offset:{b*768+i*128}")
    for i in range(6):
        k(f"buffer_load_dwordx4 {vr(8+4*i,4)}, v3, s[16:19], s4 offen")
        if i<5: k(f"s_add_u32 s4, s4, {64*4608}")
    k("s_waitcnt vmcnt(6)")
    for r in range(40,52):
        k(f"v_lshlrev_b32 v{r}, 16, v{r}\nv_mul_f32 v5, 0xbfb8aa3b, v{r}\nv_exp_f32 v5, v5\ns_nop 0\nv_add_f32 v5, 1.0, v5\nv_rcp_f32 v5, v5\ns_nop 0\nv_mul_f32 v{r}, v{r}, v5\nv_cvt_pk_bf16_f32 v{r}, v{r}, v{r}\nv_lshlrev_b32 v{r}, 16, v{r}")
    A=[32,52]
    for i in range(6):
        k(f"s_waitcnt vmcnt({5-i})")
        for j in range(4):
            k(f"v_lshlrev_b32 v5, 16, v{8+4*i+j}\nv_and_b32 v6, 0xffff0000, v{8+4*i+j}")
            for b in range(2):
                if i==0:
                    k(f"v_mul_f32 v{A[b]+2*j}, v5, v{40+b*6}\nv_mul_f32 v{A[b]+2*j+1}, v6, v{40+b*6}")
                else:
                    k(f"v_fmac_f32 v{A[b]+2*j}, v5, v{40+b*6+i}\nv_fmac_f32 v{A[b]+2*j+1}, v6, v{40+b*6+i}")
    regs=[A[b]+j for b in range(2) for j in range(8)]
    for ror in (4,8):
        k("s_nop 1")
        for r in regs: k(f"v_add_f32_dpp v{r}, v{r}, v{r} row_ror:{ror} row_mask:0xf bank_mask:0xf")
    k("""
    v_lshrrev_b32 v5, 4, v0
    v_lshlrev_b32 v5, 8, v5
    v_lshl_add_u32 v5, v1, 6, v5
    v_and_b32 v6, 15, v0
    v_cmp_gt_u32 vcc, 4, v6
    s_and_saveexec_b64 s[6:7], vcc
    ds_write_b128 v5, v[32:35]
    ds_write_b128 v5, v[36:39] offset:16
    ds_write_b128 v5, v[52:55] offset:32
    ds_write_b128 v5, v[56:59] offset:48
    s_mov_b64 exec, s[6:7]
    s_waitcnt lgkmcnt(0)
    s_barrier
    v_readfirstlane_b32 s5, v0
    s_nop 3
    s_cmp_ge_u32 s5, 64
    """)
    k(f"s_cbranch_scc1 {k.lab('end')}")
    k("v_lshlrev_b32 v5, 2, v0")
    for p in range(16): k(f"ds_read_b32 v{8+p}, v5 offset:{p*256}")
    k("s_waitcnt lgkmcnt(0)")
    for p in range(1,16): k(f"v_add_f32 v8, v8, v{8+p}")
    k("""
    v_cvt_pk_bf16_f32 v8, v8, v8
    v_lshlrev_b32 v8, 16, v8
    s_sub_u32 s5, s2, 12
    s_cmp_lt_u32 s5, 12
    s_cselect_b32 s6, 1.0, 0
    s_sub_u32 s5, s2, 48
    s_cmp_lt_u32 s5, 12
    s_cselect_b32 s6, 1.0, s6
    v_add_f32 v8, s6, v8
    v_cvt_pk_bf16_f32 v8, v8, v8
    v_lshlrev_b32 v8, 16, v8
    v_lshrrev_b32 v5, 4, v0
    v_lshlrev_b32 v5, 5, v5
    v_and_b32 v6, 7, v0
    v_lshl_add_u32 v5, v6, 2, v5
    v_bfe_u32 v6, v0, 3, 1
    v_mul_u32_u24 v6, 9216, v6
    v_add_u32 v5, v5, v6
    s_lshl_b32 s4, s2, 7
    buffer_store_dword v8, v5, s[8:11], s4 offen
    v_and_b32 v6, 1, v0
    v_lshlrev_b32 v6, 4, v6
    v_xor_b32 v6, 16, v6
    v_lshrrev_b32 v9, v6, v8
    v_bfe_u32 v6, v0, 3, 1
    v_mul_u32_u24 v6, 6144, v6
    v_sub_u32 v5, v5, v6
    s_add_u32 s4, s4, AQOFF
    s_cmp_ge_u32 s2, 24
    s_cbranch_scc1 LZERO
    s_cmp_lt_u32 s2, 12
    s_cbranch_scc1 LSH
    v_mov_b32 v8, v9
    LSH:
    buffer_store_dword v8, v5, s[8:11], s4 offen
    s_endpgm
    LZERO:
    s_cmp_ge_u32 s2, 32
    s_cbranch_scc1 LEND
    v_mov_b32 v8, 0
    v_mov_b32 v9, 0
    v_mov_b32 v10, 0
    v_mov_b32 v11, 0
    v_lshlrev_b32 v5, 4, v0
    s_sub_u32 s4, s2, 24
    s_lshl_b32 s4, s4, 10
    s_add_u32 s4, s4, FLOFF
    buffer_store_dwordx4 v[8:11], v5, s[8:11], s4 offen
    s_endpgm
    """.replace('AQOFF',hex(AQ)).replace('FLOFF',hex(FL)).replace('LZERO',k.lab('zero')).replace('LSH',k.lab('sh')).replace('LEND',k.lab('end')))
    k(f"{k.lab('pack')}:")
    k("""
    v_lshrrev_b32 v1, 6, v0
    v_and_b32 v2, 15, v0
    v_readfirstlane_b32 s3, v1
    v_bfe_u32 v3, v0, 4, 2
    v_and_b32 v7, 63, v0
    v_lshlrev_b32 v7, 4, v7
    s_sub_u32 s4, s2, 72
    s_lshl_b32 s4, s4, 2
    s_add_u32 s4, s4, s3
    s_waitcnt lgkmcnt(0)
    s_cmp_ge_u32 s4, 128
    """)
    k(f"s_cbranch_scc1 {k.lab('p1')}")
    k(f"s_mul_i32 s5, s4, 12288\nv_mul_u32_u24 v5, 768, v2\nv_lshl_add_u32 v5, v3, 4, v5")
    for s_ in range(12): k(f"buffer_load_dwordx4 {vr(8+4*s_,4)}, v5, s[32:35], s5 offen offset:{s_*64}")
    k(f"s_add_u32 s5, s5, {XN_P:#x}\ns_waitcnt vmcnt(0)")
    stats(k,8,56,60)
    k("v_mul_f32 v56, v56, v57")
    for s_ in range(12):
        for j in range(4):
            t=62+2*j; r=8+4*s_+j
            k(f"v_lshlrev_b32 v{t}, 16, v{r}\nv_and_b32 v{t+1}, 0xffff0000, v{r}")
            k(f"v_fma_f32 v{t}, v{t}, v57, -v56\nv_fma_f32 v{t+1}, v{t+1}, v57, -v56\nv_cvt_pk_bf16_f32 v{r}, v{t}, v{t+1}")
        if s_ and s_%4==0: k("s_add_u32 s5, s5, 4096")
        k(f"buffer_store_dwordx4 {vr(8+4*s_,4)}, v7, s[8:11], s5 offen offset:{(s_%4)*1024}")
    k("s_endpgm")
    k(f"{k.lab('p1')}:\ns_sub_u32 s4, s4, 128\ns_lshl_b32 s5, s4, 11")
    k("buffer_load_dwordx4 v[60:63], v7, s[36:39], s5 offen\nbuffer_load_dwordx4 v[64:67], v7, s[36:39], s5 offen offset:1024")
    k("s_cmp_ge_u32 s4, 216")
    k(f"s_cbranch_scc1 {k.lab('p2')}")
    def path(srd,stride,nq,dst,natural):
        k(f"s_mov_b32 s5, {(2**32+nq-1)//nq}\ns_mul_hi_u32 s5, s4, s5\ns_mul_i32 s6, s5, {nq}\ns_sub_u32 s6, s4, s6")
        k(f"s_mul_i32 s6, s6, {128*stride}\ns_lshl_b32 s5, s5, 5\ns_add_u32 s6, s6, s5")
        k(f"v_mul_u32_u24 v4, {(8 if natural else 4)*stride}, v3\nv_lshl_add_u32 v4, v2, 1, v4")
        for f in range(4):
            for j in range(8):
                jo = j if natural else (j%4)+16*(j//4)
                k(f"s_add_u32 s7, s6, {(32*f+jo)*stride}")
                k(f"buffer_load_ushort v{24+8*f+j}, v4, s[{srd}:{srd+3}], s7 offen")
        k(f"s_lshl_b32 s5, s4, 12\ns_add_u32 s5, s5, {dst:#x}")
        for f in range(4):
            k(f"s_waitcnt vmcnt({24-8*f+f})")
            for j in range(4): k(f"v_lshl_or_b32 v{8+4*f+j}, v{24+8*f+2*j+1}, 16, v{24+8*f+2*j}")
            k(f"buffer_store_dwordx4 {vr(8+4*f,4)}, v7, s[8:11], s5 offen offset:{f*1024}")
        k("s_endpgm")
    path(20,2304,3,WQKV_P,True)
    k(f"{k.lab('p2')}:\ns_sub_u32 s4, s4, 216\ns_cmp_ge_u32 s4, 72\ns_cbranch_scc1 {k.lab('p3')}")
    path(24,768,3,WO_P,True)
    k(f"{k.lab('p3')}:\ns_sub_u32 s4, s4, 72")
    path(28,768,12,FC2_P,False)
    k(f"{k.lab('end')}:\ns_endpgm")
    return k
```

```python
from common import *
import math, struct
def f2u(x): return struct.unpack('<I',struct.pack('<f',x))[0]

def stats(k, A, S, T):
    k("s_mov_b32 s40, 0x3f803f80")
    for i in range(48):
        c0 = f"v{S+(i%2)}" if i>=2 else "0"
        c1 = f"v{S+2+(i%2)}" if i>=2 else "0"
        k(f"v_dot2_f32_bf16 v{S+(i%2)}, v{A+i}, s40, {c0}")
        k(f"v_dot2_f32_bf16 v{S+2+(i%2)}, v{A+i}, v{A+i}, {c1}")
    stats_fin(k,S,T)
def stats_fin(k,S,T):
    k(f"s_nop 2\nv_add_f32 v{S}, v{S}, v{S+1}\nv_add_f32 v{S+1}, v{S+2}, v{S+3}")
    xreduce(k,[S,S+1],[T,T+1],"v_add_f32")
    k(f"""
    v_mul_f32 v{S}, {f2u(1/384):#x}, v{S}
    v_mul_f32 v{S+1}, {f2u(1/384):#x}, v{S+1}
    v_fma_f32 v{S+1}, -v{S}, v{S}, v{S+1}
    v_max_f32 v{S+1}, 0, v{S+1}
    v_add_f32 v{S+1}, {f2u(1e-5):#x}, v{S+1}
    v_rsq_f32 v{S+1}, v{S+1}
    s_nop 0
    """)

def bdma(k, n, sm0, soff, voff):
    for i in range(n):
        if i%4==0:
            if i: k(f"s_add_u32 s{sm0}, s{sm0}, 4096\ns_add_u32 s{soff}, s{soff}, 4096")
            k(f"s_mov_b32 m0, s{sm0}\ns_nop 0")
        k(f"buffer_load_dwordx4 v{voff}, s[8:11], s{soff} offen offset:{(i%4)*1024} lds")

def k1():
    k=K("k1_kernel",216,512,73728+3072,128)
    k(f"s_cmp_ge_u32 s2, 216\ns_cbranch_scc1 {k.lab('end')}")
    k.srds([('ws',8),('x',12),('fc1',16)])
    k("""
    v_lshrrev_b32 v1, 6, v0
    v_and_b32 v2, 15, v0
    v_readfirstlane_b32 s3, v1
    v_bfe_u32 v3, v0, 4, 2
    v_and_b32 v4, 63, v0
    v_lshlrev_b32 v4, 4, v4
    s_cmp_ge_u32 s2, 192
    """)
    k(f"s_cbranch_scc1 {k.lab('side')}")
    A=8; ACC=56; BB=80; S=112
    k(f"""
    s_and_b32 s4, s2, 7
    s_lshr_b32 s5, s2, 3
    s_lshr_b32 s20, s4, 1
    s_lshl_b32 s20, s20, 2
    s_and_b32 s6, s5, 3
    s_add_u32 s20, s20, s6
    s_and_b32 s21, s4, 1
    s_mul_i32 s21, s21, 6
    s_lshr_b32 s6, s5, 2
    s_add_u32 s21, s21, s6
    s_lshl_b32 s22, s20, 3
    s_add_u32 s22, s22, s3
    s_mul_i32 s23, s22, {16*768}
    v_mul_u32_u24 v5, 768, v2
    v_lshl_add_u32 v5, v3, 4, v5
    s_waitcnt lgkmcnt(0)
    """)
    for s in range(12): k(f"buffer_load_dwordx4 {vr(A+4*s,4)}, v5, s[12:15], s23 offen offset:{s*64}")
    k(f"""
    s_min_u32 s24, s3, 2
    s_lshl_b32 s24, s24, 10
    s_lshr_b32 s25, s20, 3
    s_mul_i32 s26, s25, 9216
    s_add_u32 s26, s26, s24
    s_add_u32 s24, s24, 73728
    s_mov_b32 m0, s24
    s_mul_i32 s27, s3, 9216
    buffer_load_dwordx4 v4, s[8:11], s26 offen lds
    s_mul_i32 s28, s21, 73728
    s_add_u32 s28, s28, s27
    s_add_u32 s28, s28, {WQKV_P:#x}
    """)
    bdma(k,9,27,28,4)
    k.st(); k("s_waitcnt vmcnt(10)"); k.st()
    stats(k,A,S,S+4)
    k(f"v_mul_f32 v{S}, v{S}, v{S+1}\nv_lshlrev_b32 v6, 5, v3\nv_add_u32 v6, 73728, v6\ns_waitcnt vmcnt(9)\ns_barrier")
    P=BB
    def prd(s):
        b=P+16*(s%2)
        for q in range(2):
            k(f"ds_read_b128 {vr(b+4*q,4)}, v6 offset:{s*128+16*q}")
            k(f"ds_read_b128 {vr(b+8+4*q,4)}, v6 offset:{1536+s*128+16*q}")
    k.st(); prd(0)
    for s in range(12):
        if s<11: prd(s+1)
        b=P+16*(s%2)
        for j in range(4):
            t=ACC+2*j
            k(f"v_lshlrev_b32 v{t}, 16, v{A+4*s+j}\nv_and_b32 v{t+1}, 0xffff0000, v{A+4*s+j}")
            k(f"v_fma_f32 v{t}, v{t}, v{S+1}, -v{S}\nv_fma_f32 v{t+1}, v{t+1}, v{S+1}, -v{S}")
        k(f"s_waitcnt lgkmcnt({4 if s<11 else 0})")
        for j in range(4):
            t=ACC+2*j
            k(f"v_fma_f32 v{t}, v{t}, v{b+8+2*j}, v{b+2*j}\nv_fma_f32 v{t+1}, v{t+1}, v{b+8+2*j+1}, v{b+2*j+1}")
        for j in range(4):
            t=ACC+2*j
            k(f"v_cvt_pk_bf16_f32 v{A+4*s+j}, v{t}, v{t+1}")
    k.st(); k("s_waitcnt vmcnt(0)\ns_barrier"); k.st()
    k(f"v_add_u32 v7, 36864, v4\ns_cmp_ge_u32 s21, 8\ns_cbranch_scc1 {k.lab('v')}")
    items=[((4 if f<36 else 7),(f%36)*1024) for f in range(72)]
    def mfq(i,b):
        cb,s=divmod(i,12); c=vr(ACC+4*cb,4)
        k(f"v_mfma_f32_16x16x32_bf16 {c}, {vr(b,4)}, {vr(A+4*s,4)}, {c if s else 0}")
    gemm_loop(k,items,BB,8,mfq); k.st(6)
    qs=f2u(192**-0.5*math.log2(math.e))
    k(f"""
    s_cmp_lt_u32 s21, 4
    s_cselect_b32 s30, {qs:#x}, 1.0
    s_lshr_b32 s31, s21, 2
    s_mul_i32 s31, s31, {ACT:#x}
    s_and_b32 s32, s21, 3
    s_mul_i32 s32, s32, 3
    s_mul_i32 s33, s22, 12
    s_add_u32 s32, s32, s33
    s_lshl_b32 s32, s32, 10
    s_add_u32 s31, s31, s32
    s_add_u32 s31, s31, {Q_P:#x}
    """)
    for i in range(3):
        for j in range(8): k(f"v_mul_f32 v{ACC+8*i+j}, s30, v{ACC+8*i+j}")
        for j in range(4): k(f"v_cvt_pk_bf16_f32 v{BB+4*i+j}, v{ACC+8*i+2*j}, v{ACC+8*i+2*j+1}")
        k(f"buffer_store_dwordx4 {vr(BB+4*i,4)}, v4, s[8:11], s31 offen offset:{i*1024}")
    k("s_endpgm")
    k(f"{k.lab('v')}:")
    def mfv(i,b):
        cb,s=divmod(i,12); c=vr(ACC+4*cb,4)
        k(f"v_mfma_f32_16x16x32_bf16 {c}, {vr(A+4*s,4)}, {vr(b,4)}, {c if s else 0}")
    gemm_loop(k,items,BB,8,mfv); k.st(6)
    k(f"""
    s_sub_u32 s31, s21, 8
    s_mul_i32 s31, s31, 6
    s_mul_i32 s32, s25, 24
    s_add_u32 s31, s31, s32
    s_lshl_b32 s31, s31, 5
    s_and_b32 s32, s22, 63
    s_lshr_b32 s32, s32, 1
    s_add_u32 s31, s31, s32
    s_lshl_b32 s31, s31, 10
    s_and_b32 s32, s3, 1
    s_lshl_b32 s32, s32, 3
    s_add_u32 s31, s31, s32
    s_add_u32 s31, s31, {VT_P:#x}
    """)
    for cb in range(6):
        for j in range(2): k(f"v_cvt_pk_bf16_f32 v{BB+2*cb+j}, v{ACC+4*cb+2*j}, v{ACC+4*cb+2*j+1}")
        k(f"buffer_store_dwordx2 {vr(BB+2*cb,2)}, v4, s[8:11], s31 offen")
        if cb<5: k("s_add_u32 s31, s31, 32768")
    k("s_endpgm")
    k(f"{k.lab('side')}:")
    k(f"""
    s_sub_u32 s4, s2, 192
    s_lshl_b32 s4, s4, 3
    s_add_u32 s4, s4, s3
    s_and_b32 s5, s4, 1
    s_lshr_b32 s4, s4, 1
    s_lshl_b32 s6, s4, 5
    v_mul_u32_u24 v5, {4*3072}, v3
    v_lshl_add_u32 v5, v2, 1, v5
    v_lshlrev_b32 v6, 4, v3
    s_mul_i32 s20, s5, 9216
    s_add_u32 s20, s20, {1152*4}
    s_mul_i32 s21, s5, 0x120000
    s_mul_i32 s22, s4, 12288
    s_add_u32 s21, s21, s22
    s_add_u32 s21, s21, {FC1_P:#x}
    s_mov_b32 s40, 0x3f803f80
    v_mov_b32 v8, 0
    v_mov_b32 v9, 0
    s_waitcnt lgkmcnt(0)
    """)
    W=16; PA=48; O=112
    for ch in range(3):
        for f in range(4):
            s=ch*4+f
            for j in range(8):
                jo=(j%4)+16*(j//4)
                k(f"s_add_u32 s7, s6, {(32*s+jo)*3072}")
                k(f"buffer_load_ushort v{W+8*f+j}, v5, s[16:19], s7 offen")
            for q in range(2):
                k(f"buffer_load_dwordx4 {vr(PA+16*f+4*q,4)}, v6, s[8:11], s20 offen offset:{s*128+64*q}")
                k(f"buffer_load_dwordx4 {vr(PA+16*f+8+4*q,4)}, v6, s[8:11], s20 offen offset:{1536+s*128+64*q}")
        for f in range(4):
            s=ch*4+f
            k(f"s_waitcnt vmcnt({36-12*f+f})")
            for j in range(8):
                w=W+8*f+j
                k(f"v_lshlrev_b32 v{w}, 16, v{w}\nv_fmac_f32 v9, v{w}, v{PA+16*f+j}\nv_mul_f32 v{w}, v{w}, v{PA+16*f+8+j}")
            for j in range(4): k(f"v_cvt_pk_bf16_f32 v{O+4*f+j}, v{W+8*f+2*j}, v{W+8*f+2*j+1}")
            for j in range(4): k(f"v_dot2_f32_bf16 v8, v{O+4*f+j}, s40, v8")
            k(f"buffer_store_dwordx4 {vr(O+4*f,4)}, v4, s[8:11], s21 offen offset:{f*1024}")
        k("s_add_u32 s21, s21, 4096")
        if ch<2: k("s_waitcnt vmcnt(0)")
    k("s_nop 2")
    xreduce(k,[8,9],[10,11],"v_add_f32")
    k(f"""
    s_mul_i32 s20, s5, 12288
    s_lshl_b32 s6, s4, 6
    s_add_u32 s20, s20, s6
    s_add_u32 s20, s20, {UV:#x}
    s_add_u32 s21, s20, 6144
    v_lshlrev_b32 v5, 2, v2
    buffer_store_dword v8, v5, s[8:11], s20 offen
    buffer_store_dword v9, v5, s[8:11], s21 offen
    """)
    k(f"{k.lab('end')}:\ns_endpgm")
    return k

def k4():
    k=K("k4_kernel",256,512,73728,168)
    k(f"s_cmp_ge_u32 s2, 256\ns_cbranch_scc1 {k.lab('end')}")
    k.srds([('ws',8)])
    A=8; ACC=56; BB=80; S=112; U=120
    k(f"""
    v_lshrrev_b32 v1, 6, v0
    v_and_b32 v2, 15, v0
    v_readfirstlane_b32 s3, v1
    v_bfe_u32 v3, v0, 4, 2
    v_and_b32 v4, 63, v0
    v_lshlrev_b32 v4, 4, v4
    v_lshlrev_b32 v6, 4, v3
    s_and_b32 s4, s2, 7
    s_lshr_b32 s5, s2, 3
    s_lshr_b32 s20, s4, 1
    s_lshl_b32 s20, s20, 2
    s_and_b32 s6, s5, 3
    s_add_u32 s20, s20, s6
    s_and_b32 s21, s4, 1
    s_lshl_b32 s21, s21, 3
    s_lshr_b32 s6, s5, 2
    s_add_u32 s21, s21, s6
    s_lshl_b32 s22, s20, 3
    s_add_u32 s22, s22, s3
    s_mul_i32 s23, s22, 12288
    s_add_u32 s23, s23, {X1_P:#x}
    s_lshr_b32 s25, s20, 3
    s_mul_i32 s27, s3, 9216
    s_mul_i32 s28, s21, 73728
    s_add_u32 s28, s28, s27
    s_mul_i32 s29, s25, 0x120000
    s_add_u32 s28, s28, s29
    s_add_u32 s28, s28, {FC1_P:#x}
    s_mul_i32 s30, s25, 12288
    s_mul_i32 s31, s21, 384
    s_add_u32 s30, s30, s31
    s_add_u32 s30, s30, {UV:#x}
    s_add_u32 s31, s30, 6144
    s_waitcnt lgkmcnt(0)
    """)
    for s in range(12):
        if s and s%4==0: k("s_add_u32 s23, s23, 4096")
        k(f"buffer_load_dwordx4 {vr(A+4*s,4)}, v4, s[8:11], s23 offen offset:{(s%4)*1024}")
    bdma(k,9,27,28,4)
    for cb in range(6):
        k(f"buffer_load_dwordx4 {vr(U+4*cb,4)}, v6, s[8:11], s30 offen offset:{cb*64}")
        k(f"buffer_load_dwordx4 {vr(U+24+4*cb,4)}, v6, s[8:11], s31 offen offset:{cb*64}")
    k.st(); k("s_waitcnt vmcnt(21)"); k.st()
    stats(k,A,S,S+4); k.st()
    k(f"""
    v_add_u32 v7, 36864, v4
    s_mul_i32 s32, s22, 48
    s_mul_i32 s33, s21, 3
    s_add_u32 s32, s32, s33
    s_lshl_b32 s32, s32, 10
    s_add_u32 s32, s32, {G_P:#x}
    s_mov_b32 s34, {f2u(-2*math.sqrt(2/math.pi)*math.log2(math.e)*0.044715):#x}
    v_mov_b32 v5, {f2u(-2*math.sqrt(2/math.pi)*math.log2(math.e)):#x}
    s_waitcnt vmcnt(0)
    s_barrier
    """)
    k.st(5)
    items=[((4 if f<36 else 7),(f%36)*1024) for f in range(72)]
    def mfq(i,b):
        cb,s=divmod(i,12); c=vr(ACC+4*cb,4)
        k(f"v_mfma_f32_16x16x32_bf16 {c}, {vr(b,4)}, {vr(A+4*s,4)}, {c if s else 0}")
    gemm_loop(k,items,BB,8,mfq); k.st(6)
    k("s_nop 3")
    for i in range(3):
        R=[ACC+8*i+j for j in range(8)]; T=[BB+16+j for j in range(8)]
        for j in range(8): k(f"v_fma_f32 v{R[j]}, -v{S}, v{U+8*i+j}, v{R[j]}")
        for j in range(8): k(f"v_fma_f32 v{R[j]}, v{R[j]}, v{S+1}, v{U+24+8*i+j}")
        for j in range(8): k(f"v_mul_f32 v{T[j]}, v{R[j]}, v{R[j]}")
        for j in range(8): k(f"v_fma_f32 v{T[j]}, v{T[j]}, s34, v5")
        for j in range(8): k(f"v_mul_f32 v{T[j]}, v{T[j]}, v{R[j]}")
        for j in range(8): k(f"v_exp_f32 v{T[j]}, v{T[j]}")
        for j in range(8): k(f"v_add_f32 v{T[j]}, 1.0, v{T[j]}")
        for j in range(8): k(f"v_rcp_f32 v{T[j]}, v{T[j]}")
        for j in range(8): k(f"v_mul_f32 v{R[j]}, v{R[j]}, v{T[j]}")
        for j in range(4): k(f"v_cvt_pk_bf16_f32 v{BB+4*i+j}, v{R[2*j]}, v{R[2*j+1]}")
        k(f"buffer_store_dwordx4 {vr(BB+4*i,4)}, v4, s[8:11], s32 offen offset:{i*1024}")
    k(f"{k.lab('end')}:\ns_endpgm")
    return k
```

```python
from common import *
from k14 import f2u, stats, bdma
import math
SC=" sc1"
def mf(k,c,a,b,first): k(f"v_mfma_f32_16x16x32_bf16 {vr(c,4)}, {vr(a,4)}, {vr(b,4)}, {0 if first else vr(c,4)}")
def ld(k,dst,n,voff,soff,off=0,srd=8,sc=""):
    w={1:"dword",2:"dwordx2",4:"dwordx4"}[n]
    k(f"buffer_load_{w} {vr(dst,n)}, v{voff}, s[{srd}:{srd+3}], s{soff} offen"+(f" offset:{off}" if off else "")+sc)
def dma(k,soff,off=0,sc=""): k(f"buffer_load_dwordx4 v4, s[8:11], s{soff} offen"+(f" offset:{off}" if off else "")+sc+" lds")
def st4(k,src,voff,soff,off=0): k(f"buffer_store_dwordx4 {vr(src,4)}, v{voff}, s[8:11], s{soff} offen"+(f" offset:{off}" if off else "")+SC)

def signal(k,name,soff,n=0):
    k(f"s_waitcnt vmcnt({n})\ns_barrier\ns_cmp_lg_u32 s3, 0\ns_cbranch_scc1 {k.lab('sg'+name)}")
    k(f"v_mov_b32 v5, 0\nv_mov_b32 v6, 1\ns_add_u32 s{soff}, s{soff}, {FL:#x}\ns_mov_b64 exec, 1\nbuffer_store_dword v6, v5, s[8:11], s{soff} offen sc1\ns_mov_b64 exec, -1")
    k(f"{k.lab('sg'+name)}:")
def poll(k,name,setup):
    k(f"s_cmp_lg_u32 s3, 7\ns_cbranch_scc1 {k.lab('pd'+name)}")
    k(setup)
    k(f"s_mov_b32 s6, {FL:#x}\ns_mov_b32 s7, 0\n{k.lab('pl'+name)}:")
    k(f"buffer_load_dword v6, v5, s[8:11], s6 offen sc1\ns_waitcnt vmcnt(0)\nv_cmp_eq_u32 vcc, 0, v6\ns_add_u32 s7, s7, 1\ns_cmp_ge_u32 s7, 0x10000\ns_cbranch_scc1 {k.lab('pd'+name)}\ns_nop 2")
    k(f"s_cbranch_vccnz {k.lab('pl'+name)}\n{k.lab('pd'+name)}:\ns_barrier")
def swap_pack(k,X,Y,D):
    k(f"v_cvt_pk_bf16_f32 v{D}, v{X}, v{X+1}\nv_cvt_pk_bf16_f32 v{D+1}, v{X+2}, v{X+3}\nv_cvt_pk_bf16_f32 v{D+2}, v{Y}, v{Y+1}\nv_cvt_pk_bf16_f32 v{D+3}, v{Y+2}, v{Y+3}")
    k(f"s_nop 1\nv_permlane16_swap_b32 v{D}, v{D+2}\nv_permlane16_swap_b32 v{D+1}, v{D+3}\ns_nop 0")

A=8; ACC=104; BB=128; S=160; U=168; WB=200; XG=248

def p1(k):
    k(f"s_cmp_ge_u32 s2, 192\ns_cbranch_scc1 {k.lab('side')}")
    k(f"""
    s_lshr_b32 s20, s4, 1
    s_lshl_b32 s20, s20, 2
    s_and_b32 s6, s5, 3
    s_add_u32 s20, s20, s6
    s_and_b32 s21, s4, 1
    s_mul_i32 s21, s21, 6
    s_lshr_b32 s6, s5, 2
    s_add_u32 s21, s21, s6
    s_lshl_b32 s22, s20, 3
    s_add_u32 s22, s22, s3
    s_mul_i32 s23, s22, 12288
    s_add_u32 s23, s23, {XN_P:#x}
    s_min_u32 s24, s3, 2
    s_lshl_b32 s24, s24, 10
    s_lshr_b32 s25, s20, 3
    s_mul_i32 s26, s25, 3072
    s_add_u32 s26, s26, s24
    s_add_u32 s26, s26, {AQ:#x}
    s_add_u32 s24, s24, 73728
    s_mov_b32 m0, s24
    s_mul_i32 s27, s3, 3072
    s_mul_i32 s28, s21, 73728
    s_add_u32 s28, s28, s27
    s_add_u32 s28, s28, {WQKV_P:#x}
    v_lshlrev_b32 v6, 5, v3
    v_add_u32 v6, 73728, v6
    v_add_u32 v7, 36864, v4
    s_waitcnt lgkmcnt(0)
    """)
    dma(k,26)
    for s in range(12):
        if s and s%4==0: k("s_add_u32 s23, s23, 4096")
        ld(k,A+4*s,4,4,23,(s%4)*1024)
    k("s_waitcnt vmcnt(12)\ns_barrier")
    for c in range(3):
        k(f"s_mov_b32 m0, s27\ns_add_u32 s27, s27, 24576")
        for i in range(3): dma(k,28,i*1024)
        k("s_add_u32 s28, s28, 24576")
    k.st()
    P=BB
    def prd(s):
        b=P+16*(s%2)
        for q in range(2):
            k(f"ds_read_b128 {vr(b+4*q,4)}, v6 offset:{s*128+16*q}\nds_read_b128 {vr(b+8+4*q,4)}, v6 offset:{1536+s*128+16*q}")
    prd(0)
    for s in range(12):
        if s<11: prd(s+1)
        b=P+16*(s%2)
        k(f"s_waitcnt vmcnt({20-s}) lgkmcnt({4 if s<11 else 0})")
        for j in range(8): k(f"v_dot2_f32_bf16 v{ACC+j}, v{A+4*s+j//2}, v{b+8+j}, v{b+j}")
        for j in range(4): k(f"v_cvt_pk_bf16_f32 v{A+4*s+j}, v{ACC+2*j}, v{ACC+2*j+1}")
    k.st()
    qs=f2u(192**-0.5*math.log2(math.e))
    k(f"""
    s_cmp_lt_u32 s21, 4
    s_cselect_b32 s30, {qs:#x}, 1.0
    s_cselect_b64 vcc, -1, 0
    s_cselect_b32 s33, -1, -2
    s_and_b32 s33, s22, s33
    s_mul_i32 s33, s33, 12
    s_lshr_b32 s31, s21, 2
    s_mul_i32 s31, s31, {ACT:#x}
    s_and_b32 s32, s21, 3
    s_mul_i32 s32, s32, 3
    s_add_u32 s32, s32, s33
    s_lshl_b32 s32, s32, 10
    s_add_u32 s31, s31, s32
    s_add_u32 s31, s31, {Q_P:#x}
    s_and_b32 s34, s3, 1
    v_bfe_u32 v5, v2, 2, 1
    v_mul_u32_u24 v5, 12288, v5
    v_lshl_add_u32 v5, v3, 8, v5
    v_lshrrev_b32 v6, 3, v2
    v_lshl_add_u32 v5, v6, 6, v5
    v_and_b32 v6, 3, v2
    v_lshl_add_u32 v5, v6, 4, v5
    s_lshl_b32 s6, s34, 7
    v_add_u32 v5, s6, v5
    v_cndmask_b32 v5, v5, v4, vcc
    s_lshl_b32 s35, s20, 6
    s_lshl_b32 s6, s21, 2
    s_add_u32 s35, s35, s6
    s_cmp_ge_u32 s21, 8
    s_cbranch_scc1 {k.lab('v')}
    """)
    def chunks(isv):
        for c in range(3):
            k(f"s_waitcnt vmcnt({[6,4,2][c]})\ns_barrier")
            items=[((4 if f<36 else 7),(f%36)*1024) for s in range(12) for f in (24*c+s,24*c+12+s)]
            def m(i,b):
                s,cb=divmod(i,2)
                if isv: mf(k,ACC+8*(c%2)+4*cb,A+4*s,b,s==0)
                else: mf(k,ACC+8*(c%2)+4*cb,b,A+4*s,s==0)
            gemm_loop(k,items,BB,8,m)
            R=ACC+8*(c%2); D=S+4*(c%2)
            k("s_nop 7")
            if isv:
                swap_pack(k,R,R+4,D); st4(k,D,5,31); k("s_add_u32 s31, s31, 65536")
            else:
                for j in range(8): k(f"v_mul_f32 v{R+j}, s30, v{R+j}")
                for j in range(4): k(f"v_cvt_pk_bf16_f32 v{D+j}, v{R+2*j}, v{R+2*j+1}")
                st4(k,D,5,31,c*1024)
    chunks(False)
    k(f"s_branch {k.lab('p1e')}\n{k.lab('v')}:")
    k(f"""
    s_sub_u32 s31, s21, 8
    s_mul_i32 s31, s31, 6
    s_mul_i32 s32, s25, 24
    s_add_u32 s31, s31, s32
    s_lshl_b32 s31, s31, 5
    s_and_b32 s32, s22, 63
    s_lshr_b32 s32, s32, 1
    s_add_u32 s31, s31, s32
    s_lshl_b32 s31, s31, 10
    s_lshl_b32 s32, s34, 9
    s_add_u32 s31, s31, s32
    s_add_u32 s31, s31, {VT_P:#x}
    v_and_b32 v5, 1, v3
    v_lshlrev_b32 v5, 15, v5
    v_lshrrev_b32 v6, 1, v3
    v_lshl_add_u32 v5, v6, 8, v5
    v_lshl_add_u32 v5, v2, 4, v5
    """)
    chunks(True)
    k(f"s_branch {k.lab('p1e')}")
    k(f"{k.lab('side')}:\ns_waitcnt lgkmcnt(0)\ns_cmp_ge_u32 s2, 216\ns_cbranch_scc1 {k.lab('p1x')}")
    k(f"""
    s_sub_u32 s35, s2, 192
    s_lshl_b32 s24, s35, 3
    s_lshl_b32 s35, s35, 2
    s_add_u32 s35, s35, 1024
    s_add_u32 s24, s24, s3
    s_and_b32 s25, s24, 1
    s_lshr_b32 s24, s24, 1
    s_lshl_b32 s26, s24, 5
    v_mul_u32_u24 v5, {8*3072}, v3
    v_lshl_add_u32 v5, v2, 1, v5
    v_lshlrev_b32 v6, 5, v3
    s_mul_i32 s20, s25, 9216
    s_add_u32 s20, s20, {1152*4}
    s_mul_i32 s21, s25, 0x120000
    s_mul_i32 s22, s24, 12288
    s_add_u32 s21, s21, s22
    s_add_u32 s21, s21, {FC1_P:#x}
    s_mov_b32 s40, 0x3f803f80
    v_mov_b32 v8, 0
    v_mov_b32 v9, 0
    """)
    W=16; PA=48; O=112
    for ch in range(3):
        for f in range(4):
            s=ch*4+f
            for j in range(8):
                k(f"s_add_u32 s7, s26, {(32*s+j)*3072}\nbuffer_load_ushort v{W+8*f+j}, v5, s[16:19], s7 offen")
            for q in range(2):
                ld(k,PA+16*f+4*q,4,6,20,s*128+16*q); ld(k,PA+16*f+8+4*q,4,6,20,1536+s*128+16*q)
        for f in range(4):
            k(f"s_waitcnt vmcnt({36-12*f+f})")
            for j in range(8):
                w=W+8*f+j
                k(f"v_lshlrev_b32 v{w}, 16, v{w}\nv_fmac_f32 v9, v{w}, v{PA+16*f+j}\nv_mul_f32 v{w}, v{w}, v{PA+16*f+8+j}")
            for j in range(4): k(f"v_cvt_pk_bf16_f32 v{O+4*f+j}, v{W+8*f+2*j}, v{W+8*f+2*j+1}")
            for j in range(4): k(f"v_dot2_f32_bf16 v8, v{O+4*f+j}, s40, v8")
            st4(k,O+4*f,4,21,f*1024)
        k("s_add_u32 s21, s21, 4096")
        if ch<2: k("s_waitcnt vmcnt(0)")
    k("s_nop 2")
    xreduce(k,[8,9],[10,11],"v_add_f32")
    k(f"""
    s_mul_i32 s20, s25, 12288
    s_lshl_b32 s6, s24, 6
    s_add_u32 s20, s20, s6
    s_add_u32 s20, s20, {UV:#x}
    s_add_u32 s21, s20, 6144
    v_lshlrev_b32 v5, 2, v2
    buffer_store_dword v8, v5, s[8:11], s20 offen sc1
    buffer_store_dword v9, v5, s[8:11], s21 offen sc1
    """)
    k(f"{k.lab('p1e')}:"); k.st(3)
    signal(k,'1',35)
    k(f"{k.lab('p1x')}:"); k.st(4)

def p3setup(k):
    k(f"""
    s_lshl_b32 s48, s4, 3
    s_and_b32 s6, s5, 7
    s_add_u32 s48, s48, s6
    s_lshr_b32 s49, s5, 3
    s_mul_i32 s50, s49, 6
    s_add_u32 s50, s50, s3
    s_cmp_ge_u32 s3, 6
    s_cbranch_scc1 {k.lab('p3s')}
    s_mul_i32 s28, s50, 12288
    s_add_u32 s28, s28, {WO_P:#x}
    v_mul_u32_u24 v6, 768, v2
    v_lshl_add_u32 v6, v3, 3, v6
    s_mul_i32 s29, s48, {32*768}
    s_lshl_b32 s6, s50, 5
    s_add_u32 s29, s29, s6
    s_add_u32 s30, s29, {16*768}
    s_lshr_b32 s6, s48, 5
    s_mul_i32 s31, s6, 9216
    s_lshl_b32 s6, s50, 6
    s_add_u32 s31, s31, s6
    s_add_u32 s31, s31, {768*4}
    v_lshlrev_b32 v7, 4, v3
    """)
    for s in range(12):
        if s and s%4==0: k("s_add_u32 s28, s28, 4096")
        ld(k,WB+4*s,4,4,28,(s%4)*1024)
    ld(k,XG,2,6,29,srd=12); ld(k,XG+2,2,6,30,srd=12); ld(k,XG+4,4,7,31)
    k(f"{k.lab('p3s')}:")

def p2(k):
    QL=0; PL=24576; VL=57344; ML=155648; SL=157696
    KF=8; SA=56; B2=88; T=120
    k(f"""
    s_lshr_b32 s20, s4, 2
    s_bfe_u32 s21, s4, 0x10001
    s_and_b32 s22, s4, 1
    s_lshl_b32 s22, s22, 1
    s_and_b32 s6, s5, 1
    s_add_u32 s22, s22, s6
    s_lshr_b32 s23, s5, 1
    s_lshl_b32 s24, s20, 6
    s_lshl_b32 s6, s23, 2
    s_add_u32 s24, s24, s6
    s_lshr_b32 s6, s3, 1
    s_add_u32 s25, s24, s6
    s_mul_i32 s25, s25, 12
    s_mul_i32 s26, s21, 6
    s_add_u32 s25, s25, s26
    s_and_b32 s6, s3, 1
    s_mul_i32 s6, s6, 3
    s_add_u32 s25, s25, s6
    s_lshl_b32 s25, s25, 10
    s_add_u32 s25, s25, {Q_P:#x}
    s_lshl_b32 s27, s20, 6
    s_lshl_b32 s6, s22, 4
    s_add_u32 s27, s27, s6
    s_lshl_b32 s6, s3, 1
    s_add_u32 s27, s27, s6
    s_mul_i32 s27, s27, 12
    s_add_u32 s27, s27, s26
    s_lshl_b32 s27, s27, 10
    s_add_u32 s27, s27, {K_P:#x}
    s_add_u32 s36, s27, 12288
    s_mul_i32 s28, s20, 24
    s_mul_i32 s6, s21, 12
    s_add_u32 s28, s28, s6
    s_lshl_b32 s28, s28, 5
    s_lshl_b32 s6, s22, 3
    s_add_u32 s28, s28, s6
    s_add_u32 s28, s28, s3
    s_lshl_b32 s28, s28, 10
    s_add_u32 s28, s28, {VT_P:#x}
    s_lshl_b32 s29, s3, 10
    s_add_u32 s29, s29, {VL}
    """)
    poll(k,'2',f"""
    v_bfe_u32 v6, v0, 2, 2
    v_min_u32 v6, 2, v6
    v_bfe_u32 v7, v0, 1, 1
    s_lshl_b32 s6, s22, 1
    v_add_u32 v7, s6, v7
    s_lshr_b32 s6, s23, 1
    v_mov_b32 v5, s6
    v_cmp_eq_u32 vcc, 0, v6
    s_lshl_b32 s6, s20, 9
    s_lshl_b32 s7, s21, 3
    v_cndmask_b32 v7, v7, v5, vcc
    s_add_u32 s6, s6, s7
    v_lshlrev_b32 v7, 6, v7
    v_lshl_add_u32 v7, v6, 4, v7
    v_and_b32 v6, 1, v0
    v_lshl_add_u32 v7, v6, 2, v7
    v_add_u32 v5, s6, v7
    """)
    k.st()
    k("s_mul_i32 s6, s3, 3072\ns_mov_b32 m0, s6\ns_nop 0")
    for i in range(3): dma(k,25,i*1024,SC)
    for s in range(6):
        if s==4: k("s_add_u32 s27, s27, 4096\ns_add_u32 s36, s36, 4096")
        for kb in range(2): ld(k,KF+24*kb+4*s,4,4,(27,36)[kb],(s%4)*1024,sc=SC)
    k("s_waitcnt vmcnt(12)\ns_barrier"); k.st()
    items=[(4,QL+(qb*6+s)*1024) for s in range(6) for qb in range(4)]
    def mf1(i,b):
        s,qb=divmod(i,4)
        if qb==0:
            k("s_waitcnt vmcnt(10)")
            for t in range(2):
                k(f"s_mov_b32 m0, s29\ns_add_u32 s29, s29, 8192"); dma(k,28,0,SC); k("s_add_u32 s28, s28, 32768")
        for kb in range(2): mf(k,SA+8*qb+4*kb,KF+24*kb+4*s,b,s==0)
    gemm_loop(k,items,B2,8,mf1); k.st()
    k(f"""
    v_and_b32 v5, 63, v0
    v_lshlrev_b32 v5, 5, v5
    v_lshl_add_u32 v5, v1, 2, v5
    v_add_u32 v5, {ML}, v5
    v_lshlrev_b32 v6, 5, v2
    v_add_u32 v6, {ML}, v6
    s_lshl_b32 s6, s3, 10
    s_add_u32 s6, s6, {PL}
    v_add_u32 v7, s6, v4
    """)
    M=KF
    def max8(m,r): k(f"v_max3_f32 v{m}, v{r}, v{r+1}, v{r+2}\nv_max3_f32 v{m}, v{m}, v{r+3}, v{r+4}\nv_max3_f32 v{m}, v{m}, v{r+5}, v{r+6}\nv_max_f32 v{m}, v{m}, v{r+7}")
    for qb in range(4): max8(M+qb,SA+8*qb)
    def treduce(op,addr_off):
        k(f"s_nop 1\nv_permlane32_swap_b32 v{M}, v{M+2}\nv_permlane32_swap_b32 v{M+1}, v{M+3}\ns_nop 1\n{op} v{M}, v{M}, v{M+2}\n{op} v{M+1}, v{M+1}, v{M+3}")
        k(f"s_nop 1\nv_permlane16_swap_b32 v{M}, v{M+1}\ns_nop 1\n{op} v{M}, v{M}, v{M+1}\nds_write_b32 v5, v{M} offset:{addr_off}")
    treduce("v_max_f32",0)
    k("s_waitcnt lgkmcnt(0)\ns_barrier")
    G=KF+8
    for qb in range(4):
        for q in range(2): k(f"ds_read_b128 {vr(G+8*qb+4*q,4)}, v6 offset:{qb*512+16*q}")
    for qb in range(4):
        k(f"s_waitcnt lgkmcnt({6-2*qb})"); max8(T+qb,G+8*qb)
    k("s_mov_b32 s40, 0x3f803f80")
    for qb in range(4):
        r=SA+8*qb
        for j in range(8): k(f"v_sub_f32 v{r+j}, v{r+j}, v{T+qb}")
        for j in range(8): k(f"v_exp_f32 v{r+j}, v{r+j}")
        k("s_nop 0")
        for j in range(4): k(f"v_cvt_pk_bf16_f32 v{B2+4*qb+j}, v{r+2*j}, v{r+2*j+1}")
        k(f"ds_write_b128 v7, {vr(B2+4*qb,4)} offset:{qb*8192}")
        for j in range(4): k(f"v_dot2_f32_bf16 v{M+qb}, v{B2+4*qb+j}, s40, {('v%d'%(M+qb)) if j else 0}")
    k("s_nop 1")
    treduce("v_add_f32",SL-ML)
    k(f"""
    s_and_b32 s30, s3, 3
    s_lshr_b32 s31, s3, 2
    s_mul_i32 s6, s30, 24576
    s_add_u32 s6, s6, {VL}
    v_add_u32 v5, s6, v4
    s_lshl_b32 s6, s31, 14
    s_add_u32 s6, s6, {PL}
    v_add_u32 v7, s6, v4
    s_lshl_b32 s6, s31, 10
    v_add_u32 v6, s6, v6
    s_cmp_eq_u32 s31, 0
    s_cselect_b64 vcc, -1, 0
    v_cndmask_b32 v{T}, v{T+2}, v{T}, vcc
    v_cndmask_b32 v{T+1}, v{T+3}, v{T+1}, vcc
    """)
    k.st(); k("s_waitcnt vmcnt(0) lgkmcnt(0)\ns_barrier"); k.st()
    for qq in range(2):
        for q in range(2): k(f"ds_read_b128 {vr(G+8*qq+4*q,4)}, v6 offset:{SL-ML+qq*512+16*q}")
    OA=SA; items=[]
    for ks in range(8): items+= [(7,qq*8192+ks*1024) for qq in range(2)] + [(5,j*8192+ks*1024) for j in range(3)]
    st={}; n=len(items); B0=128; NB=15; PF=10
    def rd(i):
        a,o=items[i]; k(f"ds_read_b128 {vr(B0+4*(i%NB),4)}, v{a} offset:{o}")
    for i in range(PF): rd(i)
    issued=PF
    for i in range(n):
        ks,t=divmod(i,5); st[t]=B0+4*(i%NB)
        if t>=2:
            k(f"s_waitcnt lgkmcnt({issued-i-1})")
            for qq in range(2): mf(k,OA+8*(t-2)+4*qq,st[t],st[qq],ks==0)
        if issued<n: rd(issued); issued+=1
    k.st()
    for qq in range(2):
        r=G+8*qq
        k(f"v_add_f32 v{r}, v{r}, v{r+1}")
        for j in range(2,8): k(f"v_add_f32 v{r}, v{r}, v{r+j}")
        k(f"v_rcp_f32 v{r+1}, v{r}\nv_log_f32 v{r+2}, v{r}")
    k(f"""
    s_lshl_b32 s6, s31, 1
    s_add_u32 s24, s24, s6
    s_mul_i32 s32, s24, 12288
    s_mul_i32 s6, s22, {ACT:#x}
    s_add_u32 s32, s32, s6
    s_add_u32 s32, s32, {O_P:#x}
    s_mul_i32 s33, s21, 12
    s_mul_i32 s6, s30, 3
    s_add_u32 s33, s33, s6
    s_lshl_b32 s33, s33, 9
    s_add_u32 s32, s32, s33
    v_and_b32 v5, 1, v3
    v_mul_u32_u24 v5, 12288, v5
    v_lshrrev_b32 v6, 1, v3
    v_lshl_add_u32 v5, v6, 8, v5
    v_lshl_add_u32 v5, v2, 4, v5
    """)
    for j in range(3):
        for qq in range(2):
            r=OA+8*j+4*qq
            for t in range(4): k(f"v_mul_f32 v{r+t}, v{r+t}, v{G+8*qq+1}")
        swap_pack(k,OA+8*j,OA+8*j+4,B2+4*j); st4(k,B2+4*j,5,32,j*512)
    k(f"""
    s_lshl_b32 s35, s20, 4
    s_add_u32 s35, s35, s23
    s_lshl_b32 s35, s35, 6
    s_lshl_b32 s6, s21, 4
    s_add_u32 s35, s35, s6
    s_lshl_b32 s6, s22, 2
    s_add_u32 s35, s35, s6
    s_add_u32 s35, s35, 2048
    s_cmp_lg_u32 s30, 0
    s_cbranch_scc1 {k.lab('p2e')}
    v_add_f32 v{T}, v{T}, v{G+2}
    v_add_f32 v{T+1}, v{T+1}, v{G+10}
    v_cmp_eq_u32 vcc, 0, v3
    s_lshl_b32 s6, s22, 1
    s_add_u32 s6, s6, s21
    v_cndmask_b32 v{T}, v{T+1}, v{T}, vcc
    s_lshl_b32 s6, s6, 13
    s_lshl_b32 s7, s24, 6
    s_add_u32 s6, s6, s7
    s_add_u32 s6, s6, {LSE:#x}
    v_lshrrev_b32 v5, 2, v4
    s_mov_b32 exec_hi, 0
    buffer_store_dword v{T}, v5, s[8:11], s6 offen sc1
    s_mov_b64 exec, -1
    {k.lab('p2e')}:
    """)
    signal(k,'2',35); k.st()

FC1L=24576
def p4setup(k):
    k(f"""
    s_lshr_b32 s51, s4, 1
    s_lshl_b32 s51, s51, 2
    s_and_b32 s6, s5, 3
    s_add_u32 s51, s51, s6
    s_and_b32 s52, s4, 1
    s_lshl_b32 s52, s52, 3
    s_lshr_b32 s6, s5, 2
    s_add_u32 s52, s52, s6
    s_lshl_b32 s53, s51, 3
    s_add_u32 s53, s53, s3
    s_lshr_b32 s25, s51, 3
    s_mul_i32 s27, s3, 9216
    s_mul_i32 s28, s52, 73728
    s_add_u32 s28, s28, s27
    s_mul_i32 s29, s25, 0x120000
    s_add_u32 s28, s28, s29
    s_add_u32 s28, s28, {FC1_P:#x}
    s_add_u32 s27, s27, {FC1L}
    """)
    poll(k,'s',"v_min_u32 v5, 23, v4\nv_lshrrev_b32 v5, 4, v4\nv_min_u32 v5, 23, v5\nv_lshlrev_b32 v5, 2, v5\nv_add_u32 v5, 1024, v5")
    for i in range(9):
        if i%4==0:
            if i: k("s_add_u32 s27, s27, 4096\ns_add_u32 s28, s28, 4096")
            k("s_mov_b32 m0, s27\ns_nop 0")
        dma(k,28,(i%4)*1024,SC)

def p3(k):
    OP=8; LS=56; t=ACC
    k(f"""
    s_lshl_b32 s22, s48, 1
    s_lshr_b32 s6, s3, 2
    s_add_u32 s23, s22, s6
    s_and_b32 s24, s3, 3
    s_mul_i32 s25, s23, 12288
    s_mul_i32 s6, s24, 3072
    s_add_u32 s25, s25, s6
    s_add_u32 s25, s25, {O_P:#x}
    s_lshr_b32 s6, s24, 1
    s_lshl_b32 s26, s6, 13
    s_lshl_b32 s6, s23, 6
    s_add_u32 s26, s26, s6
    s_add_u32 s26, s26, {LSE:#x}
    """)
    poll(k,'3',"s_lshr_b32 s6, s48, 1\ns_lshl_b32 s6, s6, 6\ns_add_u32 s6, s6, 2048\nv_and_b32 v5, 7, v0\nv_lshlrev_b32 v5, 2, v5\nv_add_u32 v5, s6, v5")
    k.st(); k("v_lshlrev_b32 v5, 2, v2")
    for sp in range(4):
        ld(k,LS+sp,1,5,26,sc=SC)
        if sp<3: k("s_add_u32 s26, s26, 16384")
    for i in range(3):
        for sp in range(4):
            k(f"s_add_u32 s6, s25, {sp*ACT:#x}"); ld(k,OP+16*i+4*sp,4,4,6,i*1024,sc=SC)
    k(f"s_waitcnt vmcnt(12)\nv_max3_f32 v{t}, v{LS}, v{LS+1}, v{LS+2}\nv_max_f32 v{t}, v{t}, v{LS+3}")
    for sp in range(4): k(f"v_sub_f32 v{LS+sp}, v{LS+sp}, v{t}")
    for sp in range(4): k(f"v_exp_f32 v{LS+sp}, v{LS+sp}")
    k(f"s_nop 0\nv_add_f32 v{t}, v{LS}, v{LS+1}\nv_add_f32 v{t}, v{t}, v{LS+2}\nv_add_f32 v{t}, v{t}, v{LS+3}\nv_rcp_f32 v{t}, v{t}\ns_mul_i32 s6, s3, 3072")
    for sp in range(4): k(f"v_mul_f32 v{LS+sp}, v{LS+sp}, v{t}")
    k("v_add_u32 v5, s6, v4")
    for i in range(3):
        for sp in range(4):
            k(f"s_waitcnt vmcnt({11-4*i-sp})")
            for j in range(4):
                r=OP+16*i+4*sp+j
                k(f"v_and_b32 v60, 0xffff0000, v{r}\nv_lshlrev_b32 v{r}, 16, v{r}")
                op="v_fmac_f32" if sp else "v_mul_f32"
                k(f"{op} v{t+2*j}, v{r}, v{LS+sp}\n{op} v{t+2*j+1}, v60, v{LS+sp}")
        for j in range(4): k(f"v_cvt_pk_bf16_f32 v{OP+16*i+j}, v{t+2*j}, v{t+2*j+1}")
        k(f"ds_write_b128 v5, {vr(OP+16*i,4)} offset:{i*1024}")
    k(f"""
    s_lshr_b32 s35, s48, 2
    s_lshl_b32 s35, s35, 6
    s_and_b32 s6, s48, 3
    s_lshl_b32 s6, s6, 4
    s_add_u32 s35, s35, s6
    s_lshl_b32 s6, s49, 2
    s_add_u32 s35, s35, s6
    s_add_u32 s35, s35, 4096
    s_waitcnt lgkmcnt(0)
    s_barrier
    """)
    k.st(); k(f"s_cmp_ge_u32 s3, 6\ns_cbranch_scc1 {k.lab('p3e')}")
    items=[(4,(rb*12+s)*1024) for s in range(12) for rb in range(2)]
    gemm_loop(k,items,OP,12,lambda i,b: mf(k,ACC+4*(i%2),WB+4*(i//2),b,i<2))
    k(f"""
    s_mul_i32 s32, s22, 12288
    s_lshl_b32 s6, s50, 9
    s_add_u32 s32, s32, s6
    s_add_u32 s32, s32, {X1_P:#x}
    v_and_b32 v5, 1, v3
    v_mul_u32_u24 v5, 12288, v5
    v_lshrrev_b32 v6, 1, v3
    v_lshl_add_u32 v5, v6, 8, v5
    v_lshl_add_u32 v5, v2, 4, v5
    """)
    for rb in range(2):
        for j in range(2):
            x=XG+2*rb+j; a=ACC+4*rb+2*j
            k(f"v_lshlrev_b32 v8, 16, v{x}\nv_and_b32 v9, 0xffff0000, v{x}\nv_fma_f32 v{a}, v{a}, v{XG+4+2*j}, v8\nv_fma_f32 v{a+1}, v{a+1}, v{XG+4+2*j+1}, v9")
    swap_pack(k,ACC,ACC+4,12); st4(k,12,5,32)
    k(f"{k.lab('p3e')}:")
    signal(k,'3',35); k.st()

def f2addr(q):
    if q<60: return 98304+q*1024
    if q<84: return (q-60)*1024
    return FC1L+(q-84)*1024
RL=FC1L+60*1024
def f2dma(k,q0,q1):
    for q in range(q0,q1,8):
        hi=min(q+8,q1)
        if hi-q<8: k(f"s_cmp_ge_u32 s3, {hi-q}\ns_cbranch_scc1 {k.lab('f2_%d'%q)}")
        assert f2addr(hi-1)==f2addr(q)+(hi-1-q)*1024
        k(f"s_add_u32 s6, s58, {q//2}\ns_mul_hi_u32 s7, s6, s59\ns_mul_i32 s37, s7, 3\ns_sub_u32 s6, s6, s37\ns_mul_i32 s6, s6, 49152\ns_lshl_b32 s7, s7, 10\ns_add_u32 s6, s6, s7\ns_add_u32 s6, s6, s57")
        k(f"s_add_u32 s7, s38, {f2addr(q)}\ns_mov_b32 m0, s7\ns_nop 0"); dma(k,6)
        if hi-q<8: k(f"{k.lab('f2_%d'%q)}:")
def p5setup(k):
    k(f"""
    s_lshl_b32 s54, s4, 2
    s_and_b32 s6, s5, 3
    s_add_u32 s54, s54, s6
    s_lshr_b32 s55, s5, 2
    s_lshl_b32 s56, s54, 2
    s_and_b32 s6, s3, 3
    s_add_u32 s56, s56, s6
    s_mul_i32 s57, s55, 147456
    s_and_b32 s6, s3, 1
    s_mul_i32 s6, s6, 24576
    s_add_u32 s57, s57, s6
    s_add_u32 s57, s57, {FC2_P:#x}
    s_lshr_b32 s58, s3, 1
    s_mov_b32 s59, 0x55555556
    s_lshl_b32 s38, s3, 10
    s_lshr_b32 s25, s51, 3
    s_mul_i32 s30, s25, 12288
    s_mul_i32 s31, s52, 384
    s_add_u32 s30, s30, s31
    s_add_u32 s30, s30, {UV:#x}
    s_add_u32 s31, s30, 6144
    v_lshlrev_b32 v6, 4, v3
    """)
    for cb in range(6):
        ld(k,WB+4*cb,4,6,30,cb*64,sc=SC); ld(k,WB+24+4*cb,4,6,31,cb*64,sc=SC)
    f2dma(k,0,60); f2dma(k,60,84)

def p4(k):
    UU=WB
    k(f"s_mul_i32 s23, s53, 12288\ns_add_u32 s23, s23, {X1_P:#x}")
    poll(k,'4',"s_lshl_b32 s6, s51, 6\ns_add_u32 s6, s6, 4096\nv_lshlrev_b32 v5, 2, v2\nv_add_u32 v5, s6, v5")
    k.st()
    for s in range(12):
        if s and s%4==0: k("s_add_u32 s23, s23, 4096")
        ld(k,A+4*s,4,4,23,(s%4)*1024,sc=SC)
    k(f"""
    v_add_u32 v6, {FC1L}, v4
    v_add_u32 v7, {FC1L+36864}, v4
    s_mul_i32 s32, s53, 48
    s_mul_i32 s33, s52, 3
    s_add_u32 s32, s32, s33
    s_lshl_b32 s32, s32, 10
    s_add_u32 s32, s32, {G_P:#x}
    s_mov_b32 s34, {f2u(-2*math.sqrt(2/math.pi)*math.log2(math.e)*0.044715):#x}
    v_mov_b32 v5, {f2u(-2*math.sqrt(2/math.pi)*math.log2(math.e)):#x}
    s_lshl_b32 s35, s51, 6
    s_lshl_b32 s6, s52, 2
    s_add_u32 s35, s35, s6
    s_add_u32 s35, s35, 5120
    """)
    items=[((6 if f<36 else 7),(f%36)*1024) for s in range(12) for f in range(s,72,12)]
    def m(i,b):
        s,cb=divmod(i,6)
        if cb==0: k(f"s_waitcnt vmcnt({11-s})")
        mf(k,ACC+4*cb,b,A+4*s,s==0)
    gemm_loop(k,items,BB,8,m); k.st()
    k("s_barrier")
    f2dma(k,84,144)
    stats(k,A,S,S+4)
    for i in range(3):
        R=[ACC+8*i+j for j in range(8)]; T=[BB+16+j for j in range(8)]
        for j in range(8): k(f"v_fma_f32 v{R[j]}, -v{S}, v{UU+8*i+j}, v{R[j]}")
        for j in range(8): k(f"v_fma_f32 v{R[j]}, v{R[j]}, v{S+1}, v{UU+24+8*i+j}")
        for j in range(8): k(f"v_mul_f32 v{T[j]}, v{R[j]}, v{R[j]}")
        for j in range(8): k(f"v_fma_f32 v{T[j]}, v{T[j]}, s34, v5")
        for j in range(8): k(f"v_mul_f32 v{T[j]}, v{T[j]}, v{R[j]}")
        for j in range(8): k(f"v_exp_f32 v{T[j]}, v{T[j]}")
        for j in range(8): k(f"v_add_f32 v{T[j]}, 1.0, v{T[j]}")
        for j in range(8): k(f"v_rcp_f32 v{T[j]}, v{T[j]}")
        for j in range(8): k(f"v_mul_f32 v{R[j]}, v{R[j]}, v{T[j]}")
        for j in range(4): k(f"v_cvt_pk_bf16_f32 v{BB+4*i+j}, v{R[2*j]}, v{R[2*j+1]}")
        st4(k,BB+4*i,4,32,i*1024)
    k.st()
    signal(k,'4',35); k.st()

def p5(k):
    X5=WB
    k(f"""
    s_lshr_b32 s23, s3, 2
    s_mul_i32 s25, s56, 49152
    s_mul_i32 s6, s23, 24576
    s_add_u32 s25, s25, s6
    s_add_u32 s25, s25, {G_P:#x}
    s_mul_i32 s29, s56, 12288
    s_mul_i32 s6, s55, 1536
    s_add_u32 s29, s29, s6
    s_add_u32 s29, s29, {X1_P:#x}
    s_lshr_b32 s6, s54, 4
    s_mul_i32 s30, s6, 9216
    s_mul_i32 s6, s55, 192
    s_add_u32 s30, s30, s6
    s_add_u32 s30, s30, {1920*4}
    """)
    poll(k,'5',"s_lshr_b32 s6, s54, 1\ns_lshl_b32 s6, s6, 6\ns_add_u32 s6, s6, 5120\nv_lshlrev_b32 v5, 2, v2\nv_add_u32 v5, s6, v5")
    k.st()
    def lda(s):
        if s and s%4==0: k("s_add_u32 s25, s25, 4096")
        ld(k,A+4*s,4,4,25,(s%4)*1024,sc=SC)
    for s in range(12): lda(s)
    k(f"""
    s_lshl_b32 s6, s23, 10
    v_add_u32 v5, s6, v4
    v_add_u32 v6, 65536, v5
    v_add_u32 v7, 65536, v6
    v_lshlrev_b32 v1, 4, v3
    v_lshrrev_b32 v{S}, 1, v3
    v_lshlrev_b32 v{S}, 8, v{S}
    v_lshl_add_u32 v{S}, v2, 4, v{S}
    v_and_b32 v{S+1}, 1, v3
    v_lshl_add_u32 v{S}, v{S+1}, 3, v{S}
    """)
    items=[(5+f2addr(2*n)//65536,f2addr(2*n)%65536) for n in range(72)]
    def m(i,b):
        s,cb=divmod(i,3)
        if cb==0:
            k(f"s_waitcnt vmcnt({11 if s<12 else 23-s+6})")
            if s<12: lda(12+s)
            if s==11:
                for c in range(3):
                    ld(k,X5+2*c,2,S,29,c*512,sc=SC); ld(k,X5+8+4*c,4,1,30,c*64)
        mf(k,ACC+4*cb,b,A+4*s,s==0)
    gemm_loop(k,items,BB,8,m); k.st()
    k(f"""
    s_and_b32 s6, s3, 3
    s_mul_i32 s6, s6, 3072
    s_add_u32 s6, s6, {RL}
    v_add_u32 v5, s6, v4
    s_cmp_eq_u32 s23, 0
    s_cbranch_scc1 {k.lab('lo')}
    s_nop 4
    """)
    for cb in range(3): k(f"ds_write_b128 v5, {vr(ACC+4*cb,4)} offset:{cb*1024}")
    k(f"s_waitcnt lgkmcnt(0)\ns_barrier\ns_endpgm\n{k.lab('lo')}:")
    k(f"v_mul_u32_u24 v6, 768, v2\nv_lshl_add_u32 v6, v3, 3, v6\ns_mul_i32 s31, s56, {16*768}\ns_mul_i32 s6, s55, 96\ns_add_u32 s31, s31, s6\ns_barrier")
    for cb in range(3): k(f"ds_read_b128 {vr(BB+4*cb,4)}, v5 offset:{cb*1024}")
    k("s_waitcnt vmcnt(0) lgkmcnt(0)")
    for cb in range(3):
        for t in range(4): k(f"v_add_f32 v{ACC+4*cb+t}, v{ACC+4*cb+t}, v{BB+4*cb+t}")
        for j in range(2):
            x=X5+2*cb+j
            k(f"v_lshlrev_b32 v8, 16, v{x}\nv_and_b32 v9, 0xffff0000, v{x}")
            k(f"v_fma_f32 v8, v{ACC+4*cb+2*j}, v{X5+8+4*cb+2*j}, v8\nv_fma_f32 v9, v{ACC+4*cb+2*j+1}, v{X5+8+4*cb+2*j+1}, v9\nv_cvt_pk_bf16_f32 v{x}, v8, v9")
        k(f"buffer_store_dwordx2 {vr(X5+2*cb,2)}, v6, s[44:47], s31 offen offset:{cb*32}")

def km():
    k=K("k1_kernel",256,512,159744,256)
    k(f"s_cmp_ge_u32 s2, 256\ns_cbranch_scc1 {k.lab('end')}")
    k.srds([('ws',8),('x',12),('fc1',16),('out',44)])
    k("v_lshrrev_b32 v1, 6, v0\nv_and_b32 v2, 15, v0\nv_readfirstlane_b32 s3, v1\nv_bfe_u32 v3, v0, 4, 2\nv_and_b32 v4, 63, v0\nv_lshlrev_b32 v4, 4, v4\ns_and_b32 s4, s2, 7\ns_lshr_b32 s5, s2, 3")
    p1(k); p3setup(k); p2(k); p4setup(k); p3(k); p5setup(k); p4(k); p5(k)
    k(f"{k.lab('end')}:\ns_endpgm")
    return k
```

```python
import sys
import common
if len(sys.argv)>2: common.DIAG=True
from common import *
from k0 import k0
from km import km
out=sys.argv[1] if len(sys.argv)>1 else 'standalone__dit_block__diffusion.s'
build([k0(),km()],out)
```

```python
MOD=0; UV=0x8000; LSE=0x10000; WQKV_P=0x20000; WO_P=0x100000; FC2_P=0x180000; FC1_P=0x300000
Q_P=0x600000; K_P=0x780000; VT_P=0x900000; O_P=0xB00000; X1_P=0x1100000; G_P=0x1300000; XN_P=0x1900000; WS_END=0x1A80000; AQ=0x5000; FL=0x40000
ACT=0x180000
SZ=dict(x=2*1024*384*2,c=2*384*2,wqkv=384*1152*2,wo=384*384*2,wmod=384*2304*2,fc1=384*1536*2,fc2=1536*384*2,out=2*1024*384*2,dbg=256,ws=WS_END)
KOFF=dict(x=0,c=8,wqkv=16,wo=24,wmod=32,fc1=40,fc2=48,out=56,dbg=64,ws=72)

DIAG=False
import os
EARLY=bool(os.environ.get('EARLY'))
class K:
    kidx=0
    def __init__(s,name,grid,block,lds,vgpr,sgpr=96,agpr=0):
        s.name=name; s.grid=grid; s.block=block; s.lds=lds; s.vgpr=vgpr; s.sgpr=sgpr; s.agpr=agpr; s.L=[]; s.nst=1
    def __call__(s,txt):
        for l in txt.strip('\n').split('\n'):
            l=l.strip()
            if l: s.L.append(('' if l.endswith(':') else '    ')+l)
    def st(s,i=None):
        if not DIAG: return
        if EARLY and i is None: return
        if i is not None and i>=100:
            if not EARLY: return
            i-=100
        if i is None: i=s.nst
        s.nst=i+1
        s(f"s_memtime s[94:95]\ns_waitcnt lgkmcnt(0)\ns_mov_b32 s{64+i}, s94")
    def fin(s):
        if not DIAG: return
        idx=0
        L=["    s_memrealtime s[60:61]","    s_memtime s[94:95]"]+[f"    s_mov_b32 s{64+i}, 0" for i in range(24)]+["    v_readfirstlane_b32 s100, v0","    s_waitcnt lgkmcnt(0)","    s_mov_b32 s64, s94"]
        body=[('    s_branch '+s.lab('dump') if l.strip()=='s_endpgm' else l) for l in s.L]
        D=[s.lab('dump')+':','    s_waitcnt vmcnt(0)','    s_memtime s[94:95]','    s_memrealtime s[62:63]',
           '    s_load_dwordx2 s[88:89], s[0:1], 72','    s_mov_b32 s90, 0x2000000','    s_mov_b32 s91, 0x20000','    s_mov_b64 exec, -1',
           '    s_waitcnt lgkmcnt(0)','    s_mov_b32 s87, s94','    s_lshr_b32 s92, s100, 6',
           '    s_lshl_b32 s93, s2, 3','    s_add_u32 s93, s93, s92','    s_lshl_b32 s93, s93, 7',f'    s_add_u32 s93, s93, {0x1B00000+idx*0x48000:#x}',
           '    v_mov_b32 v0, 0']
        regs=[60,62]+[64+i for i in range(24)]
        for j,r in enumerate(regs):
            D+=[f'    v_mov_b32 v1, s{r}',f'    buffer_store_dword v1, v0, s[88:91], s93 offen offset:{4*j}']
        D+=['    s_endpgm']
        s.L=L+body+D; s.sgpr=102
    def lab(s,n): return f"L_{s.name}_{n}"
    def srds(s,lst):
        for b,r in lst: s(f"s_load_dwordx2 s[{r}:{r+1}], s[0:1], {KOFF[b]}")
        for b,r in lst:
            s(f"s_mov_b32 s{r+2}, {SZ[b]:#x}"); s(f"s_mov_b32 s{r+3}, 0x20000")
    def text(s):
        return f".globl {s.name}\n.p2align 8\n.type {s.name},@function\n{s.name}:\n"+'\n'.join(s.L)+"\n"
    def desc(s):
        acc=(s.vgpr+3)//4*4
        tot=acc+s.agpr if s.agpr else s.vgpr
        return f""".p2align 6
.amdhsa_kernel {s.name}
  .amdhsa_next_free_vgpr {tot}
  .amdhsa_next_free_sgpr {s.sgpr}
  .amdhsa_accum_offset {acc}
  .amdhsa_group_segment_fixed_size 0
  .amdhsa_kernarg_size 80
  .amdhsa_user_sgpr_count 2
  .amdhsa_user_sgpr_kernarg_segment_ptr 1
  .amdhsa_system_sgpr_workgroup_id_x 1
.end_amdhsa_kernel
"""
    def launch(s): return f"; @launch "+("" if s.name.startswith("standalone") and not DIAG else f"kernel={s.name} ")+f"grid=({s.grid},1,1) block=({s.block},1,1) lds={s.lds}\n"

def vr(a,n): return f"v[{a}:{a+n-1}]" if n>1 else f"v{a}"

def xreduce(k,regs,tmp,op):
    for sw in ("v_permlane32_swap_b32","v_permlane16_swap_b32"):
        for r,t in zip(regs,tmp): k(f"v_mov_b32 v{t}, v{r}")
        k("s_nop 1")
        for r,t in zip(regs,tmp): k(f"{sw} v{r}, v{t}")
        k("s_nop 1")
        for r,t in zip(regs,tmp): k(f"{op} v{r}, v{r}, v{t}")

def build(kernels,path):
    hdr=open('standalone__dit_block__diffusion.s.ref').read().split('; Override')[0]
    s=hdr+''.join(k.launch() for k in kernels)
    s+='.amdgcn_target "amdgcn-amd-amdhsa--gfx950"\n.text\n'
    seen=set(); uniq=[]
    for k in kernels:
        if k.name not in seen: seen.add(k.name); uniq.append(k)
    for k in uniq: k.fin()
    s+=''.join(k.text() for k in uniq)
    s+='.section .rodata,"a"\n'+''.join(k.desc() for k in uniq)
    open(path,'w').write(s)

def gemm_loop(k, items, breg0, nbuf, mf):
    n=len(items)
    def rd(i):
        a,o=items[i]; k(f"ds_read_b128 {vr(breg0+4*(i%nbuf),4)}, v{a} offset:{o}")
    pre=min(nbuf-1,n)
    for i in range(pre): rd(i)
    issued=pre
    for i in range(n):
        if issued<n:
            rd(issued); issued+=1
        k(f"s_waitcnt lgkmcnt({issued-i-1})")
        mf(i, breg0+4*(i%nbuf))
```

```python
from common import *
from k14 import f2u, stats, bdma
import math, os
SC=" sc1"
NAME='standalone__dit_block__diffusion_kernel'
def mf(k,c,a,b,first): k(f"v_mfma_f32_16x16x32_bf16 {vr(c,4)}, {vr(a,4)}, {vr(b,4)}, {0 if first else vr(c,4)}")
def ld(k,dst,n,voff,soff,off=0,srd=8,sc=""):
    w={1:"dword",2:"dwordx2",4:"dwordx4"}[n]
    k(f"buffer_load_{w} {vr(dst,n)}, v{voff}, s[{srd}:{srd+3}], s{soff} offen"+(f" offset:{off}" if off else "")+sc)
def dma(k,soff,off=0,sc=""): k(f"buffer_load_dwordx4 v4, s[8:11], s{soff} offen"+(f" offset:{off}" if off else "")+sc+" lds")
def st4(k,src,voff,soff,off=0): k(f"buffer_store_dwordx4 {vr(src,4)}, v{voff}, s[8:11], s{soff} offen"+(f" offset:{off}" if off else "")+SC)

def signal(k,name,soff,n=0):
    k(f"s_waitcnt vmcnt({n})\ns_barrier\ns_cmp_lg_u32 s3, 0\ns_cbranch_scc1 {k.lab('sg'+name)}")
    k(f"v_mov_b32 v5, 0\nv_mov_b32 v6, 1\ns_lshl_b32 s{soff}, s{soff}, 5\ns_add_u32 s{soff}, s{soff}, {FL:#x}\ns_mov_b64 exec, 1\nbuffer_store_dword v6, v5, s[8:11], s{soff} offen sc1\ns_mov_b64 exec, -1")
    k(f"{k.lab('sg'+name)}:")
def poll(k,name,setup):
    k(f"s_cmp_lg_u32 s3, 7\ns_cbranch_scc1 {k.lab('pd'+name)}")
    k(setup)
    k(f"v_lshlrev_b32 v5, 5, v5\ns_mov_b32 s6, {FL:#x}\ns_mov_b32 s7, 0\n{k.lab('pl'+name)}:")
    k(f"buffer_load_dword v6, v5, s[8:11], s6 offen sc1\ns_waitcnt vmcnt(0)\nv_cmp_eq_u32 vcc, 0, v6\ns_add_u32 s7, s7, 1\ns_cmp_ge_u32 s7, 0x10000\ns_cbranch_scc1 {k.lab('pd'+name)}\ns_nop 2")
    k(f"s_cbranch_vccz {k.lab('pd'+name)}\ns_sleep 3\ns_branch {k.lab('pl'+name)}\n{k.lab('pd'+name)}:\ns_barrier")
def swap_pack(k,X,Y,D):
    k(f"v_cvt_pk_bf16_f32 v{D}, v{X}, v{X+1}\nv_cvt_pk_bf16_f32 v{D+1}, v{X+2}, v{X+3}\nv_cvt_pk_bf16_f32 v{D+2}, v{Y}, v{Y+1}\nv_cvt_pk_bf16_f32 v{D+3}, v{Y+2}, v{Y+3}")
    k(f"s_nop 1\nv_permlane16_swap_b32 v{D}, v{D+2}\nv_permlane16_swap_b32 v{D+1}, v{D+3}\ns_nop 0")

A=8; ACC=104; BB=128; S=160; U=168; WB=200; XG=248

MQ=0x20000
WOL=77824
def tr_loop(k,items,breg0,nbuf,mfn,hoff):
    n=len(items)
    def rd(i):
        a,o=items[i]; r=breg0+4*(i%nbuf)
        k(f"ds_read_b64_tr_b16 {vr(r,2)}, v{a} offset:{o}\nds_read_b64_tr_b16 {vr(r+2,2)}, v{a} offset:{o+hoff}")
    pre=min(nbuf-1,n)
    for i in range(pre): rd(i)
    issued=pre
    for i in range(n):
        k(f"s_waitcnt lgkmcnt({2*(issued-i-1)})")
        mfn(i, breg0+4*(i%nbuf))
        if issued<n: rd(issued); issued+=1
def chunk_offs(k,dst,per,stride,swz,t):
    k(f"s_mov_b32 s6, {(2**32+per-1)//per:#x}\ns_mov_b32 s7, {stride}")
    for i in range(3):
        d=dst+i
        k(f"v_lshrrev_b32 v{t}, 4, v4\nv_add_u32 v{t}, {64*i}, v{t}\nv_mul_hi_u32 v{d}, v{t}, s6\nv_mul_u32_u24 v{t+1}, {per}, v{d}\nv_sub_u32 v{t}, v{t}, v{t+1}")
        if swz: k(f"v_lshrrev_b32 v{t+1}, 2, v{d}\nv_and_b32 v{t+1}, 2, v{t+1}\nv_xor_b32 v{t}, v{t}, v{t+1}")
        k(f"v_mul_lo_u32 v{d}, v{d}, s7\nv_lshl_add_u32 v{d}, v{t}, 4, v{d}")
def w_dma(k,srd,vo,sl,sg,stride):
    for g in range(3):
        for i in range(3):
            k(f"s_mov_b32 m0, s{sl}\ns_add_u32 s{sl}, s{sl}, 1024\nbuffer_load_dwordx4 v{vo+i}, s[{srd}:{srd+3}], s{sg} offen lds")
        k(f"s_add_u32 s{sg}, s{sg}, {16*stride}")
def tr_addr(k,d,base):
    k(f"v_lshrrev_b32 v{d}, 2, v2\nv_lshl_add_u32 v{d}, v3, 3, v{d}\nv_mul_u32_u24 v{d}, 192, v{d}\nv_and_b32 v{d+1}, 3, v2\nv_lshl_add_u32 v{d}, v{d+1}, 3, v{d}\nv_add_u32 v{d}, {base}, v{d}")
    k(f"v_and_b32 v{d+2}, 1, v3\nv_lshlrev_b32 v{d+2}, 5, v{d+2}\nv_sub_u32 v{d+1}, v{d}, v{d+2}\nv_add_u32 v{d}, v{d}, v{d+2}\nv_add_u32 v{d+2}, 36864, v{d}\nv_add_u32 v{d+3}, 36864, v{d+1}")
def wo_dma(k,U=U,setup_only=False):
    chunk_offs(k,U,12,768,True,U+3)
    k(f"s_mul_i32 s36, s3, 9216\ns_add_u32 s36, s36, {WOL}\ns_mul_i32 s37, s3, {48*768}\ns_mul_i32 s6, s49, 192\ns_add_u32 s37, s37, s6")
    if not setup_only: w_dma(k,20,U,36,37,768)
def modpoll(k,name,sl=3):
    k(f"s_cmp_lg_u32 s3, 7\ns_cbranch_scc1 {k.lab('pd'+name)}\nv_min_u32 v5, 176, v4\ns_mov_b32 s7, 0\n{k.lab('pl'+name)}:")
    k(f"buffer_load_dword v6, v5, s[96:99], 0 offen sc1\ns_waitcnt vmcnt(0)\nv_cmp_eq_u32 vcc, 0, v6\ns_add_u32 s7, s7, 1\ns_cmp_ge_u32 s7, 0x10000\ns_cbranch_scc1 {k.lab('pd'+name)}\ns_nop 2")
    k(f"s_cbranch_vccz {k.lab('pd'+name)}\ns_sleep {sl}\ns_branch {k.lab('pl'+name)}\n{k.lab('pd'+name)}:\ns_barrier")

def touch(k,lst,name):
    k(f"s_sub_u32 s6, s2, 64\ns_lshl_b32 s6, s6, 1\ns_and_b32 s7, s3, 1\ns_add_u32 s6, s6, s7\ns_lshl_b32 s6, s6, 12\nv_lshlrev_b32 v7, 2, v4\ns_lshr_b32 s7, s3, 1")
    for i,srd in enumerate(lst):
        k(f"s_cmp_lg_u32 s7, {i}\ns_cbranch_scc1 {k.lab('t%s%d'%(name,i))}\nbuffer_load_dword v199, v7, s[{srd}:{srd+3}], s6 offen\n{k.lab('t%s%d'%(name,i))}:")
def pmod(k):
    k("""
    v_and_b32 v8, 7, v0
    v_lshrrev_b32 v9, 3, v0
    s_mov_b32 s6, 4608
    v_mul_lo_u32 v10, v9, s6
    v_lshl_add_u32 v10, v8, 4, v10
    v_lshlrev_b32 v11, 1, v9
    s_lshl_b32 s7, s2, 7
    """)
    k(f"s_cmp_ge_u32 s2, 12\ns_cbranch_scc1 {k.lab('nz')}\nv_mov_b32 v12, 0\nv_mov_b32 v13, 0\nv_mov_b32 v14, 0\nv_mov_b32 v15, 0\nv_lshlrev_b32 v5, 4, v0\ns_lshl_b32 s6, s2, 14\ns_add_u32 s6, s6, {FL:#x}")
    k(f"buffer_store_dwordx4 v[12:15], v5, s[8:11], s6 offen sc1\ns_add_u32 s6, s6, 8192\nbuffer_store_dwordx4 v[12:15], v5, s[8:11], s6 offen sc1\n{k.lab('nz')}:")
    for b in range(2):
        for i in range(6): k(f"buffer_load_ushort v{40+b*6+i}, v11, s[28:31], 0 offen offset:{b*768+i*128}")
    for i in range(6):
        k(f"buffer_load_dwordx4 {vr(16+4*i,4)}, v10, s[32:35], s7 offen")
        if i<5: k(f"s_add_u32 s7, s7, {64*4608}")
    k("s_waitcnt vmcnt(6)"); k.st(106)
    for r in range(40,52): k(f"v_lshlrev_b32 v{r}, 16, v{r}\nv_mul_f32 v{r+12}, 0xbfb8aa3b, v{r}\nv_exp_f32 v{r+12}, v{r+12}")
    for r in range(40,52): k(f"v_add_f32 v{r+12}, 1.0, v{r+12}\nv_rcp_f32 v{r+12}, v{r+12}")
    for r in range(40,52): k(f"v_mul_f32 v{r}, v{r}, v{r+12}\nv_cvt_pk_bf16_f32 v{r}, v{r}, v{r}\nv_lshlrev_b32 v{r}, 16, v{r}")
    AC=[64,72]
    for i in range(6):
        k(f"s_waitcnt vmcnt({5-i})")
        for j in range(4):
            k(f"v_lshlrev_b32 v5, 16, v{16+4*i+j}\nv_and_b32 v6, 0xffff0000, v{16+4*i+j}")
            op="v_fmac_f32" if i else "v_mul_f32"
            for b in range(2): k(f"{op} v{AC[b]+2*j}, v5, v{40+b*6+i}\n{op} v{AC[b]+2*j+1}, v6, v{40+b*6+i}")
    k.st(107); k("s_nop 1")
    for r in range(64,80): k(f"v_add_f32_dpp v{r}, v{r}, v{r} row_ror:8 row_mask:0xf bank_mask:0xf")
    k("v_lshrrev_b32 v5, 4, v0\nv_lshlrev_b32 v5, 9, v5\nv_lshl_add_u32 v5, v8, 6, v5")
    for q in range(4): k(f"ds_write_b128 v5, {vr(64+4*q,4)} offset:{16*q}")
    k(f"s_waitcnt lgkmcnt(0)\ns_barrier\ns_cmp_ge_u32 s3, 2\ns_cbranch_scc1 {k.lab('m2')}\nv_lshlrev_b32 v5, 2, v0")
    for p in range(32):
        k(f"ds_read_b32 v{16+p}, v5 offset:{p*512}")
        if p==15: k("s_waitcnt lgkmcnt(8)")
    k("s_waitcnt lgkmcnt(0)")
    for st in (16,8,4,2,1):
        for p in range(st): k(f"v_add_f32 v{16+p}, v{16+p}, v{16+p+st}")
    k(f"""
    v_cvt_pk_bf16_f32 v8, v16, v16
    v_lshlrev_b32 v8, 16, v8
    s_sub_u32 s7, s2, 6
    s_cmp_lt_u32 s7, 6
    s_cselect_b32 s6, 1.0, 0
    s_sub_u32 s7, s2, 24
    s_cmp_lt_u32 s7, 6
    s_cselect_b32 s6, 1.0, s6
    v_add_f32 v8, s6, v8
    v_cvt_pk_bf16_f32 v8, v8, v8
    v_lshlrev_b32 v8, 16, v8
    v_lshrrev_b32 v5, 4, v0
    v_lshlrev_b32 v5, 5, v5
    v_and_b32 v6, 7, v0
    v_lshl_add_u32 v5, v6, 2, v5
    v_bfe_u32 v6, v0, 3, 1
    v_mul_u32_u24 v6, 9216, v6
    v_add_u32 v5, v5, v6
    s_lshl_b32 s6, s2, 8
    s_add_u32 s7, s6, {MQ:#x}
    buffer_store_dword v8, v5, s[8:11], s6 offen sc1
    v_and_b32 v6, 1, v0
    v_lshlrev_b32 v6, 4, v6
    v_xor_b32 v6, 16, v6
    v_lshrrev_b32 v9, v6, v8
    buffer_store_dword v9, v5, s[8:11], s7 offen sc1
    {k.lab('m2')}:
    """); k.st(108); k(f"""
    s_waitcnt vmcnt(0)
    s_barrier
    """); k.st(109); k(f"""
    s_cmp_lg_u32 s3, 0
    s_cbranch_scc1 {k.lab('m3')}
    s_cmp_ge_u32 s2, 12
    s_cbranch_scc1 {k.lab('m3')}
    s_lshl_b32 s6, s2, 4
    v_mov_b32 v5, 0
    v_mov_b32 v6, 1
    s_mov_b64 exec, 1
    buffer_store_dword v6, v5, s[96:99], s6 offen sc1
    s_mov_b64 exec, -1
    {k.lab('m3')}:
    """)

def pfc1(k):
    F=8; PQ=32; O=128; T=152
    k(f"""
    s_sub_u32 s24, s2, 36
    v_lshrrev_b32 v5, 7, v4
    v_mul_u32_u24 v5, 3072, v5
    v_and_b32 v6, 0x70, v4
    v_add_u32 v5, v5, v6
    s_mul_i32 s25, s3, 6144
    s_mul_i32 s26, s3, {48*3072}
    s_lshl_b32 s6, s24, 7
    s_add_u32 s26, s26, s6
    """)
    for i in range(6): k(f"s_mov_b32 m0, s25\ns_add_u32 s25, s25, 1024\nbuffer_load_dwordx4 v5, s[16:19], s26 offen lds\ns_add_u32 s26, s26, {8*3072}")
    k(f"""
    s_lshr_b32 s27, s3, 1
    s_and_b32 s25, s3, 1
    v_lshrrev_b32 v7, 2, v2
    v_lshl_add_u32 v7, v3, 3, v7
    v_lshlrev_b32 v7, 7, v7
    v_and_b32 v6, 3, v2
    v_lshl_add_u32 v7, v6, 3, v7
    s_mul_i32 s6, s25, 24576
    s_lshl_b32 s7, s27, 5
    s_add_u32 s6, s6, s7
    v_add_u32 v7, s6, v7
    s_lshl_b32 s6, s24, 2
    s_add_u32 s27, s27, s6
    s_min_u32 s6, s3, 5
    s_lshl_b32 s37, s6, 10
    s_cmp_ge_u32 s6, 3
    s_cselect_b32 s26, {9216-3072}, 0
    s_add_u32 s26, s26, s37
    s_add_u32 s26, s26, {MQ+1152*4:#x}
    s_add_u32 s37, s37, 53248
    s_mul_i32 s36, s27, 12288
    s_mul_i32 s6, s25, 6144
    s_add_u32 s36, s36, s6
    s_add_u32 s36, s36, {FC1_P:#x}
    s_mov_b32 s40, 0x3f803f80
    s_waitcnt vmcnt(0)
    """)
    modpoll(k,'f',16)
    poll(k,'f2',"v_lshrrev_b32 v5, 4, v4\nv_min_u32 v5, 23, v5\nv_lshlrev_b32 v5, 2, v5\nv_add_u32 v5, 1120, v5")
    k("s_mov_b32 m0, s37\ns_nop 0"); dma(k,26,0,SC)
    for i in range(6): k(f"ds_read_b64_tr_b16 {vr(F+4*i,2)}, v7 offset:{i*4096}\nds_read_b64_tr_b16 {vr(F+4*i+2,2)}, v7 offset:{i*4096+512}")
    k("v_lshlrev_b32 v6, 5, v3\ns_mul_i32 s6, s25, 768\ns_add_u32 s6, s6, 53248\nv_add_u32 v6, s6, v6\ns_waitcnt vmcnt(0) lgkmcnt(0)\ns_barrier")
    for b in range(2):
        k("s_add_u32 s37, s36, 4096")
        u=S+2*b
        for i in range(6):
            if i%3==0:
                for ii in range(i,i+3):
                    for q in range(2):
                        k(f"ds_read_b128 {vr(PQ+16*ii+4*q,4)}, v6 offset:{b*3072+ii*128+16*q}\nds_read_b128 {vr(PQ+16*ii+8+4*q,4)}, v6 offset:{b*3072+1536+ii*128+16*q}")
            k(f"s_waitcnt lgkmcnt({8-4*(i%3)})")
            for j in range(8): k(f"v_dot2_f32_bf16 v{T+j}, v{F+4*i+j//2}, v{PQ+16*i+8+j}, 0")
            for j in range(8): k(f"v_dot2_f32_bf16 v{u+1}, v{F+4*i+j//2}, v{PQ+16*i+j}, {('v%d'%(u+1)) if (i or j) else 0}")
            for j in range(4): k(f"v_cvt_pk_bf16_f32 v{O+4*i+j}, v{T+2*j}, v{T+2*j+1}")
            for j in range(4): k(f"v_dot2_f32_bf16 v{u}, v{O+4*i+j}, s40, {('v%d'%u) if (i or j) else 0}")
            st4(k,O+4*i,4,36 if i<4 else 37,(i%4)*1024)
        if b==0: k("s_add_u32 s36, s36, 0x120000")
    wo_dma(k)
    xreduce(k,[S,S+1,S+2,S+3],[T,T+1,T+2,T+3],"v_add_f32")
    k(f"""
    s_lshr_b32 s6, s3, 1
    s_lshl_b32 s6, s6, 10
    s_add_u32 s6, s6, 49152
    v_add_u32 v5, s6, v4
    s_lshl_b32 s35, s24, 2
    s_add_u32 s35, s35, 1024
    s_cmp_eq_u32 s25, 0
    s_cbranch_scc1 {k.lab('f1')}
    ds_write_b128 v5, {vr(S,4)}
    s_waitcnt lgkmcnt(0)
    s_barrier
    s_branch {k.lab('p1e')}
    {k.lab('f1')}:
    s_barrier
    ds_read_b128 {vr(T,4)}, v5
    s_lshl_b32 s6, s27, 6
    s_add_u32 s6, s6, {UV:#x}
    v_lshlrev_b32 v5, 2, v2
    s_waitcnt lgkmcnt(0)
    """)
    for j in range(4):
        k(f"v_add_f32 v{S+j}, v{S+j}, v{T+j}\nbuffer_store_dword v{S+j}, v5, s[8:11], s6 offen sc1\ns_add_u32 s6, s6, 6144")
    k(f"s_branch {k.lab('p1e')}")

def p1(k):
    k(f"""
    s_lshl_b32 s48, s4, 3
    s_and_b32 s6, s5, 7
    s_add_u32 s48, s48, s6
    s_lshr_b32 s49, s5, 3
    s_mul_i32 s50, s49, 6
    s_add_u32 s50, s50, s3
    s_waitcnt lgkmcnt(0)
    s_cmp_ge_u32 s2, 64
    s_cbranch_scc1 {k.lab('gemm')}
    s_cmp_ge_u32 s2, 60
    s_cbranch_scc1 {k.lab('idle')}
    s_cmp_ge_u32 s2, 36
    s_cbranch_scc1 {k.lab('fc1')}
    """)
    k.st(105); pmod(k)
    k(f"{k.lab('idle')}:"); modpoll(k,'i',16); k.st(114)
    k(f"s_sub_u32 s35, s2, 12\ns_cmp_ge_u32 s35, 24\ns_cbranch_scc1 {k.lab('i2')}\ns_lshl_b32 s35, s35, 2\ns_add_u32 s35, s35, 1120"); signal(k,'m',35)
    k(f"{k.lab('i2')}:"); wo_dma(k); k("s_waitcnt vmcnt(0)\ns_barrier"); k(f"s_branch {k.lab('p1x')}\n{k.lab('fc1')}:")
    pfc1(k)
    k(f"""
    {k.lab('gemm')}:
    s_load_dwordx2 s[16:17], s[0:1], {KOFF['fc2']}
    """)
    if not os.environ.get('NOTOUCH'): touch(k,[12,24],'a')
    k(f"""
    s_sub_u32 s41, s5, 8
    s_lshr_b32 s28, s4, 1
    s_lshl_b32 s28, s28, 2
    s_and_b32 s6, s41, 3
    s_add_u32 s28, s28, s6
    s_and_b32 s29, s4, 1
    s_mul_i32 s29, s29, 6
    s_lshr_b32 s6, s41, 2
    s_add_u32 s29, s29, s6
    s_lshl_b32 s42, s28, 3
    s_add_u32 s42, s42, s3
    s_mul_i32 s30, s42, 12288
    """)
    XL=61440; XO=U+8
    k(f"s_mov_b32 s6, {(2**32+47)//48:#x}")
    for i in range(3):
        d=XO+i; t=XO+3
        k(f"v_lshrrev_b32 v{t}, 4, v4\nv_add_u32 v{t}, {64*i}, v{t}\nv_mul_hi_u32 v{d}, v{t}, s6\nv_mul_u32_u24 v{t+1}, 48, v{d}\nv_sub_u32 v{t}, v{t}, v{t+1}\nv_xor_b32 v{t}, v{t}, v{d}\nv_mul_u32_u24 v{d}, 768, v{d}\nv_lshl_add_u32 v{d}, v{t}, 4, v{d}")
    chunk_offs(k,U,12,2304,True,U+3)
    k(f"s_mul_i32 s31, s3, 12288\ns_add_u32 s31, s31, {XL}\nv_mul_u32_u24 v5, 768, v2\nv_add_u32 v5, s31, v5\nv_xor_b32 v6, v2, v3")
    for b_ in range(4): k(f"v_xor_b32 v{XO+8+b_}, {4*b_}, v6\nv_lshl_add_u32 v{XO+8+b_}, v{XO+8+b_}, 4, v5")
    k.st(110); k("s_waitcnt vmcnt(0) lgkmcnt(0)\ns_barrier"); k.st(111)
    for m_ in range(4):
        for i in range(3):
            k(f"s_mov_b32 m0, s31\ns_add_u32 s31, s31, 1024\nv_xor_b32 v5, {m_<<6}, v{XO+i}\nbuffer_load_dwordx4 v5, s[12:15], s30 offen lds")
        k("s_add_u32 s30, s30, 3072")
    k.st(112)
    k(f"s_mul_i32 s36, s3, 3072\ns_mul_i32 s37, s3, {16*2304}\ns_mul_i32 s6, s29, 192\ns_add_u32 s37, s37, s6")
    def wgrp():
        for i in range(3): k(f"s_mov_b32 m0, s36\ns_add_u32 s36, s36, 1024\nbuffer_load_dwordx4 v{U+i}, s[24:27], s37 offen lds")
    for g in range(2):
        wgrp(); k(f"s_add_u32 s36, s36, {7*3072}\ns_add_u32 s37, s37, {128*2304}")
    k.st(113); k("s_waitcnt vmcnt(6)")
    for s in range(12): k(f"ds_read_b128 {vr(A+4*s,4)}, v{XO+8+s%4} offset:{(s//4)*256}")
    k("s_waitcnt lgkmcnt(0)\ns_barrier"); k.st(1)
    wgrp(); touch(k,[16,20],'b'); wo_dma(k,XO,True)
    stats(k,A,S,S+4)
    k(f"v_mul_f32 v{S}, v{S}, v{S+1}")
    for r in range(A,A+48):
        t=ACC+2*(r%4)
        k(f"v_lshlrev_b32 v{t}, 16, v{r}\nv_and_b32 v{t+1}, 0xffff0000, v{r}\nv_fma_f32 v{t}, v{t}, v{S+1}, -v{S}\nv_fma_f32 v{t+1}, v{t+1}, v{S+1}, -v{S}\nv_cvt_pk_bf16_f32 v{r}, v{t}, v{t+1}")
    k(f"""
    s_lshr_b32 s43, s28, 3
    s_mul_i32 s30, s43, 9216
    s_and_b32 s6, s3, 1
    s_lshl_b32 s6, s6, 10
    s_add_u32 s30, s30, s6
    s_bitcmp1_b32 s3, 1
    s_cselect_b32 s6, {MQ+1536:#x}, 0
    s_add_u32 s30, s30, s6
    s_and_b32 s31, s3, 3
    s_lshl_b32 s31, s31, 10
    s_add_u32 s31, s31, 73728
    """)
    k.st(2); modpoll(k,'g'); k.st(21)
    k("s_mov_b32 m0, s31\ns_nop 0"); dma(k,30,0,SC)
    tr_addr(k,U,0)
    qs=f2u(192**-0.5*math.log2(math.e))
    k(f"""
    s_cmp_lt_u32 s29, 4
    s_cselect_b32 s30, {qs:#x}, 1.0
    s_cselect_b64 vcc, -1, 0
    s_cselect_b32 s33, -1, -2
    s_and_b32 s33, s42, s33
    s_mul_i32 s33, s33, 12
    s_lshr_b32 s31, s29, 2
    s_mul_i32 s31, s31, {ACT:#x}
    s_and_b32 s32, s29, 3
    s_mul_i32 s32, s32, 3
    s_add_u32 s32, s32, s33
    s_lshl_b32 s32, s32, 10
    s_add_u32 s31, s31, s32
    s_add_u32 s31, s31, {Q_P:#x}
    s_and_b32 s34, s3, 1
    v_bfe_u32 v5, v2, 2, 1
    v_mul_u32_u24 v5, 12288, v5
    v_lshl_add_u32 v5, v3, 8, v5
    v_lshrrev_b32 v6, 3, v2
    v_lshl_add_u32 v5, v6, 6, v5
    v_and_b32 v6, 3, v2
    v_lshl_add_u32 v5, v6, 4, v5
    s_lshl_b32 s6, s34, 7
    v_add_u32 v5, s6, v5
    v_cndmask_b32 v5, v5, v4, vcc
    s_lshl_b32 s35, s28, 6
    s_lshl_b32 s6, s29, 2
    s_add_u32 s35, s35, s6
    v_lshlrev_b32 v6, 5, v3
    v_add_u32 v6, 73728, v6
    s_waitcnt vmcnt(0)
    s_barrier
    """)
    P=BB
    def prd(s):
        b=P+16*(s%2)
        for q in range(2):
            k(f"ds_read_b128 {vr(b+4*q,4)}, v6 offset:{s*128+16*q}\nds_read_b128 {vr(b+8+4*q,4)}, v6 offset:{2048+s*128+16*q}")
    prd(0)
    for s in range(12):
        if s<11: prd(s+1)
        b=P+16*(s%2)
        k(f"s_waitcnt lgkmcnt({4 if s<11 else 0})")
        for j in range(8): k(f"v_dot2_f32_bf16 v{ACC+j}, v{A+4*s+j//2}, v{b+8+j}, v{b+j}")
        for j in range(4): k(f"v_cvt_pk_bf16_f32 v{A+4*s+j}, v{ACC+2*j}, v{ACC+2*j+1}")
    k.st(22)
    k(f"s_cmp_ge_u32 s29, 8\ns_cbranch_scc1 {k.lab('v')}")
    def body(isv):
        items=[(U+(cb%2)+2*(s//6),(s%6)*6144+cb*32) for c in range(3) for s in range(12) for cb in (2*c,2*c+1)]
        def epi(c):
            R=ACC+8*c; D=S+4*(c%2)
            if isv:
                swap_pack(k,R,R+4,D); st4(k,D,5,31); k("s_add_u32 s31, s31, 65536")
            else:
                for j in range(8): k(f"v_mul_f32 v{R+j}, s30, v{R+j}")
                for j in range(4): k(f"v_cvt_pk_bf16_f32 v{D+j}, v{R+2*j}, v{R+2*j+1}")
                st4(k,D,5,31,c*1024)
        def m(i,b):
            c,r=divmod(i,24); s,cb=divmod(r,2)
            if isv: mf(k,ACC+8*c+4*cb,A+4*s,b,s==0)
            else: mf(k,ACC+8*c+4*cb,b,A+4*s,s==0)
            if c and r==4: epi(c-1)
            if i%6==0 and i<54:
                n=i//6
                k(f"s_mov_b32 m0, s36\ns_add_u32 s36, s36, 1024\nbuffer_load_dwordx4 v{XO+n%3}, s[20:23], s37 offen lds")
                if n%3==2: k(f"s_add_u32 s37, s37, {16*768}")
        tr_loop(k,items,BB,8,m,768)
        k("s_nop 7"); epi(2)
    body(False)
    k(f"""
    s_branch {k.lab('p1e')}
    {k.lab('v')}:
    s_sub_u32 s31, s29, 8
    s_mul_i32 s31, s31, 6
    s_mul_i32 s32, s43, 24
    s_add_u32 s31, s31, s32
    s_lshl_b32 s31, s31, 5
    s_and_b32 s32, s42, 63
    s_lshr_b32 s32, s32, 1
    s_add_u32 s31, s31, s32
    s_lshl_b32 s31, s31, 10
    s_lshl_b32 s32, s34, 9
    s_add_u32 s31, s31, s32
    s_add_u32 s31, s31, {VT_P:#x}
    v_and_b32 v5, 1, v3
    v_lshlrev_b32 v5, 15, v5
    v_lshrrev_b32 v6, 1, v3
    v_lshl_add_u32 v5, v6, 8, v5
    v_lshl_add_u32 v5, v2, 4, v5
    """)
    body(True)
    k(f"{k.lab('p1e')}:"); k.st(3)
    signal(k,'1',35)
    k(f"{k.lab('p1x')}:"); k.st(4)

def p3setup(k):
    k(f"""
    s_cmp_ge_u32 s3, 6
    s_cbranch_scc1 {k.lab('p3s')}
    v_mul_u32_u24 v6, 768, v2
    v_lshl_add_u32 v6, v3, 3, v6
    s_mul_i32 s29, s48, {32*768}
    s_lshl_b32 s6, s50, 5
    s_add_u32 s29, s29, s6
    s_add_u32 s30, s29, {16*768}
    """)
    ld(k,XG,2,6,29,srd=12); ld(k,XG+2,2,6,30,srd=12)
    tr_addr(k,U,WOL)
    k(f"s_bitcmp1_b32 s3, 0\ns_cselect_b64 vcc, -1, 0\ns_lshl_b32 s6, s3, 5\nv_cndmask_b32 v{U}, v{U}, v{U+1}, vcc\nv_add_u32 v{U}, s6, v{U}\nv_add_u32 v{U+1}, 36864, v{U}")
    for s in range(12):
        for hh in range(2): k(f"ds_read_b64_tr_b16 {vr(WB+4*s+2*hh,2)}, v{U+s//6} offset:{(s%6)*6144+hh*768}")
    k(f"s_waitcnt lgkmcnt(0)\n{k.lab('p3s')}:")

def p2(k):
    QL=0; PL=24576; VL=57344; ML=155648; SL=157696
    KF=8; SA=56; B2=88; T=120
    k(f"""
    s_lshr_b32 s20, s4, 2
    s_bfe_u32 s21, s4, 0x10001
    s_and_b32 s22, s4, 1
    s_lshl_b32 s22, s22, 1
    s_and_b32 s6, s5, 1
    s_add_u32 s22, s22, s6
    s_lshr_b32 s23, s5, 1
    s_lshl_b32 s24, s20, 6
    s_lshl_b32 s6, s23, 2
    s_add_u32 s24, s24, s6
    s_lshr_b32 s6, s3, 1
    s_add_u32 s25, s24, s6
    s_mul_i32 s25, s25, 12
    s_mul_i32 s26, s21, 6
    s_add_u32 s25, s25, s26
    s_and_b32 s6, s3, 1
    s_mul_i32 s6, s6, 3
    s_add_u32 s25, s25, s6
    s_lshl_b32 s25, s25, 10
    s_add_u32 s25, s25, {Q_P:#x}
    s_lshl_b32 s27, s20, 6
    s_lshl_b32 s6, s22, 4
    s_add_u32 s27, s27, s6
    s_lshl_b32 s6, s3, 1
    s_add_u32 s27, s27, s6
    s_mul_i32 s27, s27, 12
    s_add_u32 s27, s27, s26
    s_lshl_b32 s27, s27, 10
    s_add_u32 s27, s27, {K_P:#x}
    s_add_u32 s36, s27, 12288
    s_mul_i32 s28, s20, 24
    s_mul_i32 s6, s21, 12
    s_add_u32 s28, s28, s6
    s_lshl_b32 s28, s28, 5
    s_lshl_b32 s6, s22, 3
    s_add_u32 s28, s28, s6
    s_add_u32 s28, s28, s3
    s_lshl_b32 s28, s28, 10
    s_add_u32 s28, s28, {VT_P:#x}
    s_lshl_b32 s29, s3, 10
    s_add_u32 s29, s29, {VL}
    """)
    poll(k,'2',f"""
    v_bfe_u32 v6, v0, 2, 2
    v_min_u32 v6, 2, v6
    v_bfe_u32 v7, v0, 1, 1
    s_lshl_b32 s6, s22, 1
    v_add_u32 v7, s6, v7
    s_lshr_b32 s6, s23, 1
    v_mov_b32 v5, s6
    v_cmp_eq_u32 vcc, 0, v6
    s_lshl_b32 s6, s20, 9
    s_lshl_b32 s7, s21, 3
    v_cndmask_b32 v7, v7, v5, vcc
    s_add_u32 s6, s6, s7
    v_lshlrev_b32 v7, 6, v7
    v_lshl_add_u32 v7, v6, 4, v7
    v_and_b32 v6, 1, v0
    v_lshl_add_u32 v7, v6, 2, v7
    v_add_u32 v5, s6, v7
    """)
    k.st()
    k("s_mul_i32 s6, s3, 3072\ns_mov_b32 m0, s6\ns_nop 0")
    for i in range(3): dma(k,25,i*1024,SC)
    for s in range(6):
        if s==4: k("s_add_u32 s27, s27, 4096\ns_add_u32 s36, s36, 4096")
        for kb in range(2): ld(k,KF+24*kb+4*s,4,4,(27,36)[kb],(s%4)*1024,sc=SC)
    k("s_waitcnt vmcnt(12)\ns_barrier"); k.st()
    items=[(4,QL+(qb*6+s)*1024) for s in range(6) for qb in range(4)]
    def mf1(i,b):
        s,qb=divmod(i,4)
        if qb==0:
            k("s_waitcnt vmcnt(10)")
            for t in range(2):
                k(f"s_mov_b32 m0, s29\ns_add_u32 s29, s29, 8192"); dma(k,28,0,SC); k("s_add_u32 s28, s28, 32768")
        for kb in range(2): mf(k,SA+8*qb+4*kb,KF+24*kb+4*s,b,s==0)
    gemm_loop(k,items,B2,8,mf1); k.st()
    k(f"""
    v_and_b32 v5, 63, v0
    v_lshlrev_b32 v5, 5, v5
    v_lshl_add_u32 v5, v1, 2, v5
    v_add_u32 v5, {ML}, v5
    v_lshlrev_b32 v6, 5, v2
    v_add_u32 v6, {ML}, v6
    s_lshl_b32 s6, s3, 10
    s_add_u32 s6, s6, {PL}
    v_add_u32 v7, s6, v4
    """)
    M=KF
    def max8(m,r): k(f"v_max3_f32 v{m}, v{r}, v{r+1}, v{r+2}\nv_max3_f32 v{m}, v{m}, v{r+3}, v{r+4}\nv_max3_f32 v{m}, v{m}, v{r+5}, v{r+6}\nv_max_f32 v{m}, v{m}, v{r+7}")
    for qb in range(4): max8(M+qb,SA+8*qb)
    def treduce(op,addr_off):
        k(f"s_nop 1\nv_permlane32_swap_b32 v{M}, v{M+2}\nv_permlane32_swap_b32 v{M+1}, v{M+3}\ns_nop 1\n{op} v{M}, v{M}, v{M+2}\n{op} v{M+1}, v{M+1}, v{M+3}")
        k(f"s_nop 1\nv_permlane16_swap_b32 v{M}, v{M+1}\ns_nop 1\n{op} v{M}, v{M}, v{M+1}\nds_write_b32 v5, v{M} offset:{addr_off}")
    treduce("v_max_f32",0)
    k("s_waitcnt lgkmcnt(0)\ns_barrier")
    G=KF+8
    for qb in range(4):
        for q in range(2): k(f"ds_read_b128 {vr(G+8*qb+4*q,4)}, v6 offset:{qb*512+16*q}")
    for qb in range(4):
        k(f"s_waitcnt lgkmcnt({6-2*qb})"); max8(T+qb,G+8*qb)
    k("s_mov_b32 s40, 0x3f803f80")
    for qb in range(4):
        r=SA+8*qb
        for j in range(8): k(f"v_sub_f32 v{r+j}, v{r+j}, v{T+qb}")
        for j in range(8): k(f"v_exp_f32 v{r+j}, v{r+j}")
        k("s_nop 0")
        for j in range(4): k(f"v_cvt_pk_bf16_f32 v{B2+4*qb+j}, v{r+2*j}, v{r+2*j+1}")
        k(f"ds_write_b128 v7, {vr(B2+4*qb,4)} offset:{qb*8192}")
        for j in range(4): k(f"v_dot2_f32_bf16 v{M+qb}, v{B2+4*qb+j}, s40, {('v%d'%(M+qb)) if j else 0}")
    k("s_nop 1")
    treduce("v_add_f32",SL-ML)
    k(f"""
    s_and_b32 s30, s3, 3
    s_lshr_b32 s31, s3, 2
    s_mul_i32 s6, s30, 24576
    s_add_u32 s6, s6, {VL}
    v_add_u32 v5, s6, v4
    s_lshl_b32 s6, s31, 14
    s_add_u32 s6, s6, {PL}
    v_add_u32 v7, s6, v4
    s_lshl_b32 s6, s31, 10
    v_add_u32 v6, s6, v6
    s_cmp_eq_u32 s31, 0
    s_cselect_b64 vcc, -1, 0
    v_cndmask_b32 v{T}, v{T+2}, v{T}, vcc
    v_cndmask_b32 v{T+1}, v{T+3}, v{T+1}, vcc
    """)
    k.st(); k("s_waitcnt vmcnt(0) lgkmcnt(0)\ns_barrier"); k.st()
    for qq in range(2):
        for q in range(2): k(f"ds_read_b128 {vr(G+8*qq+4*q,4)}, v6 offset:{SL-ML+qq*512+16*q}")
    OA=SA; items=[]
    for ks in range(8): items+= [(7,qq*8192+ks*1024) for qq in range(2)] + [(5,j*8192+ks*1024) for j in range(3)]
    st={}; n=len(items); B0=128; NB=15; PF=10
    def rd(i):
        a,o=items[i]; k(f"ds_read_b128 {vr(B0+4*(i%NB),4)}, v{a} offset:{o}")
    for i in range(PF): rd(i)
    issued=PF
    for i in range(n):
        ks,t=divmod(i,5); st[t]=B0+4*(i%NB)
        if t>=2:
            k(f"s_waitcnt lgkmcnt({issued-i-1})")
            for qq in range(2): mf(k,OA+8*(t-2)+4*qq,st[t],st[qq],ks==0)
        if issued<n: rd(issued); issued+=1
    k.st()
    for qq in range(2):
        r=G+8*qq
        k(f"v_add_f32 v{r}, v{r}, v{r+1}")
        for j in range(2,8): k(f"v_add_f32 v{r}, v{r}, v{r+j}")
        k(f"v_rcp_f32 v{r+1}, v{r}\nv_log_f32 v{r+2}, v{r}")
    k(f"""
    s_lshl_b32 s6, s31, 1
    s_add_u32 s24, s24, s6
    s_mul_i32 s32, s24, 12288
    s_mul_i32 s6, s22, {ACT:#x}
    s_add_u32 s32, s32, s6
    s_add_u32 s32, s32, {O_P:#x}
    s_mul_i32 s33, s21, 12
    s_mul_i32 s6, s30, 3
    s_add_u32 s33, s33, s6
    s_lshl_b32 s33, s33, 9
    s_add_u32 s32, s32, s33
    v_and_b32 v5, 1, v3
    v_mul_u32_u24 v5, 12288, v5
    v_lshrrev_b32 v6, 1, v3
    v_lshl_add_u32 v5, v6, 8, v5
    v_lshl_add_u32 v5, v2, 4, v5
    """)
    for j in range(3):
        for qq in range(2):
            r=OA+8*j+4*qq
            for t in range(4): k(f"v_mul_f32 v{r+t}, v{r+t}, v{G+8*qq+1}")
        swap_pack(k,OA+8*j,OA+8*j+4,B2+4*j); st4(k,B2+4*j,5,32,j*512)
    k(f"""
    s_lshl_b32 s35, s20, 4
    s_add_u32 s35, s35, s23
    s_lshl_b32 s35, s35, 6
    s_lshl_b32 s6, s21, 4
    s_add_u32 s35, s35, s6
    s_lshl_b32 s6, s22, 2
    s_add_u32 s35, s35, s6
    s_add_u32 s35, s35, 2048
    s_cmp_lg_u32 s30, 0
    s_cbranch_scc1 {k.lab('p2e')}
    v_add_f32 v{T}, v{T}, v{G+2}
    v_add_f32 v{T+1}, v{T+1}, v{G+10}
    v_cmp_eq_u32 vcc, 0, v3
    s_lshl_b32 s6, s22, 1
    s_add_u32 s6, s6, s21
    v_cndmask_b32 v{T}, v{T+1}, v{T}, vcc
    s_lshl_b32 s6, s6, 13
    s_lshl_b32 s7, s24, 6
    s_add_u32 s6, s6, s7
    s_add_u32 s6, s6, {LSE:#x}
    v_lshrrev_b32 v5, 2, v4
    s_mov_b32 exec_hi, 0
    buffer_store_dword v{T}, v5, s[8:11], s6 offen sc1
    s_mov_b64 exec, -1
    {k.lab('p2e')}:
    """)
    signal(k,'2',35); k.st()

FC1L=24576
def p4setup(k):
    k(f"""
    s_lshr_b32 s51, s4, 1
    s_lshl_b32 s51, s51, 2
    s_and_b32 s6, s5, 3
    s_add_u32 s51, s51, s6
    s_and_b32 s52, s4, 1
    s_lshl_b32 s52, s52, 3
    s_lshr_b32 s6, s5, 2
    s_add_u32 s52, s52, s6
    s_lshl_b32 s53, s51, 3
    s_add_u32 s53, s53, s3
    s_lshr_b32 s25, s51, 3
    s_mul_i32 s27, s3, 9216
    s_mul_i32 s28, s52, 73728
    s_add_u32 s28, s28, s27
    s_mul_i32 s29, s25, 0x120000
    s_add_u32 s28, s28, s29
    s_add_u32 s28, s28, {FC1_P:#x}
    s_add_u32 s27, s27, {FC1L}
    """)
    poll(k,'s',"v_lshrrev_b32 v5, 4, v4\nv_min_u32 v5, 47, v5\nv_lshlrev_b32 v5, 2, v5\nv_add_u32 v5, 1024, v5")
    k(f"s_lshr_b32 s6, s48, 5\ns_mul_i32 s31, s6, 9216\ns_lshl_b32 s6, s50, 6\ns_add_u32 s31, s31, s6\ns_add_u32 s31, s31, {768*4}\nv_lshlrev_b32 v7, 4, v3")
    ld(k,XG+4,4,7,31,sc=SC)
    for i in range(9):
        if i%4==0:
            if i: k("s_add_u32 s27, s27, 4096\ns_add_u32 s28, s28, 4096")
            k("s_mov_b32 m0, s27\ns_nop 0")
        dma(k,28,(i%4)*1024,SC)

def p3(k):
    OP=8; LS=56; t=ACC
    k(f"""
    s_lshl_b32 s22, s48, 1
    s_lshr_b32 s6, s3, 2
    s_add_u32 s23, s22, s6
    s_and_b32 s24, s3, 3
    s_mul_i32 s25, s23, 12288
    s_mul_i32 s6, s24, 3072
    s_add_u32 s25, s25, s6
    s_add_u32 s25, s25, {O_P:#x}
    s_lshr_b32 s6, s24, 1
    s_lshl_b32 s26, s6, 13
    s_lshl_b32 s6, s23, 6
    s_add_u32 s26, s26, s6
    s_add_u32 s26, s26, {LSE:#x}
    """)
    poll(k,'3',"s_lshr_b32 s6, s48, 1\ns_lshl_b32 s6, s6, 6\ns_add_u32 s6, s6, 2048\nv_and_b32 v5, 7, v0\nv_lshlrev_b32 v5, 2, v5\nv_add_u32 v5, s6, v5")
    k.st(); k("v_lshlrev_b32 v5, 2, v2")
    for sp in range(4):
        ld(k,LS+sp,1,5,26,sc=SC)
        if sp<3: k("s_add_u32 s26, s26, 16384")
    for i in range(3):
        for sp in range(4):
            k(f"s_add_u32 s6, s25, {sp*ACT:#x}"); ld(k,OP+16*i+4*sp,4,4,6,i*1024,sc=SC)
    k(f"s_waitcnt vmcnt(12)\nv_max3_f32 v{t}, v{LS}, v{LS+1}, v{LS+2}\nv_max_f32 v{t}, v{t}, v{LS+3}")
    for sp in range(4): k(f"v_sub_f32 v{LS+sp}, v{LS+sp}, v{t}")
    for sp in range(4): k(f"v_exp_f32 v{LS+sp}, v{LS+sp}")
    k(f"s_nop 0\nv_add_f32 v{t}, v{LS}, v{LS+1}\nv_add_f32 v{t}, v{t}, v{LS+2}\nv_add_f32 v{t}, v{t}, v{LS+3}\nv_rcp_f32 v{t}, v{t}\ns_mul_i32 s6, s3, 3072")
    for sp in range(4): k(f"v_mul_f32 v{LS+sp}, v{LS+sp}, v{t}")
    k("v_add_u32 v5, s6, v4")
    for i in range(3):
        for sp in range(4):
            k(f"s_waitcnt vmcnt({11-4*i-sp})")
            for j in range(4):
                r=OP+16*i+4*sp+j
                k(f"v_and_b32 v60, 0xffff0000, v{r}\nv_lshlrev_b32 v{r}, 16, v{r}")
                op="v_fmac_f32" if sp else "v_mul_f32"
                k(f"{op} v{t+2*j}, v{r}, v{LS+sp}\n{op} v{t+2*j+1}, v60, v{LS+sp}")
        for j in range(4): k(f"v_cvt_pk_bf16_f32 v{OP+16*i+j}, v{t+2*j}, v{t+2*j+1}")
        k(f"ds_write_b128 v5, {vr(OP+16*i,4)} offset:{i*1024}")
    k(f"""
    s_lshr_b32 s35, s48, 2
    s_lshl_b32 s35, s35, 6
    s_and_b32 s6, s48, 3
    s_lshl_b32 s6, s6, 4
    s_add_u32 s35, s35, s6
    s_lshl_b32 s6, s49, 2
    s_add_u32 s35, s35, s6
    s_add_u32 s35, s35, 4096
    s_waitcnt lgkmcnt(0)
    s_barrier
    """)
    k.st(); k(f"s_cmp_ge_u32 s3, 6\ns_cbranch_scc1 {k.lab('p3e')}")
    items=[(4,(rb*12+s)*1024) for s in range(12) for rb in range(2)]
    gemm_loop(k,items,OP,12,lambda i,b: mf(k,ACC+4*(i%2),WB+4*(i//2),b,i<2))
    k(f"""
    s_mul_i32 s32, s22, 12288
    s_lshl_b32 s6, s50, 9
    s_add_u32 s32, s32, s6
    s_add_u32 s32, s32, {X1_P:#x}
    v_and_b32 v5, 1, v3
    v_mul_u32_u24 v5, 12288, v5
    v_lshrrev_b32 v6, 1, v3
    v_lshl_add_u32 v5, v6, 8, v5
    v_lshl_add_u32 v5, v2, 4, v5
    """)
    for rb in range(2):
        for j in range(2):
            x=XG+2*rb+j; a=ACC+4*rb+2*j
            k(f"v_lshlrev_b32 v8, 16, v{x}\nv_and_b32 v9, 0xffff0000, v{x}\nv_fma_f32 v{a}, v{a}, v{XG+4+2*j}, v8\nv_fma_f32 v{a+1}, v{a+1}, v{XG+4+2*j+1}, v9")
    swap_pack(k,ACC,ACC+4,12); st4(k,12,5,32)
    k(f"{k.lab('p3e')}:")
    signal(k,'3',35); k.st()

def f2addr(q):
    if q<20: return 98304+q*3072
    if q<28: return (q-20)*3072
    return FC1L+(q-28)*3072
RL=FC1L+60*1024
def f2dma(k,q0,q1):
    for q in range(q0,q1,8):
        hi=min(q+8,q1)
        if hi-q<8: k(f"s_cmp_ge_u32 s3, {hi-q}\ns_cbranch_scc1 {k.lab('f2_%d'%q)}")
        k(f"s_add_u32 s6, s57, {(q//2)*32*768}\ns_add_u32 s7, s38, {f2addr(q)}")
        for i in range(3): k(f"s_mov_b32 m0, s7\ns_add_u32 s7, s7, 1024\nbuffer_load_dwordx4 v{U+i}, s[16:19], s6 offen lds")
        if hi-q<8: k(f"{k.lab('f2_%d'%q)}:")
def p5setup(k):
    k(f"""
    s_load_dwordx2 s[16:17], s[0:1], {KOFF['fc2']}
    s_lshl_b32 s54, s4, 2
    s_and_b32 s6, s5, 3
    s_add_u32 s54, s54, s6
    s_lshr_b32 s55, s5, 2
    s_lshl_b32 s56, s54, 2
    s_and_b32 s6, s3, 3
    s_add_u32 s56, s56, s6
    s_mul_i32 s57, s55, 96
    s_and_b32 s6, s3, 1
    s_mul_i32 s6, s6, {768*768}
    s_add_u32 s57, s57, s6
    s_lshr_b32 s6, s3, 1
    s_mul_i32 s6, s6, {32*768}
    s_add_u32 s57, s57, s6
    s_mul_i32 s38, s3, 3072
    s_lshr_b32 s25, s51, 3
    s_mul_i32 s30, s25, 12288
    s_mul_i32 s31, s52, 384
    s_add_u32 s30, s30, s31
    s_add_u32 s30, s30, {UV:#x}
    v_cmp_le_u32 vcc, 384, v4
    v_add_u32 v6, {6144-384}, v4
    s_mov_b32 m0, 159744
    v_cndmask_b32 v6, v4, v6, vcc
    s_cmp_lg_u32 s3, 0
    s_cbranch_scc1 {k.lab('uv')}
    buffer_load_dwordx4 v6, s[8:11], s30 offen sc1 lds
    {k.lab('uv')}:
    """)
    chunk_offs(k,U,6,768,False,U+3)
    k("s_waitcnt lgkmcnt(0)")
    f2dma(k,0,20); f2dma(k,20,28)

def p4(k):
    UU=WB
    k(f"s_mul_i32 s23, s53, 12288\ns_add_u32 s23, s23, {X1_P:#x}")
    poll(k,'4',"s_lshl_b32 s6, s51, 6\ns_add_u32 s6, s6, 4096\nv_lshlrev_b32 v5, 2, v2\nv_add_u32 v5, s6, v5")
    k.st()
    for s in range(12):
        if s and s%4==0: k("s_add_u32 s23, s23, 4096")
        ld(k,A+4*s,4,4,23,(s%4)*1024,sc=SC)
    k(f"""
    v_add_u32 v6, {FC1L}, v4
    v_add_u32 v7, {FC1L+36864}, v4
    s_mul_i32 s32, s53, 48
    s_mul_i32 s33, s52, 3
    s_add_u32 s32, s32, s33
    s_lshl_b32 s32, s32, 10
    s_add_u32 s32, s32, {G_P:#x}
    s_mov_b32 s34, {f2u(-2*math.sqrt(2/math.pi)*math.log2(math.e)*0.044715):#x}
    v_mov_b32 v5, {f2u(-2*math.sqrt(2/math.pi)*math.log2(math.e)):#x}
    s_lshl_b32 s35, s51, 6
    s_lshl_b32 s6, s52, 2
    s_add_u32 s35, s35, s6
    s_add_u32 s35, s35, 5120
    """)
    items=[((6 if f<36 else 7),(f%36)*1024) for s in range(12) for f in range(s,72,12)]
    def m(i,b):
        s,cb=divmod(i,6)
        if cb==0: k(f"s_waitcnt vmcnt({11-s})")
        mf(k,ACC+4*cb,b,A+4*s,s==0)
    gemm_loop(k,items,BB,8,m); k.st()
    k("s_barrier")
    k("v_lshlrev_b32 v6, 4, v3\nv_add_u32 v6, 159744, v6")
    for cb in range(6): k(f"ds_read_b128 {vr(WB+4*cb,4)}, v6 offset:{cb*64}\nds_read_b128 {vr(WB+24+4*cb,4)}, v6 offset:{384+cb*64}")
    f2dma(k,28,48)
    stats(k,A,S,S+4)
    k("s_waitcnt lgkmcnt(0)")
    for i in range(3):
        R=[ACC+8*i+j for j in range(8)]; T=[BB+16+j for j in range(8)]
        for j in range(8): k(f"v_fma_f32 v{R[j]}, -v{S}, v{UU+8*i+j}, v{R[j]}")
        for j in range(8): k(f"v_fma_f32 v{R[j]}, v{R[j]}, v{S+1}, v{UU+24+8*i+j}")
        for j in range(8): k(f"v_mul_f32 v{T[j]}, v{R[j]}, v{R[j]}")
        for j in range(8): k(f"v_fma_f32 v{T[j]}, v{T[j]}, s34, v5")
        for j in range(8): k(f"v_mul_f32 v{T[j]}, v{T[j]}, v{R[j]}")
        for j in range(8): k(f"v_exp_f32 v{T[j]}, v{T[j]}")
        for j in range(8): k(f"v_add_f32 v{T[j]}, 1.0, v{T[j]}")
        for j in range(8): k(f"v_rcp_f32 v{T[j]}, v{T[j]}")
        for j in range(8): k(f"v_mul_f32 v{R[j]}, v{R[j]}, v{T[j]}")
        for j in range(4): k(f"v_cvt_pk_bf16_f32 v{BB+4*i+j}, v{R[2*j]}, v{R[2*j+1]}")
        st4(k,BB+4*i,4,32,i*1024)
    k.st()
    signal(k,'4',35); k.st()

def p5(k):
    X5=WB
    k(f"""
    s_lshr_b32 s23, s3, 2
    s_mul_i32 s25, s56, 49152
    s_mul_i32 s6, s23, 24576
    s_add_u32 s25, s25, s6
    s_add_u32 s25, s25, {G_P:#x}
    s_mul_i32 s29, s56, 12288
    s_mul_i32 s6, s55, 1536
    s_add_u32 s29, s29, s6
    s_add_u32 s29, s29, {X1_P:#x}
    s_lshr_b32 s6, s54, 4
    s_mul_i32 s30, s6, 9216
    s_mul_i32 s6, s55, 192
    s_add_u32 s30, s30, s6
    s_add_u32 s30, s30, {1920*4}
    """)
    poll(k,'5',"s_lshr_b32 s6, s54, 1\ns_lshl_b32 s6, s6, 6\ns_add_u32 s6, s6, 5120\nv_lshlrev_b32 v5, 2, v2\nv_add_u32 v5, s6, v5")
    k.st()
    def lda(s):
        if s and s%4==0: k("s_add_u32 s25, s25, 4096")
        ld(k,A+4*s,4,4,25,(s%4)*1024,sc=SC)
    for s in range(12): lda(s)
    k(f"""
    s_mul_i32 s6, s23, 3072
    v_lshrrev_b32 v5, 2, v2
    v_lshl_add_u32 v5, v3, 2, v5
    v_mul_u32_u24 v5, 96, v5
    v_and_b32 v6, 3, v2
    v_lshl_add_u32 v5, v6, 3, v5
    v_add_u32 v5, s6, v5
    v_add_u32 v6, 61440, v5
    v_add_u32 v7, 61440, v6
    v_lshlrev_b32 v1, 4, v3
    v_lshrrev_b32 v{S}, 1, v3
    v_lshlrev_b32 v{S}, 8, v{S}
    v_lshl_add_u32 v{S}, v2, 4, v{S}
    v_and_b32 v{S+1}, 1, v3
    v_lshl_add_u32 v{S}, v{S+1}, 3, v{S}
    """)
    items=[(5+f2addr(2*(n//3))//61440,f2addr(2*(n//3))%61440+(n%3)*32) for n in range(72)]
    def m(i,b):
        s,cb=divmod(i,3)
        if cb==0:
            k(f"s_waitcnt vmcnt({11 if s<12 else 23-s+6})")
            if s<12: lda(12+s)
            if s==11:
                for c in range(3):
                    ld(k,X5+2*c,2,S,29,c*512,sc=SC); ld(k,X5+8+4*c,4,1,30,c*64,sc=SC)
        mf(k,ACC+4*cb,b,A+4*s,s==0)
    tr_loop(k,items,BB,8,m,1536); k.st()
    k(f"""
    s_and_b32 s6, s3, 3
    s_mul_i32 s6, s6, 3072
    s_add_u32 s6, s6, {RL}
    v_add_u32 v5, s6, v4
    s_cmp_eq_u32 s23, 0
    s_cbranch_scc1 {k.lab('lo')}
    s_nop 4
    """)
    for cb in range(3): k(f"ds_write_b128 v5, {vr(ACC+4*cb,4)} offset:{cb*1024}")
    k(f"s_waitcnt lgkmcnt(0)\ns_barrier\ns_endpgm\n{k.lab('lo')}:")
    k(f"v_mul_u32_u24 v6, 768, v2\nv_lshl_add_u32 v6, v3, 3, v6\ns_mul_i32 s31, s56, {16*768}\ns_mul_i32 s6, s55, 96\ns_add_u32 s31, s31, s6\ns_barrier")
    for cb in range(3): k(f"ds_read_b128 {vr(BB+4*cb,4)}, v5 offset:{cb*1024}")
    k("s_waitcnt vmcnt(0) lgkmcnt(0)")
    for cb in range(3):
        for t in range(4): k(f"v_add_f32 v{ACC+4*cb+t}, v{ACC+4*cb+t}, v{BB+4*cb+t}")
        for j in range(2):
            x=X5+2*cb+j
            k(f"v_lshlrev_b32 v8, 16, v{x}\nv_and_b32 v9, 0xffff0000, v{x}")
            k(f"v_fma_f32 v8, v{ACC+4*cb+2*j}, v{X5+8+4*cb+2*j}, v8\nv_fma_f32 v9, v{ACC+4*cb+2*j+1}, v{X5+8+4*cb+2*j+1}, v9\nv_cvt_pk_bf16_f32 v{x}, v8, v9")
        k(f"buffer_store_dwordx2 {vr(X5+2*cb,2)}, v6, s[44:47], s31 offen offset:{cb*32}")

def km():
    k=K(NAME,256,512,163840,256,sgpr=102)
    k(f"s_cmp_ge_u32 s2, 256\ns_cbranch_scc1 {k.lab('end')}")
    k.srds([('ws',8),('x',12),('fc1',16),('wo',20),('wqkv',24),('c',28),('wmod',32),('out',44),('dbg',96)])
    k("v_lshrrev_b32 v1, 6, v0\nv_and_b32 v2, 15, v0\nv_readfirstlane_b32 s3, v1\nv_bfe_u32 v3, v0, 4, 2\nv_and_b32 v4, 63, v0\nv_lshlrev_b32 v4, 4, v4\ns_and_b32 s4, s2, 7\ns_lshr_b32 s5, s2, 3")
    p1(k); p3setup(k); p2(k); p4setup(k); p3(k); p5setup(k); p4(k); p5(k)
    k(f"{k.lab('end')}:\ns_endpgm")
    return k
```

```python
MOD=0; UV=0x8000; LSE=0x10000; WQKV_P=0x20000; WO_P=0x100000; FC2_P=0x180000; FC1_P=0x300000
Q_P=0x600000; K_P=0x780000; VT_P=0x900000; O_P=0xB00000; X1_P=0x1100000; G_P=0x1300000; XN_P=0x1900000; WS_END=0x1A80000; AQ=0x5000; FL=0x40000
ACT=0x180000
SZ=dict(x=2*1024*384*2,c=2*384*2,wqkv=384*1152*2,wo=384*384*2,wmod=384*2304*2,fc1=384*1536*2,fc2=1536*384*2,out=2*1024*384*2,dbg=256,ws=WS_END)
KOFF=dict(x=0,c=8,wqkv=16,wo=24,wmod=32,fc1=40,fc2=48,out=56,dbg=64,ws=72)

DIAG=False
DOC="""; One persistent launch: 256 workgroups x 8 waves, one per CU; phases hand data over through d_ws
"""
import os
EARLY=bool(os.environ.get('EARLY'))
class K:
    kidx=0
    def __init__(s,name,grid,block,lds,vgpr,sgpr=96,agpr=0):
        s.name=name; s.grid=grid; s.block=block; s.lds=lds; s.vgpr=vgpr; s.sgpr=sgpr; s.agpr=agpr; s.L=[]; s.nst=1
    def __call__(s,txt):
        for l in txt.strip('\n').split('\n'):
            l=l.strip()
            if l: s.L.append(('' if l.endswith(':') else '    ')+l)
    def st(s,i=None):
        if not DIAG: return
        if EARLY and i is None: return
        if i is not None and i>=100:
            if not EARLY: return
            i-=100
        if i is None: i=s.nst
        s.nst=i+1
        s(f"s_memtime s[94:95]\ns_waitcnt lgkmcnt(0)\ns_mov_b32 s{64+i}, s94")
    def fin(s):
        if not DIAG: return
        idx=0
        L=["    s_cmp_lt_u32 s2, 256","    s_cbranch_scc1 "+s.lab('go'),"    s_endpgm",s.lab('go')+":","    s_memrealtime s[60:61]","    s_memtime s[94:95]"]+[f"    s_mov_b32 s{64+i}, 0" for i in range(24)]+["    v_readfirstlane_b32 s100, v0","    s_waitcnt lgkmcnt(0)","    s_mov_b32 s64, s94"]
        body=[('    s_branch '+s.lab('dump') if l.strip()=='s_endpgm' else l) for l in s.L]
        D=[s.lab('dump')+':','    s_waitcnt vmcnt(0)','    s_memtime s[94:95]','    s_memrealtime s[62:63]',
           '    s_load_dwordx2 s[88:89], s[0:1], 72','    s_mov_b32 s90, 0x2000000','    s_mov_b32 s91, 0x20000','    s_mov_b64 exec, -1',
           '    s_waitcnt lgkmcnt(0)','    s_mov_b32 s87, s94','    s_lshr_b32 s92, s100, 6',
           '    s_lshl_b32 s93, s2, 3','    s_add_u32 s93, s93, s92','    s_lshl_b32 s93, s93, 7',f'    s_add_u32 s93, s93, {0x1B00000+idx*0x48000:#x}',
           '    v_mov_b32 v0, 0']
        regs=[60,62]+[64+i for i in range(24)]
        for j,r in enumerate(regs):
            D+=[f'    v_mov_b32 v1, s{r}',f'    buffer_store_dword v1, v0, s[88:91], s93 offen offset:{4*j}']
        if os.environ.get('HDBG'):
            D=D[:10]+['    s_cmp_lg_u32 s2, 100','    s_cbranch_scc1 '+s.lab('dx'),'    s_cmp_ge_u32 s100, 64','    s_cbranch_scc1 '+s.lab('dx'),'    v_mov_b32 v0, 0']
            for j,r in zip([1,2,3,5,6,7,9,10,11,13,14],[1,2,21,22,3,5,11,12,15,19,23]):
                D+=[f'    s_sub_u32 s92, s{64+r}, s64','    v_mov_b32 v1, s92',f'    buffer_store_dword v1, v0, s[96:99], 0 offen offset:{4*j}']
            D+=['    s_sub_u32 s92, s62, s60','    v_mov_b32 v1, s92','    buffer_store_dword v1, v0, s[96:99], 0 offen offset:60',s.lab('dx')+':']
        D+=['    s_endpgm']
        s.L=L+body+D; s.sgpr=102
    def lab(s,n): return f"L_{s.name}_{n}"
    def srds(s,lst):
        for b,r in lst: s(f"s_load_dwordx2 s[{r}:{r+1}], s[0:1], {KOFF[b]}")
        for b,r in lst:
            s(f"s_mov_b32 s{r+2}, {SZ[b]:#x}"); s(f"s_mov_b32 s{r+3}, 0x20000")
    def text(s):
        return f".globl {s.name}\n.p2align 8\n.type {s.name},@function\n{s.name}:\n"+'\n'.join(s.L)+"\n"
    def desc(s):
        acc=(s.vgpr+3)//4*4
        tot=acc+s.agpr if s.agpr else s.vgpr
        return f""".p2align 6
.amdhsa_kernel {s.name}
  .amdhsa_next_free_vgpr {tot}
  .amdhsa_next_free_sgpr {s.sgpr}
  .amdhsa_accum_offset {acc}
  .amdhsa_group_segment_fixed_size 0
  .amdhsa_kernarg_size 80
  .amdhsa_user_sgpr_count 2
  .amdhsa_user_sgpr_kernarg_segment_ptr 1
  .amdhsa_system_sgpr_workgroup_id_x 1
.end_amdhsa_kernel
"""
    def launch(s): return f"; @launch "+("" if s.name.startswith("standalone") and not DIAG else f"kernel={s.name} ")+f"grid=({s.grid},1,1) block=({s.block},1,1) lds={s.lds}\n"

def vr(a,n): return f"v[{a}:{a+n-1}]" if n>1 else f"v{a}"

def xreduce(k,regs,tmp,op):
    for sw in ("v_permlane32_swap_b32","v_permlane16_swap_b32"):
        for r,t in zip(regs,tmp): k(f"v_mov_b32 v{t}, v{r}")
        k("s_nop 1")
        for r,t in zip(regs,tmp): k(f"{sw} v{r}, v{t}")
        k("s_nop 1")
        for r,t in zip(regs,tmp): k(f"{op} v{r}, v{r}, v{t}")

def build(kernels,path):
    hdr=open('standalone__dit_block__diffusion.s.ref').read().split('; Override')[0]
    s=hdr+''.join(k.launch() for k in kernels)
    s+='.amdgcn_target "amdgcn-amd-amdhsa--gfx950"\n'+DOC+'.text\n'
    seen=set(); uniq=[]
    for k in kernels:
        if k.name not in seen: seen.add(k.name); uniq.append(k)
    for k in uniq: k.fin()
    s+=''.join(k.text() for k in uniq)
    s+='.section .rodata,"a"\n'+''.join(k.desc() for k in uniq)
    open(path,'w').write(s)

def gemm_loop(k, items, breg0, nbuf, mf):
    n=len(items)
    def rd(i):
        a,o=items[i]; k(f"ds_read_b128 {vr(breg0+4*(i%nbuf),4)}, v{a} offset:{o}")
    pre=min(nbuf-1,n)
    for i in range(pre): rd(i)
    issued=pre
    for i in range(n):
        if issued<n:
            rd(issued); issued+=1
        k(f"s_waitcnt lgkmcnt({issued-i-1})")
        mf(i, breg0+4*(i%nbuf))
```

```python
from common import *
from k14 import f2u, stats, stats_fin
import math, os
SC=" sc1"
SLP=int(os.environ.get('SLP','3'))
NAME='standalone__dit_block__diffusion_kernel'
def mf(k,c,a,b,first): k(f"v_mfma_f32_16x16x32_bf16 {vr(c,4)}, {vr(a,4)}, {vr(b,4)}, {0 if first else vr(c,4)}")
def ld(k,dst,n,voff,soff,off=0,srd=8,sc=""):
    w={1:"dword",2:"dwordx2",4:"dwordx4"}[n]
    k(f"buffer_load_{w} {vr(dst,n)}, v{voff}, s[{srd}:{srd+3}], s{soff} offen"+(f" offset:{off}" if off else "")+sc)
def dma(k,soff,off=0,sc=""): k(f"buffer_load_dwordx4 v4, s[8:11], s{soff} offen"+(f" offset:{off}" if off else "")+sc+" lds")
def st4(k,src,voff,soff,off=0): k(f"buffer_store_dwordx4 {vr(src,4)}, v{voff}, s[8:11], s{soff} offen"+(f" offset:{off}" if off else "")+SC)

def signal(k,name,soff,n=0):
    k(f"s_waitcnt vmcnt({n})\ns_barrier\ns_cmp_lg_u32 s3, 0\ns_cbranch_scc1 {k.lab('sg'+name)}")
    k(f"v_mov_b32 v5, 0\nv_mov_b32 v6, 1\ns_lshl_b32 s{soff}, s{soff}, 5\ns_add_u32 s{soff}, s{soff}, {FL:#x}\ns_mov_b64 exec, 1\nbuffer_store_dword v6, v5, s[8:11], s{soff} offen sc1\ns_mov_b64 exec, -1")
    k(f"{k.lab('sg'+name)}:")
def poll(k,name,setup,pw=7,drain=False,bar=True):
    k(f"s_cmp_lg_u32 s3, {pw}\ns_cbranch_scc1 {k.lab('pd'+name)}")
    k(setup)
    k(f"v_lshlrev_b32 v5, 5, v5\ns_mov_b32 s6, {FL:#x}\ns_mov_b32 s7, 0\n{k.lab('pl'+name)}:")
    k(f"buffer_load_dword v6, v5, s[8:11], s6 offen sc1\ns_waitcnt vmcnt(0)\nv_cmp_eq_u32 vcc, 0, v6\ns_add_u32 s7, s7, 1\ns_cmp_ge_u32 s7, 0x10000\ns_cbranch_scc1 {k.lab('pd'+name)}\ns_nop 2")
    k(f"s_cbranch_vccz {k.lab('pd'+name)}\ns_sleep {SLP}\ns_branch {k.lab('pl'+name)}\n{k.lab('pd'+name)}:")
    if drain: k("s_waitcnt vmcnt(0)")
    if bar: k("s_barrier")
def swap_pack(k,X,Y,D):
    k(f"v_cvt_pk_bf16_f32 v{D}, v{X}, v{X+1}\nv_cvt_pk_bf16_f32 v{D+1}, v{X+2}, v{X+3}\nv_cvt_pk_bf16_f32 v{D+2}, v{Y}, v{Y+1}\nv_cvt_pk_bf16_f32 v{D+3}, v{Y+2}, v{Y+3}")
    k(f"s_nop 1\nv_permlane16_swap_b32 v{D}, v{D+2}\nv_permlane16_swap_b32 v{D+1}, v{D+3}\ns_nop 0")

ON=192; SM=184; GR=188
def ones(k):
    for j in range(4): k(f"v_mov_b32 v{ON+j}, 0x3f803f80")
def mstat(k,a,first): mf(k,SM,ON,a,first); mf(k,GR,a,a,first)
def mstat_fin(k,S):
    k(f"""
    v_and_b32 v{S+2}, 1, v2
    v_cmp_eq_u32 vcc, 0, v{S+2}
    v_and_b32 v{S+2}, 2, v2
    v_lshrrev_b32 v{S+3}, 2, v2
    v_cndmask_b32 v{GR}, v{GR+1}, v{GR}, vcc
    v_cndmask_b32 v{GR+2}, v{GR+3}, v{GR+2}, vcc
    v_cmp_eq_u32 vcc, 0, v{S+2}
    v_mul_f32 v{S}, {f2u(1/384):#x}, v{SM}
    s_nop 0
    v_cndmask_b32 v{GR}, v{GR+2}, v{GR}, vcc
    v_cmp_eq_u32 vcc, v3, v{S+3}
    s_nop 1
    v_cndmask_b32 v{S+1}, 0, v{GR}, vcc
    """)
    xreduce(k,[S+1],[S+2],"v_add_f32")
    k(f"v_mul_f32 v{S+1}, {f2u(1/384):#x}, v{S+1}\nv_fma_f32 v{S+1}, -v{S}, v{S}, v{S+1}\nv_max_f32 v{S+1}, 0, v{S+1}\nv_add_f32 v{S+1}, {f2u(1e-5):#x}, v{S+1}\nv_rsq_f32 v{S+1}, v{S+1}\ns_nop 0")
def pk(op,d,*src):
    o=[];lo=[];hi=[];ng=[]
    for x in src:
        if isinstance(x,int): assert x%2==0; o.append(vr(x,2)); lo.append(0); hi.append(1); ng.append(0)
        else: o.append(vr(x[1]&~1,2)); lo.append(x[1]&1); hi.append(x[1]&1); ng.append(int(x[0]=='nb'))
    f=lambda l:"["+",".join(map(str,l))+"]"
    assert d%2==0
    return f"v_pk_{op}_f32 {vr(d,2)}, "+", ".join(o)+f" op_sel:{f(lo)} op_sel_hi:{f(hi)}"+(f" neg_lo:{f(ng)} neg_hi:{f(ng)}" if any(ng) else "")
A=8; ACC=104; BB=128; S=160; U=168; WB=200; XG=248

LOC=int(os.environ.get('LOC','1'))
MAP2=("s_bfe_u32 s21, s5, 0x10002\ns_lshr_b32 s22, s5, 3\ns_and_b32 s23, s4, 3\ns_lshl_b32 s23, s23, 2\ns_and_b32 s6, s5, 3\ns_add_u32 s23, s23, s6" if LOC else
      "s_bfe_u32 s21, s4, 0x10001\ns_and_b32 s22, s4, 1\ns_lshl_b32 s22, s22, 1\ns_and_b32 s6, s5, 1\ns_add_u32 s22, s22, s6\ns_lshr_b32 s23, s5, 1")
MAP4=("s_lshl_b32 s51, s4, 1\ns_and_b32 s6, s5, 1\ns_add_u32 s51, s51, s6\ns_lshr_b32 s52, s5, 1" if LOC else
      "s_lshr_b32 s51, s4, 1\ns_lshl_b32 s51, s51, 2\ns_and_b32 s6, s5, 3\ns_add_u32 s51, s51, s6\ns_and_b32 s52, s4, 1\ns_lshl_b32 s52, s52, 3\ns_lshr_b32 s6, s5, 2\ns_add_u32 s52, s52, s6")
WOL=77824
def tr_loop(k,items,breg0,nbuf,mfn,hoff):
    n=len(items)
    def rd(i):
        a,o=items[i]; r=breg0+4*(i%nbuf)
        k(f"ds_read_b64_tr_b16 {vr(r,2)}, v{a} offset:{o}\nds_read_b64_tr_b16 {vr(r+2,2)}, v{a} offset:{o+hoff}")
    pre=min(nbuf-1,n)
    for i in range(pre): rd(i)
    issued=pre
    for i in range(n):
        k(f"s_waitcnt lgkmcnt({2*(issued-i-1)})")
        mfn(i, breg0+4*(i%nbuf))
        if issued<n: rd(issued); issued+=1
def chunk_offs(k,dst,per,stride,swz,t):
    k(f"s_mov_b32 s6, {(2**32+per-1)//per:#x}\ns_mov_b32 s7, {stride}")
    for i in range(3):
        d=dst+i
        k(f"v_lshrrev_b32 v{t}, 4, v4\nv_add_u32 v{t}, {64*i}, v{t}\nv_mul_hi_u32 v{d}, v{t}, s6\nv_mul_u32_u24 v{t+1}, {per}, v{d}\nv_sub_u32 v{t}, v{t}, v{t+1}")
        if swz: k(f"v_lshrrev_b32 v{t+1}, 2, v{d}\nv_and_b32 v{t+1}, 2, v{t+1}\nv_xor_b32 v{t}, v{t}, v{t+1}")
        k(f"v_mul_lo_u32 v{d}, v{d}, s7\nv_lshl_add_u32 v{d}, v{t}, 4, v{d}")
def w_dma(k,srd,vo,sl,sg,stride):
    for g in range(3):
        for i in range(3):
            k(f"s_mov_b32 m0, s{sl}\ns_add_u32 s{sl}, s{sl}, 1024\nbuffer_load_dwordx4 v{vo+i}, s[{srd}:{srd+3}], s{sg} offen lds")
        k(f"s_add_u32 s{sg}, s{sg}, {16*stride}")
def tr_addr(k,d,base):
    k(f"v_lshrrev_b32 v{d}, 2, v2\nv_lshl_add_u32 v{d}, v3, 3, v{d}\nv_mul_u32_u24 v{d}, 192, v{d}\nv_and_b32 v{d+1}, 3, v2\nv_lshl_add_u32 v{d}, v{d+1}, 3, v{d}\nv_add_u32 v{d}, {base}, v{d}")
    k(f"v_and_b32 v{d+2}, 1, v3\nv_lshlrev_b32 v{d+2}, 5, v{d+2}\nv_sub_u32 v{d+1}, v{d}, v{d+2}\nv_add_u32 v{d}, v{d}, v{d+2}\nv_add_u32 v{d+2}, 36864, v{d}\nv_add_u32 v{d+3}, 36864, v{d+1}")
def wo_dma(k,U=U,setup_only=False):
    chunk_offs(k,U,12,768,True,U+3)
    k(f"s_mul_i32 s36, s3, 9216\ns_add_u32 s36, s36, {WOL}\ns_mul_i32 s37, s3, {48*768}\ns_mul_i32 s6, s49, 192\ns_add_u32 s37, s37, s6")
    if not setup_only: w_dma(k,20,U,36,37,768)
def modpoll(k,name,sl=SLP,both=False):
    ex='v_and_b32 v6, 1, v3\nv_lshlrev_b32 v5, 2, v6\n' if both else ''
    k(f"s_cmp_lg_u32 s3, 7\ns_cbranch_scc1 {k.lab('pd'+name)}\nv_mov_b32 v5, 0\n{ex}s_mov_b32 s7, 0\n{k.lab('pl'+name)}:")
    k(f"buffer_load_dword v6, v5, s[96:99], 0 offen sc1\ns_waitcnt vmcnt(0)\nv_cmp_eq_u32 vcc, 0, v6\ns_add_u32 s7, s7, 1\ns_cmp_ge_u32 s7, 0x10000\ns_cbranch_scc1 {k.lab('pd'+name)}\ns_nop 2")
    k(f"s_cbranch_vccz {k.lab('pd'+name)}\ns_sleep {sl}\ns_branch {k.lab('pl'+name)}\n{k.lab('pd'+name)}:\ns_barrier")

def touch(k,lst,name):
    k(f"s_sub_u32 s6, s2, 64\ns_lshl_b32 s6, s6, 1\ns_and_b32 s7, s3, 1\ns_add_u32 s6, s6, s7\ns_lshl_b32 s6, s6, 12\nv_lshlrev_b32 v7, 2, v4\ns_lshr_b32 s7, s3, 1")
    for i,srd in enumerate(lst):
        k(f"s_cmp_lg_u32 s7, {i}\ns_cbranch_scc1 {k.lab('t%s%d'%(name,i))}\nbuffer_load_dword v199, v7, s[{srd}:{srd+3}], s6 offen\n{k.lab('t%s%d'%(name,i))}:")
def pmod(k):
    k("""
    v_and_b32 v8, 7, v0
    v_lshrrev_b32 v9, 3, v0
    v_mul_u32_u24 v10, 27648, v9
    v_lshl_add_u32 v10, v8, 4, v10
    v_mul_u32_u24 v11, 12, v9
    s_lshl_b32 s7, s2, 7
    """)
    for b in range(2): k(f"buffer_load_dwordx3 v[{80+4*b}:{82+4*b}], v11, s[28:31], 0 offen offset:{b*768}")
    for i in range(6):
        k(f"buffer_load_dwordx4 {vr(16+4*i,4)}, v10, s[32:35], s7 offen")
        if i<5: k(f"s_add_u32 s7, s7, 4608")
    k("s_waitcnt vmcnt(6)"); k.st(106)
    for r in range(40,52):
        src=80+4*((r-40)//6)+((r-40)%6)//2
        k(f"v_and_b32 v{r}, 0xffff0000, v{src}" if r%2 else f"v_lshlrev_b32 v{r}, 16, v{src}")
    for r in range(40,52): k(f"v_mul_f32 v{r+12}, 0xbfb8aa3b, v{r}\nv_exp_f32 v{r+12}, v{r+12}")
    for r in range(40,52): k(f"v_add_f32 v{r+12}, 1.0, v{r+12}\nv_rcp_f32 v{r+12}, v{r+12}")
    for r in range(40,52): k(f"v_mul_f32 v{r}, v{r}, v{r+12}\nv_cvt_pk_bf16_f32 v{r}, v{r}, v{r}\nv_lshlrev_b32 v{r}, 16, v{r}")
    AC=[64,72]
    for i in range(6):
        k(f"s_waitcnt vmcnt({5-i})")
        for j in range(4):
            k(f"v_lshlrev_b32 v5, 16, v{16+4*i+j}\nv_and_b32 v6, 0xffff0000, v{16+4*i+j}")
            op="v_fmac_f32" if i else "v_mul_f32"
            for b in range(2): k(f"{op} v{AC[b]+2*j}, v5, v{40+b*6+i}\n{op} v{AC[b]+2*j+1}, v6, v{40+b*6+i}")
    k.st(107)
    k(f"s_cmp_ge_u32 s2, 12\ns_cbranch_scc1 {k.lab('nz')}\nv_mov_b32 v12, 0\nv_mov_b32 v13, 0\nv_mov_b32 v14, 0\nv_mov_b32 v15, 0\nv_lshlrev_b32 v5, 4, v0\ns_lshl_b32 s6, s2, 14\ns_add_u32 s6, s6, {FL:#x}")
    k(f"buffer_store_dwordx4 v[12:15], v5, s[8:11], s6 offen sc1\ns_add_u32 s6, s6, 8192\nbuffer_store_dwordx4 v[12:15], v5, s[8:11], s6 offen sc1\n{k.lab('nz')}:")
    k("s_nop 1")
    for r in range(64,80): k(f"v_add_f32_dpp v{r}, v{r}, v{r} row_ror:8 row_mask:0xf bank_mask:0xf")
    k("s_nop 1")
    for j in range(8): k(f"v_permlane32_swap_b32 v{64+j}, v{72+j}")
    for j in range(8): k(f"v_add_f32 v{64+j}, v{64+j}, v{72+j}")
    k("s_nop 1")
    for j in range(4): k(f"v_permlane16_swap_b32 v{64+j}, v{68+j}")
    k("v_lshlrev_b32 v5, 9, v1\nv_lshl_add_u32 v5, v8, 6, v5\nv_lshl_add_u32 v5, v3, 4, v5")
    for j in range(4): k(f"v_add_f32 v{64+j}, v{64+j}, v{68+j}")
    k("ds_write_b128 v5, v[64:67]")
    k(f"s_waitcnt lgkmcnt(0)\ns_barrier\ns_cmp_ge_u32 s3, 2\ns_cbranch_scc1 {k.lab('m2')}\nv_lshlrev_b32 v5, 2, v0")
    for p in range(8): k(f"ds_read_b32 v{16+p}, v5 offset:{p*512}")
    k("s_waitcnt lgkmcnt(0)")
    for st in (4,2,1):
        for p in range(st): k(f"v_add_f32 v{16+p}, v{16+p}, v{16+p+st}")
    k(f"""
    v_cvt_pk_bf16_f32 v8, v16, v16
    v_lshlrev_b32 v8, 16, v8
    s_sub_u32 s7, s2, 6
    s_cmp_lt_u32 s7, 6
    s_cselect_b32 s6, 1.0, 0
    s_sub_u32 s7, s2, 24
    s_cmp_lt_u32 s7, 6
    s_cselect_b32 s6, 1.0, s6
    v_add_f32 v8, s6, v8
    v_cvt_pk_bf16_f32 v8, v8, v8
    v_lshlrev_b32 v8, 16, v8
    v_lshrrev_b32 v5, 4, v0
    v_lshlrev_b32 v5, 5, v5
    v_and_b32 v6, 7, v0
    v_lshl_add_u32 v5, v6, 2, v5
    v_bfe_u32 v6, v0, 3, 1
    v_mul_u32_u24 v6, 9216, v6
    v_add_u32 v5, v5, v6
    s_lshl_b32 s6, s2, 8
    buffer_store_dword v8, v5, s[8:11], s6 offen sc1
    {k.lab('m2')}:
    """); k.st(108); k(f"""
    s_waitcnt vmcnt(0)
    s_barrier
    """); k.st(109); k(f"""
    s_cmp_lg_u32 s3, 0
    s_cbranch_scc1 {k.lab('m3')}
    s_cmp_lt_u32 s2, 12
    s_cselect_b32 s6, 0, 4
    s_sub_u32 s7, s2, 12
    s_cmp_lt_u32 s7, 6
    s_cbranch_scc1 {k.lab('m3')}
    s_cmp_ge_u32 s2, 30
    s_cbranch_scc1 {k.lab('m3')}
    v_mov_b32 v5, 0
    v_mov_b32 v6, 1
    s_mov_b64 exec, 1
    buffer_atomic_add v6, v5, s[96:99], s6 offen offset:128 sc0 sc1
    s_waitcnt vmcnt(0)
    v_readfirstlane_b32 s7, v6
    s_nop 3
    s_cmp_lg_u32 s7, 11
    s_cbranch_scc1 {k.lab('m4')}
    buffer_store_dword v6, v5, s[96:99], s6 offen sc1
    {k.lab('m4')}:
    s_mov_b64 exec, -1
    {k.lab('m3')}:
    """)

def pfc1(k):
    F=8; PQ=32; O=128; T=152
    k(f"""
    s_sub_u32 s24, s2, 36
    v_lshrrev_b32 v5, 7, v4
    v_mul_u32_u24 v5, 3072, v5
    v_and_b32 v6, 0x70, v4
    v_add_u32 v5, v5, v6
    s_mul_i32 s25, s3, 6144
    s_mul_i32 s26, s3, {48*3072}
    s_lshl_b32 s6, s24, 7
    s_add_u32 s26, s26, s6
    """)
    for i in range(6): k(f"s_mov_b32 m0, s25\ns_add_u32 s25, s25, 1024\nbuffer_load_dwordx4 v5, s[16:19], s26 offen lds\ns_add_u32 s26, s26, {8*3072}")
    wo_dma(k)
    k(f"""
    s_lshr_b32 s27, s3, 1
    s_and_b32 s25, s3, 1
    v_lshrrev_b32 v7, 2, v2
    v_lshl_add_u32 v7, v3, 3, v7
    v_lshlrev_b32 v7, 7, v7
    v_and_b32 v6, 3, v2
    v_lshl_add_u32 v7, v6, 3, v7
    s_mul_i32 s6, s25, 24576
    s_lshl_b32 s7, s27, 5
    s_add_u32 s6, s6, s7
    v_add_u32 v7, s6, v7
    s_lshl_b32 s6, s24, 2
    s_add_u32 s27, s27, s6
    s_min_u32 s6, s3, 5
    s_lshl_b32 s37, s6, 10
    s_cmp_ge_u32 s6, 3
    s_cselect_b32 s26, {9216-3072}, 0
    s_add_u32 s26, s26, s37
    s_add_u32 s26, s26, {1152*4:#x}
    s_add_u32 s37, s37, 53248
    s_mul_i32 s36, s27, 12288
    s_mul_i32 s6, s25, 6144
    s_add_u32 s36, s36, s6
    s_add_u32 s36, s36, {FC1_P:#x}
    s_mov_b32 s40, 0x3f803f80
    s_waitcnt vmcnt(0)
    """)
    ones(k); modpoll(k,'f',6,True)
    k("s_mov_b32 m0, s37\ns_nop 0"); dma(k,26,0,SC)
    for i in range(6): k(f"ds_read_b64_tr_b16 {vr(F+4*i,2)}, v7 offset:{i*4096}\nds_read_b64_tr_b16 {vr(F+4*i+2,2)}, v7 offset:{i*4096+512}")
    k("v_lshlrev_b32 v6, 5, v3\ns_mul_i32 s6, s25, 768\ns_add_u32 s6, s6, 53248\nv_add_u32 v6, s6, v6\ns_waitcnt vmcnt(0) lgkmcnt(0)\ns_barrier")
    for b in range(2):
        k("s_add_u32 s37, s36, 4096")
        u=S+2*b
        for i in range(6):
            if i%3==0:
                for ii in range(i,i+3):
                    for q in range(2):
                        k(f"ds_read_b128 {vr(PQ+16*ii+4*q,4)}, v6 offset:{b*3072+ii*128+16*q}\nds_read_b128 {vr(PQ+16*ii+8+4*q,4)}, v6 offset:{b*3072+1536+ii*128+16*q}")
            k(f"s_waitcnt lgkmcnt({8-4*(i%3)})")
            for j in range(4): k(f"v_lshlrev_b32 v{T+2*j}, 16, v{F+4*i+j}\nv_and_b32 v{T+2*j+1}, 0xffff0000, v{F+4*i+j}\nv_cvt_pk_bf16_f32 v{PQ+16*i+j}, v{PQ+16*i+2*j}, v{PQ+16*i+2*j+1}")
            for j in range(8): k(f"v_mul_f32 v{T+j}, v{T+j}, v{PQ+16*i+8+j}")
            mf(k,200+8*b+4,PQ+16*i,F+4*i,i==0)
            for j in range(4): k(f"v_cvt_pk_bf16_f32 v{O+4*i+j}, v{T+2*j}, v{T+2*j+1}")
            k("s_nop 1"); mf(k,200+8*b,ON,O+4*i,i==0)
            st4(k,O+4*i,4,36 if i<4 else 37,(i%4)*1024)
        if b==0: k("s_add_u32 s36, s36, 0x120000")
    k("s_nop 7")
    for j in range(4): k(f"v_mov_b32 v{S+j}, v{200+4*j}")
    k(f"""
    s_lshr_b32 s6, s3, 1
    s_lshl_b32 s6, s6, 10
    s_add_u32 s6, s6, 49152
    v_add_u32 v5, s6, v4
    s_lshl_b32 s35, s24, 2
    s_add_u32 s35, s35, 1024
    s_cmp_eq_u32 s25, 0
    s_cbranch_scc1 {k.lab('f1')}
    ds_write_b128 v5, {vr(S,4)}
    s_waitcnt lgkmcnt(0)
    s_barrier
    s_branch {k.lab('p1e')}
    {k.lab('f1')}:
    s_barrier
    ds_read_b128 {vr(T,4)}, v5
    s_lshl_b32 s6, s27, 6
    s_add_u32 s6, s6, {UV:#x}
    v_lshlrev_b32 v5, 2, v2
    s_waitcnt lgkmcnt(0)
    """)
    for j in range(4):
        k(f"v_add_f32 v{S+j}, v{S+j}, v{T+j}\nbuffer_store_dword v{S+j}, v5, s[8:11], s6 offen sc1\ns_add_u32 s6, s6, 6144")
    k(f"s_branch {k.lab('p1e')}")

def p1(k):
    k(f"""
    s_lshl_b32 s48, s4, 3
    s_and_b32 s6, s5, 7
    s_add_u32 s48, s48, s6
    s_lshr_b32 s49, s5, 3
    s_mul_i32 s50, s49, 6
    s_add_u32 s50, s50, s3
    s_waitcnt lgkmcnt(0)
    s_cmp_lt_u32 s2, 36
    s_cbranch_scc1 {k.lab('mod')}
    s_cmp_lt_u32 s3, 7
    s_cbranch_scc1 {k.lab('nt')}
    v_lshlrev_b32 v7, 15, v4
    buffer_load_dword v198, v7, s[96:99], 0 offen sc1
    buffer_load_dword v197, v7, s[8:11], 0 offen sc1
    buffer_load_dword v196, v7, s[44:47], 0 offen sc1
    {k.lab('nt')}:
    s_cmp_ge_u32 s2, 64
    s_cbranch_scc1 {k.lab('gemm')}
    s_cmp_lt_u32 s2, 36
    s_cbranch_scc1 {k.lab('mod')}
    s_getpc_b64 s[52:53]
    {k.lab('pc')}:
    s_mov_b32 s54, {k.lab('end')}-{k.lab('pc')}
    s_mov_b32 s55, 0x20000
    s_lshl_b32 s6, s3, 13
    v_lshlrev_b32 v7, 3, v4
    buffer_load_dword v199, v7, s[52:55], s6 offen
    s_cmp_ge_u32 s2, 60
    s_cbranch_scc1 {k.lab('idle')}
    s_branch {k.lab('fc1')}
    {k.lab('mod')}:
    """)
    k.st(105); pmod(k)
    k(f"{k.lab('idle')}:"); modpoll(k,'i',16); k.st(114)
    k(f"s_cmp_ge_u32 s2, 36\ns_cbranch_scc1 {k.lab('i2')}\ns_lshl_b32 s35, s2, 2\ns_add_u32 s35, s35, 1120")
    k(f"""
    s_load_dwordx2 s[16:17], s[0:1], {KOFF['fc2']}
    s_mul_hi_u32 s24, s2, 0x2aaaaaab
    s_mul_i32 s6, s24, 6
    s_sub_u32 s25, s2, s6
    s_lshl_b32 s24, s24, 3
    s_add_u32 s24, s24, s3
    s_mul_i32 s26, s24, {32*768}
    s_lshl_b32 s6, s25, 7
    s_add_u32 s26, s26, s6
    s_lshl_b32 s27, s3, 12
    s_add_u32 s27, s27, 8192
    v_lshrrev_b32 v5, 7, v4
    v_mul_u32_u24 v5, 768, v5
    v_and_b32 v6, 0x70, v4
    v_add_u32 v5, v5, v6
    v_lshrrev_b32 v7, 2, v2
    v_lshl_add_u32 v7, v3, 2, v7
    v_lshlrev_b32 v7, 7, v7
    v_and_b32 v6, 3, v2
    v_lshl_add_u32 v7, v6, 3, v7
    v_add_u32 v7, s27, v7
    s_waitcnt lgkmcnt(0)
    """)
    for i in range(4): k(f"s_mov_b32 m0, s27\ns_add_u32 s27, s27, 1024\nbuffer_load_dwordx4 v5, s[16:19], s26 offen lds\ns_add_u32 s26, s26, {8*768}")
    k(f"s_mul_i32 s26, s25, {4*49152}\ns_lshl_b32 s6, s24, 10\ns_add_u32 s26, s26, s6\ns_add_u32 s26, s26, {FC2_P:#x}\ns_waitcnt vmcnt(0)")
    for c in range(4): k(f"ds_read_b64_tr_b16 {vr(8+4*c,2)}, v7 offset:{c*32}\nds_read_b64_tr_b16 {vr(10+4*c,2)}, v7 offset:{c*32+2048}")
    k("s_waitcnt lgkmcnt(0)")
    for c in range(4): st4(k,8+4*c,4,26); k("s_add_u32 s26, s26, 49152")
    signal(k,'m',35)
    k(f"{k.lab('i2')}:"); wo_dma(k); k("s_waitcnt vmcnt(0)\ns_barrier"); k(f"s_branch {k.lab('p1x')}\n{k.lab('fc1')}:")
    pfc1(k)
    k(f"""
    {k.lab('gemm')}:
    """)
    if not os.environ.get('NOTOUCH'): touch(k,[24],'a')
    k(f"""
    s_sub_u32 s41, s5, 8
    s_lshl_b32 s28, s4, 1
    s_and_b32 s6, s41, 1
    s_add_u32 s28, s28, s6
    s_lshr_b32 s29, s41, 1
    s_lshl_b32 s42, s28, 3
    s_add_u32 s42, s42, s3
    s_mul_i32 s30, s42, 12288
    """)
    XL=61440; XO=U+4
    k(f"s_mov_b32 s6, {(2**32+47)//48:#x}")
    for i in range(3):
        d=XO+i; t=XO+3
        k(f"v_lshrrev_b32 v{t}, 4, v4\nv_add_u32 v{t}, {64*i}, v{t}\nv_mul_hi_u32 v{d}, v{t}, s6\nv_mul_u32_u24 v{t+1}, 48, v{d}\nv_sub_u32 v{t}, v{t}, v{t+1}\nv_xor_b32 v{t}, v{t}, v{d}\nv_mul_u32_u24 v{d}, 768, v{d}\nv_lshl_add_u32 v{d}, v{t}, 4, v{d}")
    k(f"s_mul_i32 s31, s3, 12288\ns_add_u32 s31, s31, {XL}\nv_mul_u32_u24 v7, 768, v2\nv_add_u32 v7, s31, v7\nv_xor_b32 v6, v2, v3")
    k.st(110)
    for m_ in range(4):
        for i in range(3):
            k(f"s_mov_b32 m0, s31\ns_add_u32 s31, s31, 1024\nv_xor_b32 v5, {m_<<6}, v{XO+i}\nbuffer_load_dwordx4 v5, s[12:15], s30 offen lds")
        k("s_add_u32 s30, s30, 3072")
    k.st(112)
    for b_ in range(4): k(f"v_xor_b32 v{XO+8+b_}, {4*b_}, v6\nv_lshl_add_u32 v{XO+8+b_}, v{XO+8+b_}, 4, v7")
    chunk_offs(k,U,12,2304,True,S)
    k(f"s_mul_i32 s36, s3, 3072\ns_mul_i32 s37, s3, {16*2304}\ns_mul_i32 s6, s29, 192\ns_add_u32 s37, s37, s6")
    def wgrp():
        for i in range(3): k(f"s_mov_b32 m0, s36\ns_add_u32 s36, s36, 1024\nbuffer_load_dwordx4 v{U+i}, s[24:27], s37 offen lds")
    k("s_waitcnt vmcnt(0) lgkmcnt(0)"); k.st(113)
    for s in range(12): k(f"ds_read_b128 {vr(A+4*s,4)}, v{XO+8+s%4} offset:{(s//4)*256}")
    for g in range(2):
        wgrp(); k(f"s_add_u32 s36, s36, {7*3072}\ns_add_u32 s37, s37, {128*2304}")
    k("s_waitcnt lgkmcnt(0)\ns_barrier"); k.st(1)
    ones(k); k("s_nop 1")
    for s_ in range(12): mstat(k,A+4*s_,s_==0)
    wgrp(); touch(k,[20],'b'); wo_dma(k,XO,True)
    XF=lambda e: (56+e if e<48 else 200+e-48)
    for i in range(48): k(f"v_lshlrev_b32 v{XF(2*i)}, 16, v{A+i}\nv_and_b32 v{XF(2*i+1)}, 0xffff0000, v{A+i}")
    mstat_fin(k,S)
    k(f"v_mul_f32 v{S}, v{S}, v{S+1}")
    for e in range(0,96,2): k(pk('fma',XF(e),XF(e),('b',S+1),('nb',S)))
    k(f"""
    s_lshr_b32 s43, s28, 3
    s_mul_i32 s30, s43, 9216
    s_and_b32 s6, s3, 1
    s_lshl_b32 s6, s6, 10
    s_add_u32 s30, s30, s6
    s_bitcmp1_b32 s3, 1
    s_cselect_b32 s6, 1536, 0
    s_add_u32 s30, s30, s6
    s_and_b32 s31, s3, 3
    s_lshl_b32 s31, s31, 10
    s_add_u32 s31, s31, 73728
    """)
    k.st(2); modpoll(k,'g'); k.st(21)
    k("s_mov_b32 m0, s31\ns_nop 0"); dma(k,30,0,SC)
    tr_addr(k,U,0)
    qs=f2u(192**-0.5*math.log2(math.e))
    k(f"""
    s_cmp_lt_u32 s29, 4
    s_cselect_b32 s30, {qs:#x}, 1.0
    s_cselect_b64 vcc, -1, 0
    s_cselect_b32 s33, -1, -2
    s_and_b32 s33, s42, s33
    s_mul_i32 s33, s33, 12
    s_lshr_b32 s31, s29, 2
    s_mul_i32 s31, s31, {ACT:#x}
    s_and_b32 s32, s29, 3
    s_mul_i32 s32, s32, 3
    s_add_u32 s32, s32, s33
    s_lshl_b32 s32, s32, 10
    s_add_u32 s31, s31, s32
    s_add_u32 s31, s31, {Q_P:#x}
    s_and_b32 s34, s3, 1
    v_bfe_u32 v5, v2, 2, 1
    v_mul_u32_u24 v5, 12288, v5
    v_lshl_add_u32 v5, v3, 8, v5
    v_lshrrev_b32 v6, 3, v2
    v_lshl_add_u32 v5, v6, 6, v5
    v_and_b32 v6, 3, v2
    v_lshl_add_u32 v5, v6, 4, v5
    s_lshl_b32 s6, s34, 7
    v_add_u32 v5, s6, v5
    v_cndmask_b32 v5, v5, v4, vcc
    s_lshl_b32 s35, s28, 6
    s_lshl_b32 s6, s29, 2
    s_add_u32 s35, s35, s6
    v_lshlrev_b32 v1, 5, v3
    v_add_u32 v1, 73728, v1
    s_waitcnt vmcnt(0)
    s_barrier
    """)
    k.st(22)
    k(f"s_cmp_ge_u32 s29, 8\ns_cbranch_scc1 {k.lab('v')}")
    def body(isv):
        PP=176
        order=[(s,cb) for s in range(12) for cb in range(4)]+[(s,cb) for s in range(12) for cb in (4,5)]
        ops=[]
        for i,(s,cb) in enumerate(order):
            if cb==0: ops+=[('p',s,0),('p',s,1)]
            ops.append(('w',s,cb))
        nw=[0]; reg={}; iss=[0]
        def rd(n):
            t,s,x=ops[n]
            if t=='p': k(f"ds_read_b128 {vr(PP+8*x,4)}, v1 offset:{s*128+16*x}\nds_read_b128 {vr(PP+8*x+4,4)}, v1 offset:{2048+s*128+16*x}")
            else:
                r=BB+4*(nw[0]%8); nw[0]+=1; reg[n]=r; a_=U+(x%2)+2*(s//6); o=(s%6)*6144+x*32
                k(f"ds_read_b64_tr_b16 {vr(r,2)}, v{a_} offset:{o}\nds_read_b64_tr_b16 {vr(r+2,2)}, v{a_} offset:{o+768}")
        def fill(n):
            while iss[0]<len(ops) and iss[0]<n+6: rd(iss[0]); iss[0]+=1
        def epi(c):
            R=ACC+8*c; D=S+4*(c%2)
            if isv:
                swap_pack(k,R,R+4,D); st4(k,D,5,31); k("s_add_u32 s31, s31, 65536")
            else:
                for j in range(8): k(f"v_mul_f32 v{R+j}, s30, v{R+j}")
                for j in range(4): k(f"v_cvt_pk_bf16_f32 v{D+j}, v{R+2*j}, v{R+2*j+1}")
                st4(k,D,5,31,c*1024)
        fill(0); i=0
        for n,(t,s,x) in enumerate(ops):
            k(f"s_waitcnt lgkmcnt({2*(iss[0]-n-1)})")
            if t=='p':
                for j in range(4): e=8*s+4*x+j; k(f"v_fma_f32 v{XF(e)}, v{XF(e)}, v{PP+8*x+4+j}, v{PP+8*x+j}")
                for j in range(2): e=8*s+4*x+2*j; k(f"v_cvt_pk_bf16_f32 v{A+4*s+2*x+j}, v{XF(e)}, v{XF(e+1)}")
            else:
                if isv: mf(k,ACC+4*x,A+4*s,reg[n],s==0)
                else: mf(k,ACC+4*x,reg[n],A+4*s,s==0)
                if i==52: epi(0)
                if i==60: epi(1)
                if i%5==0 and i<45:
                    q=i//5
                    k(f"s_mov_b32 m0, s36\ns_add_u32 s36, s36, 1024\nbuffer_load_dwordx4 v{XO+q%3}, s[20:23], s37 offen lds")
                    if q%3==2: k(f"s_add_u32 s37, s37, {16*768}")
                i+=1
            fill(n+1)
        k("s_nop 7"); epi(2)
        k("v_lshrrev_b32 v1, 6, v0")
    body(False)
    k(f"""
    s_branch {k.lab('p1e')}
    {k.lab('v')}:
    s_sub_u32 s31, s29, 8
    s_mul_i32 s31, s31, 6
    s_mul_i32 s32, s43, 24
    s_add_u32 s31, s31, s32
    s_lshl_b32 s31, s31, 5
    s_and_b32 s32, s42, 63
    s_lshr_b32 s32, s32, 1
    s_add_u32 s31, s31, s32
    s_lshl_b32 s31, s31, 10
    s_lshl_b32 s32, s34, 9
    s_add_u32 s31, s31, s32
    s_add_u32 s31, s31, {VT_P:#x}
    v_and_b32 v5, 1, v3
    v_lshlrev_b32 v5, 15, v5
    v_lshrrev_b32 v6, 1, v3
    v_lshl_add_u32 v5, v6, 8, v5
    v_lshl_add_u32 v5, v2, 4, v5
    """)
    body(True)
    k(f"{k.lab('p1e')}:"); k.st(3)
    signal(k,'1',35)
    k(f"{k.lab('p1x')}:"); k.st(4)

def p3setup(k):
    k(f"""
    s_cmp_ge_u32 s3, 6
    s_cbranch_scc1 {k.lab('p3s')}
    v_mul_u32_u24 v6, 768, v2
    v_lshl_add_u32 v6, v3, 3, v6
    s_mul_i32 s29, s48, {32*768}
    s_lshl_b32 s6, s50, 5
    s_add_u32 s29, s29, s6
    s_add_u32 s30, s29, {16*768}
    """)
    ld(k,XG,2,6,29,srd=12); ld(k,XG+2,2,6,30,srd=12)
    tr_addr(k,U,WOL)
    k(f"s_bitcmp1_b32 s3, 0\ns_cselect_b64 vcc, -1, 0\ns_lshl_b32 s6, s3, 5\nv_cndmask_b32 v{U}, v{U}, v{U+1}, vcc\nv_add_u32 v{U}, s6, v{U}\nv_add_u32 v{U+1}, 36864, v{U}")
    for s in range(12):
        for hh in range(2): k(f"ds_read_b64_tr_b16 {vr(WB+4*s+2*hh,2)}, v{U+s//6} offset:{(s%6)*6144+hh*768}")
    k(f"s_waitcnt lgkmcnt(0)\n{k.lab('p3s')}:")

def p2(k):
    QL=0; PL=24576; VL=57344; ML=155648; SL=157696
    KF=8; SA=56; B2=88; T=120
    k(f"""
    s_lshr_b32 s20, s4, 2
    {MAP2}
    s_lshl_b32 s24, s20, 6
    s_lshl_b32 s6, s23, 2
    s_add_u32 s24, s24, s6
    s_lshr_b32 s6, s3, 1
    s_add_u32 s25, s24, s6
    s_mul_i32 s25, s25, 12
    s_mul_i32 s26, s21, 6
    s_add_u32 s25, s25, s26
    s_and_b32 s6, s3, 1
    s_mul_i32 s6, s6, 3
    s_add_u32 s25, s25, s6
    s_lshl_b32 s25, s25, 10
    s_add_u32 s25, s25, {Q_P:#x}
    s_lshl_b32 s27, s20, 6
    s_lshl_b32 s6, s22, 4
    s_add_u32 s27, s27, s6
    s_lshl_b32 s6, s3, 1
    s_add_u32 s27, s27, s6
    s_mul_i32 s27, s27, 12
    s_add_u32 s27, s27, s26
    s_lshl_b32 s27, s27, 10
    s_add_u32 s27, s27, {K_P:#x}
    s_add_u32 s36, s27, 12288
    s_mul_i32 s28, s20, 24
    s_mul_i32 s6, s21, 12
    s_add_u32 s28, s28, s6
    s_lshl_b32 s28, s28, 5
    s_lshl_b32 s6, s22, 3
    s_add_u32 s28, s28, s6
    s_add_u32 s28, s28, s3
    s_lshl_b32 s28, s28, 10
    s_add_u32 s28, s28, {VT_P:#x}
    s_lshl_b32 s29, s3, 10
    s_add_u32 s29, s29, {VL}
    """)
    poll(k,'2',f"""
    v_bfe_u32 v6, v0, 2, 2
    v_min_u32 v6, 2, v6
    v_bfe_u32 v7, v0, 1, 1
    s_lshl_b32 s6, s22, 1
    v_add_u32 v7, s6, v7
    s_lshr_b32 s6, s23, 1
    v_mov_b32 v5, s6
    v_cmp_eq_u32 vcc, 0, v6
    s_lshl_b32 s6, s20, 9
    s_lshl_b32 s7, s21, 3
    v_cndmask_b32 v7, v7, v5, vcc
    s_add_u32 s6, s6, s7
    v_lshlrev_b32 v7, 6, v7
    v_lshl_add_u32 v7, v6, 4, v7
    v_and_b32 v6, 1, v0
    v_lshl_add_u32 v7, v6, 2, v7
    v_add_u32 v5, s6, v7
    """)
    k.st()
    k("s_mul_i32 s6, s3, 3072\ns_mov_b32 m0, s6\ns_nop 0")
    for i in range(3): dma(k,25,i*1024,SC)
    for s in range(6):
        if s==4: k("s_add_u32 s27, s27, 4096\ns_add_u32 s36, s36, 4096")
        for kb in range(2): ld(k,KF+24*kb+4*s,4,4,(27,36)[kb],(s%4)*1024,sc=SC)
    k("s_waitcnt vmcnt(12)\ns_barrier"); k.st()
    items=[(4,QL+(qb*6+s)*1024) for s in range(6) for qb in range(4)]
    def mf1(i,b):
        s,qb=divmod(i,4)
        if qb==0:
            k("s_waitcnt vmcnt(10)")
            for t in range(2):
                k(f"s_mov_b32 m0, s29\ns_add_u32 s29, s29, 8192"); dma(k,28,0,SC); k("s_add_u32 s28, s28, 32768")
        for kb in range(2): mf(k,SA+8*qb+4*kb,KF+24*kb+4*s,b,s==0)
    gemm_loop(k,items,B2,8,mf1); k.st()
    k(f"v_lshrrev_b32 v5, 4, v4\nv_min_u32 v5, 59, v5\nv_lshlrev_b32 v5, 2, v5\nv_add_u32 v5, 1024, v5\nv_lshlrev_b32 v5, 5, v5\ns_mov_b32 s6, {FL:#x}\nbuffer_load_dword v199, v5, s[8:11], s6 offen sc1")
    k(f"""
    v_and_b32 v5, 63, v0
    v_lshlrev_b32 v5, 5, v5
    v_lshl_add_u32 v5, v1, 2, v5
    v_add_u32 v5, {ML}, v5
    v_lshlrev_b32 v6, 5, v2
    v_add_u32 v6, {ML}, v6
    s_lshl_b32 s6, s3, 10
    s_add_u32 s6, s6, {PL}
    v_add_u32 v7, s6, v4
    """)
    M=KF
    def max8(m,r): k(f"v_max3_f32 v{m}, v{r}, v{r+1}, v{r+2}\nv_max3_f32 v{m}, v{m}, v{r+3}, v{r+4}\nv_max3_f32 v{m}, v{m}, v{r+5}, v{r+6}\nv_max_f32 v{m}, v{m}, v{r+7}")
    for qb in range(4): max8(M+qb,SA+8*qb)
    def treduce(op,addr_off):
        k(f"s_nop 1\nv_permlane32_swap_b32 v{M}, v{M+2}\nv_permlane32_swap_b32 v{M+1}, v{M+3}\ns_nop 1\n{op} v{M}, v{M}, v{M+2}\n{op} v{M+1}, v{M+1}, v{M+3}")
        k(f"s_nop 1\nv_permlane16_swap_b32 v{M}, v{M+1}\ns_nop 1\n{op} v{M}, v{M}, v{M+1}\nds_write_b32 v5, v{M} offset:{addr_off}")
    treduce("v_max_f32",0)
    k("s_waitcnt lgkmcnt(0)\ns_barrier")
    G=KF+8
    for qb in range(4):
        for q in range(2): k(f"ds_read_b128 {vr(G+8*qb+4*q,4)}, v6 offset:{qb*512+16*q}")
    for qb in range(4):
        k(f"s_waitcnt lgkmcnt({6-2*qb})"); max8(T+qb,G+8*qb)
    k("s_mov_b32 s40, 0x3f803f80")
    for qb in range(4):
        r=SA+8*qb
        for j in (0,2,4,6): k(pk('add',r+j,r+j,('nb',T+qb)))
        for j in range(8): k(f"v_exp_f32 v{r+j}, v{r+j}")
        k("s_nop 0")
        for j in range(4): k(f"v_cvt_pk_bf16_f32 v{B2+4*qb+j}, v{r+2*j}, v{r+2*j+1}")
        k(f"ds_write_b128 v7, {vr(B2+4*qb,4)} offset:{qb*8192}")
        k(pk('add',r,r,r+2)); k(pk('add',r+4,r+4,r+6)); k(pk('add',r,r,r+4)); k(f"v_add_f32 v{M+qb}, v{r}, v{r+1}")
    k("s_nop 1")
    treduce("v_add_f32",SL-ML)
    k(f"s_waitcnt vmcnt(0) lgkmcnt(0)\nv_cmp_eq_u32 vcc, 0, v199\nv_mov_b32 v198, v6\ns_nop 3\ns_cbranch_vccz {k.lab('pds')}")
    poll(k,'s',"v_lshrrev_b32 v5, 4, v4\nv_min_u32 v5, 59, v5\nv_lshlrev_b32 v5, 2, v5\nv_add_u32 v5, 1024, v5",bar=False)
    k("v_mov_b32 v6, v198")
    k(f"""
    s_and_b32 s30, s3, 3
    s_lshr_b32 s31, s3, 2
    s_mul_i32 s6, s30, 24576
    s_add_u32 s6, s6, {VL}
    v_add_u32 v5, s6, v4
    s_lshl_b32 s6, s31, 14
    s_add_u32 s6, s6, {PL}
    v_add_u32 v7, s6, v4
    s_lshl_b32 s6, s31, 10
    v_add_u32 v6, s6, v6
    s_cmp_eq_u32 s31, 0
    s_cselect_b64 vcc, -1, 0
    v_cndmask_b32 v{T}, v{T+2}, v{T}, vcc
    v_cndmask_b32 v{T+1}, v{T+3}, v{T+1}, vcc
    """)
    k.st(); k("s_waitcnt vmcnt(0) lgkmcnt(0)\ns_barrier"); k.st()
    for qq in range(2):
        for q in range(2): k(f"ds_read_b128 {vr(G+8*qq+4*q,4)}, v6 offset:{SL-ML+qq*512+16*q}")
    OA=SA; PR=128
    k(f"""
    s_lshl_b32 s6, s31, 1
    s_add_u32 s24, s24, s6
    s_mul_i32 s32, s24, 12288
    s_mul_i32 s6, s22, {ACT:#x}
    s_add_u32 s32, s32, s6
    s_add_u32 s32, s32, {O_P:#x}
    s_mul_i32 s33, s21, 12
    s_mul_i32 s6, s30, 3
    s_add_u32 s33, s33, s6
    s_lshl_b32 s33, s33, 9
    s_add_u32 s32, s32, s33
    v_and_b32 v197, 1, v3
    v_mul_u32_u24 v197, 12288, v197
    v_lshrrev_b32 v6, 1, v3
    v_lshl_add_u32 v197, v6, 8, v197
    v_lshl_add_u32 v197, v2, 4, v197
    """)
    seq=[]
    for ks in range(8): seq+=[('p',0,ks),('p',1,ks),('v',0,ks)]
    seq+=[('v',j,ks) for j in (1,2) for ks in range(8)]
    nv=[0]; reg={}
    def rd(i):
        t,x,ks=seq[i]
        if t=='p': r=PR+32*x+4*ks; a_=7
        else: r=B2+4*(nv[0]%8); nv[0]+=1; a_=5
        reg[i]=r; k(f"ds_read_b128 {vr(r,4)}, v{a_} offset:{x*8192+ks*1024}")
    def oepi(j):
        for qq in range(2):
            r=OA+8*j+4*qq
            for t in range(4): k(f"v_mul_f32 v{r+t}, v{r+t}, v{G+8*qq+1}")
        swap_pack(k,OA+8*j,OA+8*j+4,40+4*j); st4(k,40+4*j,197,32,j*512)
    issued=0
    def fill(i):
        nonlocal issued
        while issued<len(seq) and issued<i+9 and sum(1 for q in range(i,issued+1) if seq[q][0]=='v')<=7:
            rd(issued); issued+=1
    fill(0)
    for i,(t,x,ks) in enumerate(seq):
        if t=='v':
            k(f"s_waitcnt lgkmcnt({issued-i-1})")
            for qq in range(2): mf(k,OA+8*x+4*qq,reg[i],PR+32*qq+4*ks,ks==0)
            if x==0 and ks==1:
                for qq in range(2):
                    r=G+8*qq
                    k(f"v_add_f32 v{r}, v{r}, v{r+1}")
                    for j in range(2,8): k(f"v_add_f32 v{r}, v{r}, v{r+j}")
                    k(f"v_rcp_f32 v{r+1}, v{r}\nv_log_f32 v{r+2}, v{r}")
            if x and ks==3: oepi(x-1)
        fill(i+1)
    k.st()
    k("s_nop 7"); oepi(2)
    k(f"""
    s_lshl_b32 s35, s20, 4
    s_add_u32 s35, s35, s23
    s_lshl_b32 s35, s35, 6
    s_lshl_b32 s6, s21, 4
    s_add_u32 s35, s35, s6
    s_lshl_b32 s6, s22, 2
    s_add_u32 s35, s35, s6
    s_add_u32 s35, s35, 2048
    s_cmp_lg_u32 s30, 0
    s_cbranch_scc1 {k.lab('p2e')}
    v_add_f32 v{T}, v{T}, v{G+2}
    v_add_f32 v{T+1}, v{T+1}, v{G+10}
    v_cmp_eq_u32 vcc, 0, v3
    s_lshl_b32 s6, s22, 1
    s_add_u32 s6, s6, s21
    v_cndmask_b32 v{T}, v{T+1}, v{T}, vcc
    s_lshl_b32 s6, s6, 13
    s_lshl_b32 s7, s24, 6
    s_add_u32 s6, s6, s7
    s_add_u32 s6, s6, {LSE:#x}
    v_lshrrev_b32 v5, 2, v4
    s_mov_b32 exec_hi, 0
    buffer_store_dword v{T}, v5, s[8:11], s6 offen sc1
    s_mov_b64 exec, -1
    {k.lab('p2e')}:
    """)
    signal(k,'2',35); k.st()
    if LOC>1:
        for j in range(3): ld(k,64,4,197,32,j*512,sc=SC)

FC1L=24576
def p4setup(k):
    k(f"""
    {MAP4}
    s_lshl_b32 s53, s51, 3
    s_add_u32 s53, s53, s3
    s_lshr_b32 s25, s51, 3
    s_mul_i32 s27, s3, 12288
    s_mul_i32 s28, s52, 73728
    s_add_u32 s28, s28, s27
    s_mul_i32 s29, s25, 0x120000
    s_add_u32 s28, s28, s29
    s_add_u32 s28, s28, {FC1_P:#x}
    s_add_u32 s27, s27, {FC1L}
    """)
    k(f"s_lshr_b32 s6, s48, 5\ns_mul_i32 s31, s6, 9216\ns_lshl_b32 s6, s50, 6\ns_add_u32 s31, s31, s6\ns_add_u32 s31, s31, {768*4}\nv_lshlrev_b32 v7, 4, v3")
    k(f"s_cmp_ge_u32 s3, 6\ns_cbranch_scc1 {k.lab('p4s')}")
    ld(k,XG+4,4,7,31,sc=SC)
    for i in range(12):
        if i%4==0:
            if i: k("s_add_u32 s27, s27, 4096\ns_add_u32 s28, s28, 4096")
            k("s_mov_b32 m0, s27\ns_nop 0")
        dma(k,28,(i%4)*1024,SC)
    k(f"{k.lab('p4s')}:")

def p3(k):
    OP=8; LS=56; t=ACC
    k(f"""
    s_lshl_b32 s22, s48, 1
    s_lshr_b32 s6, s3, 2
    s_add_u32 s23, s22, s6
    s_and_b32 s24, s3, 3
    s_mul_i32 s25, s23, 12288
    s_mul_i32 s6, s24, 3072
    s_add_u32 s25, s25, s6
    s_add_u32 s25, s25, {O_P:#x}
    s_lshr_b32 s6, s24, 1
    s_lshl_b32 s26, s6, 13
    s_lshl_b32 s6, s23, 6
    s_add_u32 s26, s26, s6
    s_add_u32 s26, s26, {LSE:#x}
    """)
    poll(k,'3',"s_lshr_b32 s6, s48, 1\ns_lshl_b32 s6, s6, 6\ns_add_u32 s6, s6, 2048\nv_and_b32 v5, 7, v0\nv_lshlrev_b32 v5, 2, v5\nv_add_u32 v5, s6, v5")
    k.st(); k("v_lshlrev_b32 v5, 2, v2")
    for sp in range(4):
        ld(k,LS+sp,1,5,26,sc=SC)
        if sp<3: k("s_add_u32 s26, s26, 16384")
    for i in range(3):
        for sp in range(4):
            k(f"s_add_u32 s6, s25, {sp*ACT:#x}"); ld(k,OP+16*i+4*sp,4,4,6,i*1024,sc=SC)
    k(f"s_waitcnt vmcnt(12)\nv_max3_f32 v{t}, v{LS}, v{LS+1}, v{LS+2}\nv_max_f32 v{t}, v{t}, v{LS+3}")
    for sp in range(4): k(f"v_sub_f32 v{LS+sp}, v{LS+sp}, v{t}")
    for sp in range(4): k(f"v_exp_f32 v{LS+sp}, v{LS+sp}")
    k(f"s_nop 0\nv_add_f32 v{t}, v{LS}, v{LS+1}\nv_add_f32 v{t}, v{t}, v{LS+2}\nv_add_f32 v{t}, v{t}, v{LS+3}\nv_rcp_f32 v{t}, v{t}\ns_mul_i32 s6, s3, 3072")
    for sp in range(4): k(f"v_mul_f32 v{LS+sp}, v{LS+sp}, v{t}")
    k("v_add_u32 v5, s6, v4")
    for i in range(3):
        for sp in range(4):
            k(f"s_waitcnt vmcnt({11-4*i-sp})")
            for j in range(4):
                r=OP+16*i+4*sp+j
                u=60+2*j
                k(f"v_lshlrev_b32 v{u}, 16, v{r}\nv_and_b32 v{u+1}, 0xffff0000, v{r}")
            for j in range(4):
                u=60+2*j
                k(pk('fma',t+2*j,u,('b',LS+sp),t+2*j) if sp else pk('mul',t+2*j,u,('b',LS+sp)))
        for j in range(4): k(f"v_cvt_pk_bf16_f32 v{OP+16*i+j}, v{t+2*j}, v{t+2*j+1}")
        k(f"ds_write_b128 v5, {vr(OP+16*i,4)} offset:{i*1024}")
    k(f"""
    s_lshr_b32 s35, s48, 2
    s_lshl_b32 s35, s35, 6
    s_and_b32 s6, s48, 3
    s_lshl_b32 s6, s6, 4
    s_add_u32 s35, s35, s6
    s_lshl_b32 s6, s49, 2
    s_add_u32 s35, s35, s6
    s_add_u32 s35, s35, 4096
    s_waitcnt lgkmcnt(0)
    s_barrier
    """)
    k.st(); k(f"s_cmp_ge_u32 s3, 6\ns_cbranch_scc1 {k.lab('p3d')}")
    items=[(4,(rb*12+s)*1024) for s in range(12) for rb in range(2)]
    gemm_loop(k,items,OP,12,lambda i,b: mf(k,ACC+4*(i%2),WB+4*(i//2),b,i<2))
    k(f"""
    s_mul_i32 s32, s22, 12288
    s_lshl_b32 s6, s50, 9
    s_add_u32 s32, s32, s6
    s_add_u32 s32, s32, {X1_P:#x}
    v_and_b32 v5, 1, v3
    v_mul_u32_u24 v5, 12288, v5
    v_lshrrev_b32 v6, 1, v3
    v_lshl_add_u32 v5, v6, 8, v5
    v_lshl_add_u32 v5, v2, 4, v5
    """)
    for rb in range(2):
        for j in range(2):
            x=XG+2*rb+j; a=ACC+4*rb+2*j
            k(f"v_lshlrev_b32 v8, 16, v{x}\nv_and_b32 v9, 0xffff0000, v{x}\nv_fma_f32 v{a}, v{a}, v{XG+4+2*j}, v8\nv_fma_f32 v{a+1}, v{a+1}, v{XG+4+2*j+1}, v9")
    swap_pack(k,ACC,ACC+4,12); st4(k,12,5,32)
    k(f"s_waitcnt vmcnt(0)\ns_branch {k.lab('p3e')}\n{k.lab('p3d')}:")
    k(f"s_sub_u32 s6, s57, 3072\ns_sub_u32 s7, s38, {6*3072-98304}\ns_mov_b32 s39, 10\n{k.lab('p3l')}:")
    for i in range(3): k(f"s_mov_b32 m0, s7\ns_add_u32 s7, s7, 1024\nbuffer_load_dwordx4 v{U+i}, s[8:11], s6 offen sc1 lds")
    k(f"s_add_u32 s7, s7, 3072\ns_add_u32 s6, s6, 1024\ns_sub_u32 s39, s39, 1\ns_cmp_lg_u32 s39, 0\ns_cbranch_scc1 {k.lab('p3l')}")
    k(f"{k.lab('p3e')}:")
    signal(k,'3',35,63); k.st()

def f2addr(q):
    if q<20: return 98304+q*3072
    if q<28: return (q-20)*3072
    return FC1L+(q-28)*3072
RL=FC1L+60*1024
def f2dma(k,q0,q1):
    for q in range(q0,q1,8):
        hi=min(q+8,q1)
        if hi-q<8: k(f"s_cmp_ge_u32 s3, {hi-q}\ns_cbranch_scc1 {k.lab('f2_%d'%q)}")
        k(f"s_add_u32 s6, s57, {(q//2)*1024}\ns_add_u32 s7, s38, {f2addr(q)}")
        for i in range(3): k(f"s_mov_b32 m0, s7\ns_add_u32 s7, s7, 1024\nbuffer_load_dwordx4 v{U+i}, s[8:11], s6 offen sc1 lds")
        if hi-q<8: k(f"{k.lab('f2_%d'%q)}:")
def p5setup(k):
    k(f"""
    s_lshl_b32 s54, s4, 2
    s_and_b32 s6, s5, 3
    s_add_u32 s54, s54, s6
    s_lshr_b32 s55, s5, 2
    s_lshl_b32 s56, s54, 2
    s_and_b32 s6, s3, 3
    s_add_u32 s56, s56, s6
    s_mul_i32 s57, s55, 147456
    s_and_b32 s6, s3, 1
    s_mul_i32 s6, s6, 24576
    s_add_u32 s57, s57, s6
    s_lshr_b32 s6, s3, 1
    s_lshl_b32 s6, s6, 10
    s_add_u32 s57, s57, s6
    s_add_u32 s57, s57, {FC2_P:#x}
    s_mul_i32 s38, s3, 3072
    s_lshr_b32 s25, s51, 3
    s_mul_i32 s30, s25, 12288
    s_mul_i32 s31, s52, 384
    s_add_u32 s30, s30, s31
    s_add_u32 s30, s30, {UV:#x}
    v_cmp_le_u32 vcc, 384, v4
    v_add_u32 v6, {6144-384}, v4
    s_mov_b32 m0, 159744
    v_cndmask_b32 v6, v4, v6, vcc
    s_cmp_lg_u32 s3, 0
    s_cbranch_scc1 {k.lab('uv')}
    buffer_load_dwordx4 v6, s[8:11], s30 offen sc1 lds
    {k.lab('uv')}:
    """)
    for i in range(3): k(f"v_add_u32 v{U+i}, {i*49152}, v4")

def p4(k):
    UU=WB
    k(f"s_mul_i32 s23, s53, 12288\ns_add_u32 s23, s23, {X1_P:#x}")
    poll(k,'4',"s_lshl_b32 s6, s51, 6\ns_add_u32 s6, s6, 4096\nv_lshlrev_b32 v5, 2, v2\nv_add_u32 v5, s6, v5",pw=1)
    k.st()
    for s in range(12):
        if s and s%4==0: k("s_add_u32 s23, s23, 4096")
        ld(k,A+4*s,4,4,23,(s%4)*1024,sc=SC)
    f2dma(k,20,28)
    k(f"""
    v_add_u32 v6, {FC1L}, v4
    v_add_u32 v7, {FC1L+36864}, v4
    s_mul_i32 s32, s53, 48
    s_mul_i32 s33, s52, 3
    s_add_u32 s32, s32, s33
    s_lshl_b32 s32, s32, 10
    s_add_u32 s32, s32, {G_P:#x}
    v_mov_b32 v86, 1.0
    v_mov_b32 v84, {f2u(-2*math.sqrt(2/math.pi)*math.log2(math.e)*0.044715):#x}
    v_mov_b32 v85, {f2u(-2*math.sqrt(2/math.pi)*math.log2(math.e)):#x}
    s_lshl_b32 s35, s51, 6
    s_lshl_b32 s6, s52, 2
    s_add_u32 s35, s35, s6
    s_add_u32 s35, s35, 5120
    """)
    k("v_lshlrev_b32 v1, 4, v3\nv_add_u32 v1, 159744, v1"); ones(k)
    for cb in range(6): k(f"ds_read_b128 {vr(WB+4*cb,4)}, v1 offset:{cb*64}\nds_read_b128 {vr(WB+24+4*cb,4)}, v1 offset:{384+cb*64}")
    k("s_waitcnt lgkmcnt(0)")
    order=[(s,cb) for s in range(12) for cb in range(6)]
    items=[((6 if cb<3 else 7),((cb%3)*12+s)*1024) for s,cb in order]
    T=[64+j for j in range(8)]
    def gl(i):
        R=[ACC+8*i+j for j in range(8)]; L=[]
        E=(0,2,4,6)
        for j in E: L.append(pk('fma',R[j],('nb',S),UU+8*i+j,R[j]))
        for j in E: L.append(pk('fma',R[j],R[j],('b',S+1),UU+24+8*i+j))
        for j in E: L.append(pk('mul',T[j],R[j],R[j]))
        for j in E: L.append(pk('fma',T[j],T[j],('b',84),('b',85)))
        for j in E: L.append(pk('mul',T[j],T[j],R[j]))
        for j in range(8): L.append(f"v_exp_f32 v{T[j]}, v{T[j]}")
        for j in E: L.append(pk('add',T[j],T[j],('b',86)))
        for j in range(8): L.append(f"v_rcp_f32 v{T[j]}, v{T[j]}")
        for j in E: L.append(pk('mul',R[j],R[j],T[j]))
        for j in range(4): L.append(f"v_cvt_pk_bf16_f32 v{72+4*i+j}, v{R[2*j]}, v{R[2*j+1]}")
        L.append(f"buffer_store_dwordx4 {vr(72+4*i,4)}, v4, s[8:11], s32 offen offset:{i*1024} sc1")
        return L
    Q=gl(0)+gl(1)
    def m(i,b):
        s,cb=order[i]
        if cb==0: k(f"s_waitcnt vmcnt({14-s})")
        mf(k,ACC+4*cb,b,A+4*s,s==0)
        if cb==0: mstat(k,A+4*s,s==0)
    gemm_loop(k,items,BB,8,m); k.st()
    mstat_fin(k,S)
    for l in Q+gl(2): k(l)
    k.st()
    signal(k,'4',35); k.st()
    if LOC>1:
        for j in range(3): ld(k,104,4,4,32,j*1024,sc=SC)
    k(f"s_cmp_ge_u32 s3, 4\ns_cbranch_scc1 {k.lab('p5d')}\ns_lshr_b32 s39, s3, 1\ns_mul_i32 s6, s39, 4096\ns_add_u32 s6, s6, s57\ns_add_u32 s6, s6, 14336")
    k(f"s_mul_i32 s7, s39, {4*6144}\ns_add_u32 s7, s7, s38\ns_add_u32 s7, s7, {FC1L}\ns_mov_b32 s39, 5\n{k.lab('p5l')}:")
    for i in range(3): k(f"s_mov_b32 m0, s7\ns_add_u32 s7, s7, 1024\nbuffer_load_dwordx4 v{U+i}, s[8:11], s6 offen sc1 lds")
    k(f"s_add_u32 s7, s7, 3072\ns_add_u32 s6, s6, 1024\ns_sub_u32 s39, s39, 1\ns_cmp_lg_u32 s39, 0\ns_cbranch_scc1 {k.lab('p5l')}\n{k.lab('p5d')}:")

def p5(k):
    X5=WB
    k(f"""
    s_lshr_b32 s23, s3, 2
    s_mul_i32 s25, s56, 49152
    s_mul_i32 s6, s23, 24576
    s_add_u32 s25, s25, s6
    s_add_u32 s25, s25, {G_P:#x}
    s_mul_i32 s29, s56, 12288
    s_mul_i32 s6, s55, 1536
    s_add_u32 s29, s29, s6
    s_add_u32 s29, s29, {X1_P:#x}
    s_lshr_b32 s6, s54, 4
    s_mul_i32 s30, s6, 9216
    s_mul_i32 s6, s55, 192
    s_add_u32 s30, s30, s6
    s_add_u32 s30, s30, {1920*4}
    """)
    poll(k,'5',"s_lshr_b32 s6, s54, 1\ns_lshl_b32 s6, s6, 6\ns_add_u32 s6, s6, 5120\nv_lshlrev_b32 v5, 2, v2\nv_add_u32 v5, s6, v5")
    k.st()
    def lda(s):
        if s and s%4==0: k("s_add_u32 s25, s25, 4096")
        ld(k,A+4*s,4,4,25,(s%4)*1024,sc=SC)
    for s in range(12): lda(s)
    k(f"""
    s_mul_i32 s6, s23, 3072
    v_add_u32 v5, s6, v4
    v_add_u32 v6, 61440, v5
    v_add_u32 v7, 61440, v6
    v_lshlrev_b32 v1, 4, v3
    v_lshrrev_b32 v{S}, 1, v3
    v_lshlrev_b32 v{S}, 8, v{S}
    v_lshl_add_u32 v{S}, v2, 4, v{S}
    v_and_b32 v{S+1}, 1, v3
    v_lshl_add_u32 v{S}, v{S+1}, 3, v{S}
    """)
    items=[(5+f2addr(2*(n//3))//61440,f2addr(2*(n//3))%61440+(n%3)*1024) for n in range(72)]
    def m(i,b):
        s,cb=divmod(i,3)
        if cb==0:
            k(f"s_waitcnt vmcnt({11 if s<12 else 23-s+6})")
            if s<12: lda(12+s)
            if s==8: k('s_barrier')
            if s==11:
                for c in range(3):
                    ld(k,X5+2*c,2,S,29,c*512,sc=SC); ld(k,X5+8+4*c,4,1,30,c*64,sc=SC)
        mf(k,ACC+4*cb,b,A+4*s,s==0)
    gemm_loop(k,items,BB,8,m); k.st()
    k(f"""
    s_and_b32 s6, s3, 3
    s_mul_i32 s6, s6, 3072
    s_add_u32 s6, s6, {RL}
    v_add_u32 v5, s6, v4
    s_cmp_eq_u32 s23, 0
    s_cbranch_scc1 {k.lab('lo')}
    s_nop 4
    """)
    for cb in range(3): k(f"ds_write_b128 v5, {vr(ACC+4*cb,4)} offset:{cb*1024}")
    k(f"s_waitcnt lgkmcnt(0)\ns_barrier\ns_endpgm\n{k.lab('lo')}:")
    k(f"v_mul_u32_u24 v6, 768, v2\nv_lshl_add_u32 v6, v3, 3, v6\ns_mul_i32 s31, s56, {16*768}\ns_mul_i32 s6, s55, 96\ns_add_u32 s31, s31, s6\ns_barrier")
    for cb in range(3): k(f"ds_read_b128 {vr(BB+4*cb,4)}, v5 offset:{cb*1024}")
    k("s_waitcnt vmcnt(0) lgkmcnt(0)")
    for cb in range(3):
        for t in range(4): k(f"v_add_f32 v{ACC+4*cb+t}, v{ACC+4*cb+t}, v{BB+4*cb+t}")
        for j in range(2):
            x=X5+2*cb+j
            k(f"v_lshlrev_b32 v8, 16, v{x}\nv_and_b32 v9, 0xffff0000, v{x}")
            k(f"v_fma_f32 v8, v{ACC+4*cb+2*j}, v{X5+8+4*cb+2*j}, v8\nv_fma_f32 v9, v{ACC+4*cb+2*j+1}, v{X5+8+4*cb+2*j+1}, v9\nv_cvt_pk_bf16_f32 v{x}, v8, v9")
        k(f"buffer_store_dwordx2 {vr(X5+2*cb,2)}, v6, s[44:47], s31 offen offset:{cb*32}")

def km():
    k=K(NAME,256,512,163840,256,sgpr=102)
    k(f"s_cmp_ge_u32 s2, 256\ns_cbranch_scc1 {k.lab('end')}")
    k.srds([('ws',8),('x',12),('fc1',16),('wo',20),('wqkv',24),('c',28),('wmod',32),('out',44),('dbg',96)])
    k("v_lshrrev_b32 v1, 6, v0\nv_and_b32 v2, 15, v0\nv_readfirstlane_b32 s3, v1\nv_bfe_u32 v3, v0, 4, 2\nv_and_b32 v4, 63, v0\nv_lshlrev_b32 v4, 4, v4\ns_and_b32 s4, s2, 7\ns_lshr_b32 s5, s2, 3")
    p1(k); p3setup(k); p2(k); p4setup(k); p5setup(k); p3(k); p4(k); p5(k)
    k(f"{k.lab('end')}:\ns_endpgm")
    return k
```

```python
from common import *
from k14 import f2u, stats, stats_fin
import math, os
SC=" sc1"
SLP=int(os.environ.get('SLP','3'))
NAME='standalone__dit_block__diffusion_kernel'
def mf(k,c,a,b,first): k(f"v_mfma_f32_16x16x32_bf16 {vr(c,4)}, {vr(a,4)}, {vr(b,4)}, {0 if first else vr(c,4)}")
def ld(k,dst,n,voff,soff,off=0,srd=8,sc=""):
    w={1:"dword",2:"dwordx2",4:"dwordx4"}[n]
    k(f"buffer_load_{w} {vr(dst,n)}, v{voff}, s[{srd}:{srd+3}], s{soff} offen"+(f" offset:{off}" if off else "")+sc)
def dma(k,soff,off=0,sc=""): k(f"buffer_load_dwordx4 v4, s[8:11], s{soff} offen"+(f" offset:{off}" if off else "")+sc+" lds")
def st4(k,src,voff,soff,off=0): k(f"buffer_store_dwordx4 {vr(src,4)}, v{voff}, s[8:11], s{soff} offen"+(f" offset:{off}" if off else "")+SC)

def signal(k,name,soff,n=0):
    k(f"s_waitcnt vmcnt({n})\ns_barrier\ns_cmp_lg_u32 s3, 0\ns_cbranch_scc1 {k.lab('sg'+name)}")
    k(f"v_mov_b32 v5, 0\nv_mov_b32 v6, 1\ns_lshl_b32 s{soff}, s{soff}, 5\ns_add_u32 s{soff}, s{soff}, {FL:#x}\ns_mov_b64 exec, 1\nbuffer_store_dword v6, v5, s[8:11], s{soff} offen sc1\ns_mov_b64 exec, -1")
    k(f"{k.lab('sg'+name)}:")
def poll(k,name,setup,pw=7,drain=False,bar=True):
    k(f"s_cmp_lg_u32 s3, {pw}\ns_cbranch_scc1 {k.lab('pd'+name)}")
    k(setup)
    k(f"v_lshlrev_b32 v5, 5, v5\ns_mov_b32 s6, {FL:#x}\ns_mov_b32 s7, 0\n{k.lab('pl'+name)}:")
    k(f"buffer_load_dword v6, v5, s[8:11], s6 offen sc1\ns_waitcnt vmcnt(0)\nv_cmp_eq_u32 vcc, 0, v6\ns_add_u32 s7, s7, 1\ns_cmp_ge_u32 s7, 0x10000\ns_cbranch_scc1 {k.lab('pd'+name)}\ns_nop 2")
    k(f"s_cbranch_vccz {k.lab('pd'+name)}\ns_sleep {SLP}\ns_branch {k.lab('pl'+name)}\n{k.lab('pd'+name)}:")
    if drain: k("s_waitcnt vmcnt(0)")
    if bar: k("s_barrier")
def swap_pack(k,X,Y,D):
    k(f"v_cvt_pk_bf16_f32 v{D}, v{X}, v{X+1}\nv_cvt_pk_bf16_f32 v{D+1}, v{X+2}, v{X+3}\nv_cvt_pk_bf16_f32 v{D+2}, v{Y}, v{Y+1}\nv_cvt_pk_bf16_f32 v{D+3}, v{Y+2}, v{Y+3}")
    k(f"s_nop 1\nv_permlane16_swap_b32 v{D}, v{D+2}\nv_permlane16_swap_b32 v{D+1}, v{D+3}\ns_nop 0")

ON=192; SM=184; GR=188
def ones(k):
    for j in range(4): k(f"v_mov_b32 v{ON+j}, 0x3f803f80")
def mstat(k,a,first): mf(k,SM,ON,a,first); mf(k,GR,a,a,first)
def mstat_fin(k,S):
    k(f"""
    v_and_b32 v{S+2}, 1, v2
    v_cmp_eq_u32 vcc, 0, v{S+2}
    v_and_b32 v{S+2}, 2, v2
    v_lshrrev_b32 v{S+3}, 2, v2
    v_cndmask_b32 v{GR}, v{GR+1}, v{GR}, vcc
    v_cndmask_b32 v{GR+2}, v{GR+3}, v{GR+2}, vcc
    v_cmp_eq_u32 vcc, 0, v{S+2}
    v_mul_f32 v{S}, {f2u(1/384):#x}, v{SM}
    s_nop 0
    v_cndmask_b32 v{GR}, v{GR+2}, v{GR}, vcc
    v_cmp_eq_u32 vcc, v3, v{S+3}
    s_nop 1
    v_cndmask_b32 v{S+1}, 0, v{GR}, vcc
    """)
    xreduce(k,[S+1],[S+2],"v_add_f32")
    k(f"v_mul_f32 v{S+1}, {f2u(1/384):#x}, v{S+1}\nv_fma_f32 v{S+1}, -v{S}, v{S}, v{S+1}\nv_max_f32 v{S+1}, 0, v{S+1}\nv_add_f32 v{S+1}, {f2u(1e-5):#x}, v{S+1}\nv_rsq_f32 v{S+1}, v{S+1}\ns_nop 0")
def pk(op,d,*src):
    o=[];lo=[];hi=[];ng=[]
    for x in src:
        if isinstance(x,int): assert x%2==0; o.append(vr(x,2)); lo.append(0); hi.append(1); ng.append(0)
        else: o.append(vr(x[1]&~1,2)); lo.append(x[1]&1); hi.append(x[1]&1); ng.append(int(x[0]=='nb'))
    f=lambda l:"["+",".join(map(str,l))+"]"
    assert d%2==0
    return f"v_pk_{op}_f32 {vr(d,2)}, "+", ".join(o)+f" op_sel:{f(lo)} op_sel_hi:{f(hi)}"+(f" neg_lo:{f(ng)} neg_hi:{f(ng)}" if any(ng) else "")
A=8; ACC=104; BB=128; S=160; U=168; WB=200; XG=248

LOC=int(os.environ.get('LOC','1'))
MAP2=("s_bfe_u32 s21, s5, 0x10002\ns_lshr_b32 s22, s5, 3\ns_and_b32 s23, s4, 3\ns_lshl_b32 s23, s23, 2\ns_and_b32 s6, s5, 3\ns_add_u32 s23, s23, s6" if LOC else
      "s_bfe_u32 s21, s4, 0x10001\ns_and_b32 s22, s4, 1\ns_lshl_b32 s22, s22, 1\ns_and_b32 s6, s5, 1\ns_add_u32 s22, s22, s6\ns_lshr_b32 s23, s5, 1")
MAP4=("s_lshl_b32 s51, s4, 1\ns_and_b32 s6, s5, 1\ns_add_u32 s51, s51, s6\ns_lshr_b32 s52, s5, 1" if LOC else
      "s_lshr_b32 s51, s4, 1\ns_lshl_b32 s51, s51, 2\ns_and_b32 s6, s5, 3\ns_add_u32 s51, s51, s6\ns_and_b32 s52, s4, 1\ns_lshl_b32 s52, s52, 3\ns_lshr_b32 s6, s5, 2\ns_add_u32 s52, s52, s6")
WOL=77824
def tr_loop(k,items,breg0,nbuf,mfn,hoff):
    n=len(items)
    def rd(i):
        a,o=items[i]; r=breg0+4*(i%nbuf)
        k(f"ds_read_b64_tr_b16 {vr(r,2)}, v{a} offset:{o}\nds_read_b64_tr_b16 {vr(r+2,2)}, v{a} offset:{o+hoff}")
    pre=min(nbuf-1,n)
    for i in range(pre): rd(i)
    issued=pre
    for i in range(n):
        k(f"s_waitcnt lgkmcnt({2*(issued-i-1)})")
        mfn(i, breg0+4*(i%nbuf))
        if issued<n: rd(issued); issued+=1
def chunk_offs(k,dst,per,stride,swz,t):
    k(f"s_mov_b32 s6, {(2**32+per-1)//per:#x}\ns_mov_b32 s7, {stride}")
    for i in range(3):
        d=dst+i
        k(f"v_lshrrev_b32 v{t}, 4, v4\nv_add_u32 v{t}, {64*i}, v{t}\nv_mul_hi_u32 v{d}, v{t}, s6\nv_mul_u32_u24 v{t+1}, {per}, v{d}\nv_sub_u32 v{t}, v{t}, v{t+1}")
        if swz: k(f"v_lshrrev_b32 v{t+1}, 2, v{d}\nv_and_b32 v{t+1}, 2, v{t+1}\nv_xor_b32 v{t}, v{t}, v{t+1}")
        k(f"v_mul_lo_u32 v{d}, v{d}, s7\nv_lshl_add_u32 v{d}, v{t}, 4, v{d}")
def w_dma(k,srd,vo,sl,sg,stride):
    for g in range(3):
        for i in range(3):
            k(f"s_mov_b32 m0, s{sl}\ns_add_u32 s{sl}, s{sl}, 1024\nbuffer_load_dwordx4 v{vo+i}, s[{srd}:{srd+3}], s{sg} offen lds")
        k(f"s_add_u32 s{sg}, s{sg}, {16*stride}")
def tr_addr(k,d,base):
    k(f"v_lshrrev_b32 v{d}, 2, v2\nv_lshl_add_u32 v{d}, v3, 3, v{d}\nv_mul_u32_u24 v{d}, 192, v{d}\nv_and_b32 v{d+1}, 3, v2\nv_lshl_add_u32 v{d}, v{d+1}, 3, v{d}\nv_add_u32 v{d}, {base}, v{d}")
    k(f"v_and_b32 v{d+2}, 1, v3\nv_lshlrev_b32 v{d+2}, 5, v{d+2}\nv_sub_u32 v{d+1}, v{d}, v{d+2}\nv_add_u32 v{d}, v{d}, v{d+2}\nv_add_u32 v{d+2}, 36864, v{d}\nv_add_u32 v{d+3}, 36864, v{d+1}")
def wo_dma(k,U=U,setup_only=False):
    chunk_offs(k,U,12,768,True,U+3)
    k(f"s_mul_i32 s36, s3, 9216\ns_add_u32 s36, s36, {WOL}\ns_mul_i32 s37, s3, {48*768}\ns_mul_i32 s6, s49, 192\ns_add_u32 s37, s37, s6")
    if not setup_only: w_dma(k,20,U,36,37,768)
def modpoll(k,name,sl=SLP,both=False):
    ex='v_and_b32 v6, 1, v3\nv_lshlrev_b32 v5, 2, v6\n' if both else ''
    k(f"s_cmp_lg_u32 s3, 7\ns_cbranch_scc1 {k.lab('pd'+name)}\nv_mov_b32 v5, 0\n{ex}s_mov_b32 s7, 0\n{k.lab('pl'+name)}:")
    k(f"buffer_load_dword v6, v5, s[96:99], 0 offen sc1\ns_waitcnt vmcnt(0)\nv_cmp_eq_u32 vcc, 0, v6\ns_add_u32 s7, s7, 1\ns_cmp_ge_u32 s7, 0x10000\ns_cbranch_scc1 {k.lab('pd'+name)}\ns_nop 2")
    k(f"s_cbranch_vccz {k.lab('pd'+name)}\ns_sleep {sl}\ns_branch {k.lab('pl'+name)}\n{k.lab('pd'+name)}:\ns_barrier")

def touch(k,lst,name):
    k(f"s_sub_u32 s6, s2, 64\ns_lshl_b32 s6, s6, 1\ns_and_b32 s7, s3, 1\ns_add_u32 s6, s6, s7\ns_lshl_b32 s6, s6, 12\nv_lshlrev_b32 v7, 2, v4\ns_lshr_b32 s7, s3, 1")
    for i,srd in enumerate(lst):
        k(f"s_cmp_lg_u32 s7, {i}\ns_cbranch_scc1 {k.lab('t%s%d'%(name,i))}\nbuffer_load_dword v199, v7, s[{srd}:{srd+3}], s6 offen\n{k.lab('t%s%d'%(name,i))}:")
def pmod(k):
    k("""
    v_and_b32 v8, 7, v0
    v_lshrrev_b32 v9, 3, v0
    v_mul_u32_u24 v10, 27648, v9
    v_lshl_add_u32 v10, v8, 4, v10
    v_mul_u32_u24 v11, 12, v9
    s_lshl_b32 s7, s2, 7
    """)
    for b in range(2): k(f"buffer_load_dwordx3 v[{80+4*b}:{82+4*b}], v11, s[28:31], 0 offen offset:{b*768}")
    for i in range(6):
        k(f"buffer_load_dwordx4 {vr(16+4*i,4)}, v10, s[32:35], s7 offen")
        if i<5: k(f"s_add_u32 s7, s7, 4608")
    k("s_waitcnt vmcnt(6)"); k.st(106)
    for r in range(40,52):
        src=80+4*((r-40)//6)+((r-40)%6)//2
        k(f"v_and_b32 v{r}, 0xffff0000, v{src}" if r%2 else f"v_lshlrev_b32 v{r}, 16, v{src}")
    for r in range(40,52): k(f"v_mul_f32 v{r+12}, 0xbfb8aa3b, v{r}\nv_exp_f32 v{r+12}, v{r+12}")
    for r in range(40,52): k(f"v_add_f32 v{r+12}, 1.0, v{r+12}\nv_rcp_f32 v{r+12}, v{r+12}")
    for r in range(40,52): k(f"v_mul_f32 v{r}, v{r}, v{r+12}\nv_cvt_pk_bf16_f32 v{r}, v{r}, v{r}\nv_lshlrev_b32 v{r}, 16, v{r}")
    AC=[64,72]
    for i in range(6):
        k(f"s_waitcnt vmcnt({5-i})")
        for j in range(4):
            k(f"v_lshlrev_b32 v5, 16, v{16+4*i+j}\nv_and_b32 v6, 0xffff0000, v{16+4*i+j}")
            op="v_fmac_f32" if i else "v_mul_f32"
            for b in range(2): k(f"{op} v{AC[b]+2*j}, v5, v{40+b*6+i}\n{op} v{AC[b]+2*j+1}, v6, v{40+b*6+i}")
    k.st(107)
    k(f"s_cmp_ge_u32 s2, 12\ns_cbranch_scc1 {k.lab('nz')}\nv_mov_b32 v12, 0\nv_mov_b32 v13, 0\nv_mov_b32 v14, 0\nv_mov_b32 v15, 0\nv_lshlrev_b32 v5, 4, v0\ns_lshl_b32 s6, s2, 14\ns_add_u32 s6, s6, {FL:#x}")
    k(f"buffer_store_dwordx4 v[12:15], v5, s[8:11], s6 offen sc1\ns_add_u32 s6, s6, 8192\nbuffer_store_dwordx4 v[12:15], v5, s[8:11], s6 offen sc1\n{k.lab('nz')}:")
    k("s_nop 1")
    for r in range(64,80): k(f"v_add_f32_dpp v{r}, v{r}, v{r} row_ror:8 row_mask:0xf bank_mask:0xf")
    k("s_nop 1")
    for j in range(8): k(f"v_permlane32_swap_b32 v{64+j}, v{72+j}")
    for j in range(8): k(f"v_add_f32 v{64+j}, v{64+j}, v{72+j}")
    k("s_nop 1")
    for j in range(4): k(f"v_permlane16_swap_b32 v{64+j}, v{68+j}")
    k("v_lshlrev_b32 v5, 9, v1\nv_lshl_add_u32 v5, v8, 6, v5\nv_lshl_add_u32 v5, v3, 4, v5")
    for j in range(4): k(f"v_add_f32 v{64+j}, v{64+j}, v{68+j}")
    k("ds_write_b128 v5, v[64:67]")
    k(f"s_waitcnt lgkmcnt(0)\ns_barrier\ns_cmp_ge_u32 s3, 2\ns_cbranch_scc1 {k.lab('m2')}\nv_lshlrev_b32 v5, 2, v0")
    for p in range(8): k(f"ds_read_b32 v{16+p}, v5 offset:{p*512}")
    k("s_waitcnt lgkmcnt(0)")
    for st in (4,2,1):
        for p in range(st): k(f"v_add_f32 v{16+p}, v{16+p}, v{16+p+st}")
    k(f"""
    v_cvt_pk_bf16_f32 v8, v16, v16
    v_lshlrev_b32 v8, 16, v8
    s_sub_u32 s7, s2, 6
    s_cmp_lt_u32 s7, 6
    s_cselect_b32 s6, 1.0, 0
    s_sub_u32 s7, s2, 24
    s_cmp_lt_u32 s7, 6
    s_cselect_b32 s6, 1.0, s6
    v_add_f32 v8, s6, v8
    v_cvt_pk_bf16_f32 v8, v8, v8
    v_lshlrev_b32 v8, 16, v8
    v_lshrrev_b32 v5, 4, v0
    v_lshlrev_b32 v5, 5, v5
    v_and_b32 v6, 7, v0
    v_lshl_add_u32 v5, v6, 2, v5
    v_bfe_u32 v6, v0, 3, 1
    v_mul_u32_u24 v6, 9216, v6
    v_add_u32 v5, v5, v6
    s_lshl_b32 s6, s2, 8
    buffer_store_dword v8, v5, s[8:11], s6 offen sc1
    {k.lab('m2')}:
    """); k.st(108); k(f"""
    s_waitcnt vmcnt(0)
    s_barrier
    """); k.st(109); k(f"""
    s_cmp_lg_u32 s3, 0
    s_cbranch_scc1 {k.lab('m3')}
    s_cmp_lt_u32 s2, 12
    s_cselect_b32 s6, 0, 4
    s_sub_u32 s7, s2, 12
    s_cmp_lt_u32 s7, 6
    s_cbranch_scc1 {k.lab('m3')}
    s_cmp_ge_u32 s2, 30
    s_cbranch_scc1 {k.lab('m3')}
    v_mov_b32 v5, 0
    v_mov_b32 v6, 1
    s_mov_b64 exec, 1
    buffer_atomic_add v6, v5, s[96:99], s6 offen offset:128 sc0 sc1
    s_waitcnt vmcnt(0)
    v_readfirstlane_b32 s7, v6
    s_nop 3
    s_cmp_lg_u32 s7, 11
    s_cbranch_scc1 {k.lab('m4')}
    buffer_store_dword v6, v5, s[96:99], s6 offen sc1
    {k.lab('m4')}:
    s_mov_b64 exec, -1
    {k.lab('m3')}:
    """)

def pfc1(k):
    F=8; PQ=32; O=128; T=152
    k(f"""
    s_sub_u32 s24, s2, 36
    v_lshrrev_b32 v5, 7, v4
    v_mul_u32_u24 v5, 3072, v5
    v_and_b32 v6, 0x70, v4
    v_add_u32 v5, v5, v6
    s_mul_i32 s25, s3, 6144
    s_mul_i32 s26, s3, {48*3072}
    s_lshl_b32 s6, s24, 7
    s_add_u32 s26, s26, s6
    """)
    for i in range(6): k(f"s_mov_b32 m0, s25\ns_add_u32 s25, s25, 1024\nbuffer_load_dwordx4 v5, s[16:19], s26 offen lds\ns_add_u32 s26, s26, {8*3072}")
    wo_dma(k)
    k(f"""
    s_lshr_b32 s27, s3, 1
    s_and_b32 s25, s3, 1
    v_lshrrev_b32 v7, 2, v2
    v_lshl_add_u32 v7, v3, 3, v7
    v_lshlrev_b32 v7, 7, v7
    v_and_b32 v6, 3, v2
    v_lshl_add_u32 v7, v6, 3, v7
    s_mul_i32 s6, s25, 24576
    s_lshl_b32 s7, s27, 5
    s_add_u32 s6, s6, s7
    v_add_u32 v7, s6, v7
    s_lshl_b32 s6, s24, 2
    s_add_u32 s27, s27, s6
    s_min_u32 s6, s3, 5
    s_lshl_b32 s37, s6, 10
    s_cmp_ge_u32 s6, 3
    s_cselect_b32 s26, {9216-3072}, 0
    s_add_u32 s26, s26, s37
    s_add_u32 s26, s26, {1152*4:#x}
    s_add_u32 s37, s37, 53248
    s_mul_i32 s36, s27, 12288
    s_mul_i32 s6, s25, 6144
    s_add_u32 s36, s36, s6
    s_add_u32 s36, s36, {FC1_P:#x}
    s_mov_b32 s40, 0x3f803f80
    s_waitcnt vmcnt(0)
    """)
    ones(k); modpoll(k,'f',6,True)
    k("s_mov_b32 m0, s37\ns_nop 0"); dma(k,26,0,SC)
    for i in range(6): k(f"ds_read_b64_tr_b16 {vr(F+4*i,2)}, v7 offset:{i*4096}\nds_read_b64_tr_b16 {vr(F+4*i+2,2)}, v7 offset:{i*4096+512}")
    k("v_lshlrev_b32 v6, 5, v3\ns_mul_i32 s6, s25, 768\ns_add_u32 s6, s6, 53248\nv_add_u32 v6, s6, v6\ns_waitcnt vmcnt(0) lgkmcnt(0)\ns_barrier")
    for b in range(2):
        k("s_add_u32 s37, s36, 4096")
        u=S+2*b
        for i in range(6):
            if i%3==0:
                for ii in range(i,i+3):
                    for q in range(2):
                        k(f"ds_read_b128 {vr(PQ+16*ii+4*q,4)}, v6 offset:{b*3072+ii*128+16*q}\nds_read_b128 {vr(PQ+16*ii+8+4*q,4)}, v6 offset:{b*3072+1536+ii*128+16*q}")
            k(f"s_waitcnt lgkmcnt({8-4*(i%3)})")
            for j in range(4): k(f"v_lshlrev_b32 v{T+2*j}, 16, v{F+4*i+j}\nv_and_b32 v{T+2*j+1}, 0xffff0000, v{F+4*i+j}\nv_cvt_pk_bf16_f32 v{PQ+16*i+j}, v{PQ+16*i+2*j}, v{PQ+16*i+2*j+1}")
            for j in range(8): k(f"v_mul_f32 v{T+j}, v{T+j}, v{PQ+16*i+8+j}")
            mf(k,200+8*b+4,PQ+16*i,F+4*i,i==0)
            for j in range(4): k(f"v_cvt_pk_bf16_f32 v{O+4*i+j}, v{T+2*j}, v{T+2*j+1}")
            k("s_nop 1"); mf(k,200+8*b,ON,O+4*i,i==0)
            st4(k,O+4*i,4,36 if i<4 else 37,(i%4)*1024)
        if b==0: k("s_add_u32 s36, s36, 0x120000")
    k("s_nop 7")
    for j in range(4): k(f"v_mov_b32 v{S+j}, v{200+4*j}")
    k(f"""
    s_lshr_b32 s6, s3, 1
    s_lshl_b32 s6, s6, 10
    s_add_u32 s6, s6, 49152
    v_add_u32 v5, s6, v4
    s_lshl_b32 s35, s24, 2
    s_add_u32 s35, s35, 1024
    s_cmp_eq_u32 s25, 0
    s_cbranch_scc1 {k.lab('f1')}
    ds_write_b128 v5, {vr(S,4)}
    s_waitcnt lgkmcnt(0)
    s_barrier
    s_branch {k.lab('p1e')}
    {k.lab('f1')}:
    s_barrier
    ds_read_b128 {vr(T,4)}, v5
    s_lshl_b32 s6, s27, 6
    s_add_u32 s6, s6, {UV:#x}
    v_lshlrev_b32 v5, 2, v2
    s_waitcnt lgkmcnt(0)
    """)
    for j in range(4):
        k(f"v_add_f32 v{S+j}, v{S+j}, v{T+j}\nbuffer_store_dword v{S+j}, v5, s[8:11], s6 offen sc1\ns_add_u32 s6, s6, 6144")
    k(f"s_branch {k.lab('p1e')}")

def p1(k):
    k(f"""
    s_lshl_b32 s48, s4, 3
    s_and_b32 s6, s5, 7
    s_add_u32 s48, s48, s6
    s_lshr_b32 s49, s5, 3
    s_mul_i32 s50, s49, 6
    s_add_u32 s50, s50, s3
    s_waitcnt lgkmcnt(0)
    s_cmp_lt_u32 s2, 36
    s_cbranch_scc1 {k.lab('mod')}
    s_cmp_lt_u32 s3, 7
    s_cbranch_scc1 {k.lab('nt')}
    v_lshlrev_b32 v7, 15, v4
    buffer_load_dword v198, v7, s[96:99], 0 offen sc1
    buffer_load_dword v197, v7, s[8:11], 0 offen sc1
    buffer_load_dword v196, v7, s[44:47], 0 offen sc1
    {k.lab('nt')}:
    s_cmp_ge_u32 s2, 64
    s_cbranch_scc1 {k.lab('gemm')}
    s_cmp_lt_u32 s2, 36
    s_cbranch_scc1 {k.lab('mod')}
    s_getpc_b64 s[52:53]
    {k.lab('pc')}:
    s_mov_b32 s54, {k.lab('end')}-{k.lab('pc')}
    s_mov_b32 s55, 0x20000
    s_lshl_b32 s6, s3, 13
    v_lshlrev_b32 v7, 3, v4
    buffer_load_dword v199, v7, s[52:55], s6 offen
    s_cmp_ge_u32 s2, 60
    s_cbranch_scc1 {k.lab('idle')}
    s_branch {k.lab('fc1')}
    {k.lab('mod')}:
    """)
    k.st(105); pmod(k)
    k(f"{k.lab('idle')}:"); modpoll(k,'i',16); k.st(114)
    k(f"s_cmp_ge_u32 s2, 36\ns_cbranch_scc1 {k.lab('i2')}\ns_lshl_b32 s35, s2, 2\ns_add_u32 s35, s35, 1120")
    k(f"""
    s_load_dwordx2 s[16:17], s[0:1], {KOFF['fc2']}
    s_mul_hi_u32 s24, s2, 0x2aaaaaab
    s_mul_i32 s6, s24, 6
    s_sub_u32 s25, s2, s6
    s_lshl_b32 s24, s24, 3
    s_add_u32 s24, s24, s3
    s_mul_i32 s26, s24, {32*768}
    s_lshl_b32 s6, s25, 7
    s_add_u32 s26, s26, s6
    s_lshl_b32 s27, s3, 12
    s_add_u32 s27, s27, 8192
    v_lshrrev_b32 v5, 7, v4
    v_mul_u32_u24 v5, 768, v5
    v_and_b32 v6, 0x70, v4
    v_add_u32 v5, v5, v6
    v_lshrrev_b32 v7, 2, v2
    v_lshl_add_u32 v7, v3, 2, v7
    v_lshlrev_b32 v7, 7, v7
    v_and_b32 v6, 3, v2
    v_lshl_add_u32 v7, v6, 3, v7
    v_add_u32 v7, s27, v7
    s_waitcnt lgkmcnt(0)
    """)
    for i in range(4): k(f"s_mov_b32 m0, s27\ns_add_u32 s27, s27, 1024\nbuffer_load_dwordx4 v5, s[16:19], s26 offen lds\ns_add_u32 s26, s26, {8*768}")
    k(f"s_mul_i32 s26, s25, {4*49152}\ns_lshl_b32 s6, s24, 10\ns_add_u32 s26, s26, s6\ns_add_u32 s26, s26, {FC2_P:#x}\ns_waitcnt vmcnt(0)")
    for c in range(4): k(f"ds_read_b64_tr_b16 {vr(8+4*c,2)}, v7 offset:{c*32}\nds_read_b64_tr_b16 {vr(10+4*c,2)}, v7 offset:{c*32+2048}")
    k("s_waitcnt lgkmcnt(0)")
    for c in range(4): st4(k,8+4*c,4,26); k("s_add_u32 s26, s26, 49152")
    signal(k,'m',35)
    k(f"{k.lab('i2')}:"); wo_dma(k); k("s_waitcnt vmcnt(0)\ns_barrier"); k(f"s_branch {k.lab('p1x')}\n{k.lab('fc1')}:")
    pfc1(k)
    k(f"""
    {k.lab('gemm')}:
    """)
    if not os.environ.get('NOTOUCH'): touch(k,[24,20],'a')
    k(f"""
    s_sub_u32 s41, s5, 8
    s_lshl_b32 s28, s4, 1
    s_and_b32 s6, s41, 1
    s_add_u32 s28, s28, s6
    s_lshr_b32 s29, s41, 1
    s_lshl_b32 s42, s28, 3
    s_add_u32 s42, s42, s3
    s_mul_i32 s30, s42, 12288
    """)
    XL=61440; XO=U+4
    k(f"s_mov_b32 s6, {(2**32+47)//48:#x}")
    for i in range(3):
        d=XO+i; t=XO+3
        k(f"v_lshrrev_b32 v{t}, 4, v4\nv_add_u32 v{t}, {64*i}, v{t}\nv_mul_hi_u32 v{d}, v{t}, s6\nv_mul_u32_u24 v{t+1}, 48, v{d}\nv_sub_u32 v{t}, v{t}, v{t+1}\nv_xor_b32 v{t}, v{t}, v{d}\nv_mul_u32_u24 v{d}, 768, v{d}\nv_lshl_add_u32 v{d}, v{t}, 4, v{d}")
    k(f"s_mul_i32 s31, s3, 12288\ns_add_u32 s31, s31, {XL}\nv_mul_u32_u24 v7, 768, v2\nv_add_u32 v7, s31, v7\nv_xor_b32 v6, v2, v3")
    k.st(110)
    for m_ in range(4):
        for i in range(3):
            k(f"s_mov_b32 m0, s31\ns_add_u32 s31, s31, 1024\nv_xor_b32 v5, {m_<<6}, v{XO+i}\nbuffer_load_dwordx4 v5, s[12:15], s30 offen lds")
        k("s_add_u32 s30, s30, 3072")
    k.st(112)
    for b_ in range(4): k(f"v_xor_b32 v{XO+8+b_}, {4*b_}, v6\nv_lshl_add_u32 v{XO+8+b_}, v{XO+8+b_}, 4, v7")
    chunk_offs(k,U,12,2304,True,S)
    k(f"s_mul_i32 s36, s3, 3072\ns_mul_i32 s37, s3, {16*2304}\ns_mul_i32 s6, s29, 192\ns_add_u32 s37, s37, s6")
    def wgrp():
        for i in range(3): k(f"s_mov_b32 m0, s36\ns_add_u32 s36, s36, 1024\nbuffer_load_dwordx4 v{U+i}, s[24:27], s37 offen lds")
    k("s_waitcnt vmcnt(0) lgkmcnt(0)"); k.st(113)
    for s in range(12): k(f"ds_read_b128 {vr(A+4*s,4)}, v{XO+8+s%4} offset:{(s//4)*256}")
    for g in range(2):
        wgrp(); k(f"s_add_u32 s36, s36, {7*3072}\ns_add_u32 s37, s37, {128*2304}")
    k("s_waitcnt lgkmcnt(0)\ns_barrier"); k.st(1)
    ones(k); k("s_nop 1")
    for s_ in range(12): mstat(k,A+4*s_,s_==0)
    wgrp(); wo_dma(k,XO,True)
    XF=lambda e: (56+e if e<48 else 200+e-48)
    for i in range(48): k(f"v_lshlrev_b32 v{XF(2*i)}, 16, v{A+i}\nv_and_b32 v{XF(2*i+1)}, 0xffff0000, v{A+i}")
    mstat_fin(k,S)
    k(f"v_mul_f32 v{S}, v{S}, v{S+1}")
    for e in range(0,96,2): k(pk('fma',XF(e),XF(e),('b',S+1),('nb',S)))
    k(f"""
    s_lshr_b32 s43, s28, 3
    s_mul_i32 s30, s43, 9216
    s_and_b32 s6, s3, 1
    s_lshl_b32 s6, s6, 10
    s_add_u32 s30, s30, s6
    s_bitcmp1_b32 s3, 1
    s_cselect_b32 s6, 1536, 0
    s_add_u32 s30, s30, s6
    s_and_b32 s31, s3, 3
    s_lshl_b32 s31, s31, 10
    s_add_u32 s31, s31, 73728
    """)
    k.st(2); modpoll(k,'g'); k.st(21)
    k("s_mov_b32 m0, s31\ns_nop 0"); dma(k,30,0,SC)
    tr_addr(k,U,0)
    qs=f2u(192**-0.5*math.log2(math.e))
    k(f"""
    s_cmp_lt_u32 s29, 4
    s_cselect_b32 s30, {qs:#x}, 1.0
    s_cselect_b64 vcc, -1, 0
    s_cselect_b32 s33, -1, -2
    s_and_b32 s33, s42, s33
    s_mul_i32 s33, s33, 12
    s_lshr_b32 s31, s29, 2
    s_mul_i32 s31, s31, {ACT:#x}
    s_and_b32 s32, s29, 3
    s_mul_i32 s32, s32, 3
    s_add_u32 s32, s32, s33
    s_lshl_b32 s32, s32, 10
    s_add_u32 s31, s31, s32
    s_add_u32 s31, s31, {Q_P:#x}
    s_and_b32 s34, s3, 1
    v_bfe_u32 v5, v2, 2, 1
    v_mul_u32_u24 v5, 12288, v5
    v_lshl_add_u32 v5, v3, 8, v5
    v_lshrrev_b32 v6, 3, v2
    v_lshl_add_u32 v5, v6, 6, v5
    v_and_b32 v6, 3, v2
    v_lshl_add_u32 v5, v6, 4, v5
    s_lshl_b32 s6, s34, 7
    v_add_u32 v5, s6, v5
    v_cndmask_b32 v5, v5, v4, vcc
    s_lshl_b32 s35, s28, 6
    s_lshl_b32 s6, s29, 2
    s_add_u32 s35, s35, s6
    v_lshlrev_b32 v1, 5, v3
    v_add_u32 v1, 73728, v1
    s_waitcnt vmcnt(0)
    s_barrier
    """)
    k.st(22)
    k(f"s_cmp_ge_u32 s29, 8\ns_cbranch_scc1 {k.lab('v')}")
    def body(isv):
        PP=176
        order=[(s,cb) for s in range(12) for cb in range(4)]+[(s,cb) for s in range(12) for cb in (4,5)]
        ops=[]
        for i,(s,cb) in enumerate(order):
            if cb==0: ops+=[('p',s,0),('p',s,1)]
            ops.append(('w',s,cb))
        nw=[0]; reg={}; iss=[0]
        def rd(n):
            t,s,x=ops[n]
            if t=='p': k(f"ds_read_b128 {vr(PP+8*x,4)}, v1 offset:{s*128+16*x}\nds_read_b128 {vr(PP+8*x+4,4)}, v1 offset:{2048+s*128+16*x}")
            else:
                r=BB+4*(nw[0]%8); nw[0]+=1; reg[n]=r; a_=U+(x%2)+2*(s//6); o=(s%6)*6144+x*32
                k(f"ds_read_b64_tr_b16 {vr(r,2)}, v{a_} offset:{o}\nds_read_b64_tr_b16 {vr(r+2,2)}, v{a_} offset:{o+768}")
        def fill(n):
            while iss[0]<len(ops) and iss[0]<n+6: rd(iss[0]); iss[0]+=1
        def epi(c):
            R=ACC+8*c; D=S+4*(c%2)
            if isv:
                swap_pack(k,R,R+4,D); st4(k,D,5,31); k("s_add_u32 s31, s31, 65536")
            else:
                for j in range(8): k(f"v_mul_f32 v{R+j}, s30, v{R+j}")
                for j in range(4): k(f"v_cvt_pk_bf16_f32 v{D+j}, v{R+2*j}, v{R+2*j+1}")
                st4(k,D,5,31,c*1024)
        fill(0); i=0
        for n,(t,s,x) in enumerate(ops):
            k(f"s_waitcnt lgkmcnt({2*(iss[0]-n-1)})")
            if t=='p':
                for j in range(4): e=8*s+4*x+j; k(f"v_fma_f32 v{XF(e)}, v{XF(e)}, v{PP+8*x+4+j}, v{PP+8*x+j}")
                for j in range(2): e=8*s+4*x+2*j; k(f"v_cvt_pk_bf16_f32 v{A+4*s+2*x+j}, v{XF(e)}, v{XF(e+1)}")
            else:
                if isv: mf(k,ACC+4*x,A+4*s,reg[n],s==0)
                else: mf(k,ACC+4*x,reg[n],A+4*s,s==0)
                if i==52: epi(0)
                if i==60: epi(1)
                if i%5==0 and i<45:
                    q=i//5
                    k(f"s_mov_b32 m0, s36\ns_add_u32 s36, s36, 1024\nbuffer_load_dwordx4 v{XO+q%3}, s[20:23], s37 offen lds")
                    if q%3==2: k(f"s_add_u32 s37, s37, {16*768}")
                i+=1
            fill(n+1)
        k("s_nop 7"); epi(2)
        k("v_lshrrev_b32 v1, 6, v0")
    body(False)
    k(f"""
    s_branch {k.lab('p1e')}
    {k.lab('v')}:
    s_sub_u32 s31, s29, 8
    s_mul_i32 s31, s31, 6
    s_mul_i32 s32, s43, 24
    s_add_u32 s31, s31, s32
    s_lshl_b32 s31, s31, 5
    s_and_b32 s32, s42, 63
    s_lshr_b32 s32, s32, 1
    s_add_u32 s31, s31, s32
    s_lshl_b32 s31, s31, 10
    s_lshl_b32 s32, s34, 9
    s_add_u32 s31, s31, s32
    s_add_u32 s31, s31, {VT_P:#x}
    v_and_b32 v5, 1, v3
    v_lshlrev_b32 v5, 15, v5
    v_lshrrev_b32 v6, 1, v3
    v_lshl_add_u32 v5, v6, 8, v5
    v_lshl_add_u32 v5, v2, 4, v5
    """)
    body(True)
    k(f"{k.lab('p1e')}:"); k.st(3)
    signal(k,'1',35)
    k(f"{k.lab('p1x')}:"); k.st(4)

def p3setup(k):
    k(f"""
    s_cmp_ge_u32 s3, 6
    s_cbranch_scc1 {k.lab('p3s')}
    v_mul_u32_u24 v6, 768, v2
    v_lshl_add_u32 v6, v3, 3, v6
    s_mul_i32 s29, s48, {32*768}
    s_lshl_b32 s6, s50, 5
    s_add_u32 s29, s29, s6
    s_add_u32 s30, s29, {16*768}
    """)
    ld(k,XG,2,6,29,srd=12); ld(k,XG+2,2,6,30,srd=12)
    tr_addr(k,U,WOL)
    k(f"s_bitcmp1_b32 s3, 0\ns_cselect_b64 vcc, -1, 0\ns_lshl_b32 s6, s3, 5\nv_cndmask_b32 v{U}, v{U}, v{U+1}, vcc\nv_add_u32 v{U}, s6, v{U}\nv_add_u32 v{U+1}, 36864, v{U}")
    for s in range(12):
        for hh in range(2): k(f"ds_read_b64_tr_b16 {vr(WB+4*s+2*hh,2)}, v{U+s//6} offset:{(s%6)*6144+hh*768}")
    k(f"s_waitcnt lgkmcnt(0)\n{k.lab('p3s')}:")

def p2(k):
    QL=0; PL=24576; VL=57344; ML=155648; SL=157696
    KF=8; SA=56; B2=88; T=120
    k(f"""
    s_lshr_b32 s20, s4, 2
    {MAP2}
    s_lshl_b32 s24, s20, 6
    s_lshl_b32 s6, s23, 2
    s_add_u32 s24, s24, s6
    s_lshr_b32 s6, s3, 1
    s_add_u32 s25, s24, s6
    s_mul_i32 s25, s25, 12
    s_mul_i32 s26, s21, 6
    s_add_u32 s25, s25, s26
    s_and_b32 s6, s3, 1
    s_mul_i32 s6, s6, 3
    s_add_u32 s25, s25, s6
    s_lshl_b32 s25, s25, 10
    s_add_u32 s25, s25, {Q_P:#x}
    s_lshl_b32 s27, s20, 6
    s_lshl_b32 s6, s22, 4
    s_add_u32 s27, s27, s6
    s_lshl_b32 s6, s3, 1
    s_add_u32 s27, s27, s6
    s_mul_i32 s27, s27, 12
    s_add_u32 s27, s27, s26
    s_lshl_b32 s27, s27, 10
    s_add_u32 s27, s27, {K_P:#x}
    s_add_u32 s36, s27, 12288
    s_mul_i32 s28, s20, 24
    s_mul_i32 s6, s21, 12
    s_add_u32 s28, s28, s6
    s_lshl_b32 s28, s28, 5
    s_lshl_b32 s6, s22, 3
    s_add_u32 s28, s28, s6
    s_add_u32 s28, s28, s3
    s_lshl_b32 s28, s28, 10
    s_add_u32 s28, s28, {VT_P:#x}
    s_lshl_b32 s29, s3, 10
    s_add_u32 s29, s29, {VL}
    """)
    poll(k,'2',f"""
    v_bfe_u32 v6, v0, 2, 2
    v_min_u32 v6, 2, v6
    v_bfe_u32 v7, v0, 1, 1
    s_lshl_b32 s6, s22, 1
    v_add_u32 v7, s6, v7
    s_lshr_b32 s6, s23, 1
    v_mov_b32 v5, s6
    v_cmp_eq_u32 vcc, 0, v6
    s_lshl_b32 s6, s20, 9
    s_lshl_b32 s7, s21, 3
    v_cndmask_b32 v7, v7, v5, vcc
    s_add_u32 s6, s6, s7
    v_lshlrev_b32 v7, 6, v7
    v_lshl_add_u32 v7, v6, 4, v7
    v_and_b32 v6, 1, v0
    v_lshl_add_u32 v7, v6, 2, v7
    v_add_u32 v5, s6, v7
    """)
    k.st()
    k("s_mul_i32 s6, s3, 3072\ns_mov_b32 m0, s6\ns_nop 0")
    for i in range(3): dma(k,25,i*1024,SC)
    def ldk(s):
        if s==4: k("s_add_u32 s27, s27, 4096\ns_add_u32 s36, s36, 4096")
        for kb in range(2): ld(k,KF+24*kb+4*s,4,4,(27,36)[kb],(s%4)*1024,sc=SC)
    for s in range(6): ldk(s)
    k("s_waitcnt vmcnt(12)\ns_barrier"); k.st()
    items=[(4,QL+(qb*6+s)*1024) for s in range(6) for qb in range(4)]
    def mf1(i,b):
        s,qb=divmod(i,4)
        if qb==0: k("s_waitcnt vmcnt(10)")
        if qb in (0,2):
            k(f"s_mov_b32 m0, s29\ns_add_u32 s29, s29, 8192"); dma(k,28,0,SC); k("s_add_u32 s28, s28, 32768")
        for kb in range(2): mf(k,SA+8*qb+4*kb,KF+24*kb+4*s,b,s==0)
    gemm_loop(k,items,B2,8,mf1); k.st()
    k(f"v_lshrrev_b32 v5, 4, v4\nv_min_u32 v5, 59, v5\nv_lshlrev_b32 v5, 2, v5\nv_add_u32 v5, 1024, v5\nv_lshlrev_b32 v5, 5, v5\ns_mov_b32 s6, {FL:#x}\nbuffer_load_dword v199, v5, s[8:11], s6 offen sc1")
    k(f"""
    v_and_b32 v5, 63, v0
    v_lshlrev_b32 v5, 5, v5
    v_lshl_add_u32 v5, v1, 2, v5
    v_add_u32 v5, {ML}, v5
    v_lshlrev_b32 v6, 5, v2
    v_add_u32 v6, {ML}, v6
    s_lshl_b32 s6, s3, 10
    s_add_u32 s6, s6, {PL}
    v_add_u32 v7, s6, v4
    """)
    M=KF
    def max8(m,r): k(f"v_max3_f32 v{m}, v{r}, v{r+1}, v{r+2}\nv_max3_f32 v{m}, v{m}, v{r+3}, v{r+4}\nv_max3_f32 v{m}, v{m}, v{r+5}, v{r+6}\nv_max_f32 v{m}, v{m}, v{r+7}")
    for qb in range(4): max8(M+qb,SA+8*qb)
    def treduce(op,addr_off):
        k(f"s_nop 1\nv_permlane32_swap_b32 v{M}, v{M+2}\nv_permlane32_swap_b32 v{M+1}, v{M+3}\ns_nop 1\n{op} v{M}, v{M}, v{M+2}\n{op} v{M+1}, v{M+1}, v{M+3}")
        k(f"s_nop 1\nv_permlane16_swap_b32 v{M}, v{M+1}\ns_nop 1\n{op} v{M}, v{M}, v{M+1}\nds_write_b32 v5, v{M} offset:{addr_off}")
    treduce("v_max_f32",0)
    k("s_waitcnt lgkmcnt(0)\ns_barrier")
    G=KF+8
    for qb in range(4):
        for q in range(2): k(f"ds_read_b128 {vr(G+8*qb+4*q,4)}, v6 offset:{qb*512+16*q}")
    for qb in range(4):
        k(f"s_waitcnt lgkmcnt({6-2*qb})"); max8(T+qb,G+8*qb)
    k("s_mov_b32 s40, 0x3f803f80")
    for qb in range(4):
        r=SA+8*qb
        for j in (0,2,4,6): k(pk('add',r+j,r+j,('nb',T+qb)))
        for j in range(8): k(f"v_exp_f32 v{r+j}, v{r+j}")
        k("s_nop 0")
        for j in range(4): k(f"v_cvt_pk_bf16_f32 v{B2+4*qb+j}, v{r+2*j}, v{r+2*j+1}")
        k(f"ds_write_b128 v7, {vr(B2+4*qb,4)} offset:{qb*8192}")
        k(pk('add',r,r,r+2)); k(pk('add',r+4,r+4,r+6)); k(pk('add',r,r,r+4)); k(f"v_add_f32 v{M+qb}, v{r}, v{r+1}")
    k("s_nop 1")
    treduce("v_add_f32",SL-ML)
    k(f"s_waitcnt vmcnt(0) lgkmcnt(0)\nv_cmp_eq_u32 vcc, 0, v199\nv_mov_b32 v198, v6\ns_nop 3\ns_cbranch_vccz {k.lab('pds')}")
    poll(k,'s',"v_lshrrev_b32 v5, 4, v4\nv_min_u32 v5, 59, v5\nv_lshlrev_b32 v5, 2, v5\nv_add_u32 v5, 1024, v5",bar=False)
    k("v_mov_b32 v6, v198")
    k(f"""
    s_and_b32 s30, s3, 3
    s_lshr_b32 s31, s3, 2
    s_mul_i32 s6, s30, 24576
    s_add_u32 s6, s6, {VL}
    v_add_u32 v5, s6, v4
    s_lshl_b32 s6, s31, 14
    s_add_u32 s6, s6, {PL}
    v_add_u32 v7, s6, v4
    s_lshl_b32 s6, s31, 10
    v_add_u32 v6, s6, v6
    s_cmp_eq_u32 s31, 0
    s_cselect_b64 vcc, -1, 0
    v_cndmask_b32 v{T}, v{T+2}, v{T}, vcc
    v_cndmask_b32 v{T+1}, v{T+3}, v{T+1}, vcc
    """)
    k.st(); k("s_waitcnt vmcnt(0) lgkmcnt(0)\ns_barrier"); k.st()
    for qq in range(2):
        for q in range(2): k(f"ds_read_b128 {vr(G+8*qq+4*q,4)}, v6 offset:{SL-ML+qq*512+16*q}")
    OA=SA; PR=128
    k(f"""
    s_lshl_b32 s6, s31, 1
    s_add_u32 s24, s24, s6
    s_mul_i32 s32, s24, 12288
    s_mul_i32 s6, s22, {ACT:#x}
    s_add_u32 s32, s32, s6
    s_add_u32 s32, s32, {O_P:#x}
    s_mul_i32 s33, s21, 12
    s_mul_i32 s6, s30, 3
    s_add_u32 s33, s33, s6
    s_lshl_b32 s33, s33, 9
    s_add_u32 s32, s32, s33
    v_and_b32 v197, 1, v3
    v_mul_u32_u24 v197, 12288, v197
    v_lshrrev_b32 v6, 1, v3
    v_lshl_add_u32 v197, v6, 8, v197
    v_lshl_add_u32 v197, v2, 4, v197
    """)
    seq=[]
    for ks in range(8): seq+=[('p',0,ks),('p',1,ks),('v',0,ks)]
    seq+=[('v',j,ks) for j in (1,2) for ks in range(8)]
    nv=[0]; reg={}
    def rd(i):
        t,x,ks=seq[i]
        if t=='p': r=PR+32*x+4*ks; a_=7
        else: r=B2+4*(nv[0]%8); nv[0]+=1; a_=5
        reg[i]=r; k(f"ds_read_b128 {vr(r,4)}, v{a_} offset:{x*8192+ks*1024}")
    def oepi(j):
        for qq in range(2):
            r=OA+8*j+4*qq
            for t in range(4): k(f"v_mul_f32 v{r+t}, v{r+t}, v{G+8*qq+1}")
        swap_pack(k,OA+8*j,OA+8*j+4,40+4*j); st4(k,40+4*j,197,32,j*512)
    issued=0
    def fill(i):
        nonlocal issued
        while issued<len(seq) and issued<i+9 and sum(1 for q in range(i,issued+1) if seq[q][0]=='v')<=7:
            rd(issued); issued+=1
    fill(0)
    for i,(t,x,ks) in enumerate(seq):
        if t=='v':
            k(f"s_waitcnt lgkmcnt({issued-i-1})")
            for qq in range(2): mf(k,OA+8*x+4*qq,reg[i],PR+32*qq+4*ks,ks==0)
            if x==0 and ks==1:
                for qq in range(2):
                    r=G+8*qq
                    k(f"v_add_f32 v{r}, v{r}, v{r+1}")
                    for j in range(2,8): k(f"v_add_f32 v{r}, v{r}, v{r+j}")
                    k(f"v_rcp_f32 v{r+1}, v{r}\nv_log_f32 v{r+2}, v{r}")
            if x and ks==3: oepi(x-1)
        fill(i+1)
    k.st()
    k("s_nop 7"); oepi(2)
    k(f"""
    s_lshl_b32 s35, s20, 4
    s_add_u32 s35, s35, s23
    s_lshl_b32 s35, s35, 6
    s_lshl_b32 s6, s21, 4
    s_add_u32 s35, s35, s6
    s_lshl_b32 s6, s22, 2
    s_add_u32 s35, s35, s6
    s_add_u32 s35, s35, 2048
    s_cmp_lg_u32 s30, 0
    s_cbranch_scc1 {k.lab('p2e')}
    v_add_f32 v{T}, v{T}, v{G+2}
    v_add_f32 v{T+1}, v{T+1}, v{G+10}
    v_cmp_eq_u32 vcc, 0, v3
    s_lshl_b32 s6, s22, 1
    s_add_u32 s6, s6, s21
    v_cndmask_b32 v{T}, v{T+1}, v{T}, vcc
    s_lshl_b32 s6, s6, 13
    s_lshl_b32 s7, s24, 6
    s_add_u32 s6, s6, s7
    s_add_u32 s6, s6, {LSE:#x}
    v_lshrrev_b32 v5, 2, v4
    s_mov_b32 exec_hi, 0
    buffer_store_dword v{T}, v5, s[8:11], s6 offen sc1
    s_mov_b64 exec, -1
    {k.lab('p2e')}:
    """)
    signal(k,'2',35); k.st()
    if LOC>1:
        for j in range(3): ld(k,64,4,197,32,j*512,sc=SC)

FC1L=24576
def p4setup(k):
    k(f"""
    {MAP4}
    s_lshl_b32 s53, s51, 3
    s_add_u32 s53, s53, s3
    s_lshr_b32 s25, s51, 3
    s_and_b32 s27, s3, 1
    s_mul_i32 s27, s27, 36864
    s_mul_i32 s28, s52, 73728
    s_add_u32 s28, s28, s27
    s_mul_i32 s29, s25, 0x120000
    s_add_u32 s28, s28, s29
    s_add_u32 s28, s28, {FC1_P:#x}
    s_add_u32 s27, s27, {FC1L}
    """)
    k(f"s_lshr_b32 s6, s48, 5\ns_mul_i32 s31, s6, 9216\ns_lshl_b32 s6, s50, 6\ns_add_u32 s31, s31, s6\ns_add_u32 s31, s31, {768*4}\nv_lshlrev_b32 v7, 4, v3")
    ld(k,XG+4,4,7,31,sc=SC)
def fc1dma(k):
    for i in range(9):
        if i%4==0:
            if i: k("s_add_u32 s27, s27, 4096\ns_add_u32 s28, s28, 4096")
            k("s_mov_b32 m0, s27\ns_nop 0")
        dma(k,28,(i%4)*1024,SC)

def p3(k):
    OP=8; LS=56; t=ACC
    k(f"""
    s_lshl_b32 s22, s48, 1
    s_lshr_b32 s6, s3, 2
    s_add_u32 s23, s22, s6
    s_and_b32 s24, s3, 3
    s_mul_i32 s25, s23, 12288
    s_mul_i32 s6, s24, 3072
    s_add_u32 s25, s25, s6
    s_add_u32 s25, s25, {O_P:#x}
    s_lshr_b32 s6, s24, 1
    s_lshl_b32 s26, s6, 13
    s_lshl_b32 s6, s23, 6
    s_add_u32 s26, s26, s6
    s_add_u32 s26, s26, {LSE:#x}
    """)
    poll(k,'3',"s_lshr_b32 s6, s48, 1\ns_lshl_b32 s6, s6, 6\ns_add_u32 s6, s6, 2048\nv_and_b32 v5, 7, v0\nv_lshlrev_b32 v5, 2, v5\nv_add_u32 v5, s6, v5")
    k.st(); k("v_lshlrev_b32 v5, 2, v2")
    for sp in range(4):
        ld(k,LS+sp,1,5,26,sc=SC)
        if sp<3: k("s_add_u32 s26, s26, 16384")
    for i in range(3):
        for sp in range(4):
            k(f"s_add_u32 s6, s25, {sp*ACT:#x}"); ld(k,OP+16*i+4*sp,4,4,6,i*1024,sc=SC)
    k(f"s_waitcnt vmcnt(12)\nv_max3_f32 v{t}, v{LS}, v{LS+1}, v{LS+2}\nv_max_f32 v{t}, v{t}, v{LS+3}")
    for sp in range(4): k(f"v_sub_f32 v{LS+sp}, v{LS+sp}, v{t}")
    for sp in range(4): k(f"v_exp_f32 v{LS+sp}, v{LS+sp}")
    k(f"s_nop 0\nv_add_f32 v{t}, v{LS}, v{LS+1}\nv_add_f32 v{t}, v{t}, v{LS+2}\nv_add_f32 v{t}, v{t}, v{LS+3}\nv_rcp_f32 v{t}, v{t}\ns_mul_i32 s6, s3, 3072")
    for sp in range(4): k(f"v_mul_f32 v{LS+sp}, v{LS+sp}, v{t}")
    k("v_add_u32 v5, s6, v4")
    for i in range(3):
        for sp in range(4):
            k(f"s_waitcnt vmcnt({11-4*i-sp})")
            for j in range(4):
                r=OP+16*i+4*sp+j
                u=60+2*j
                k(f"v_lshlrev_b32 v{u}, 16, v{r}\nv_and_b32 v{u+1}, 0xffff0000, v{r}")
            for j in range(4):
                u=60+2*j
                k(pk('fma',t+2*j,u,('b',LS+sp),t+2*j) if sp else pk('mul',t+2*j,u,('b',LS+sp)))
        for j in range(4): k(f"v_cvt_pk_bf16_f32 v{OP+16*i+j}, v{t+2*j}, v{t+2*j+1}")
        k(f"ds_write_b128 v5, {vr(OP+16*i,4)} offset:{i*1024}")
    k(f"""
    s_lshr_b32 s35, s48, 2
    s_lshl_b32 s35, s35, 6
    s_and_b32 s6, s48, 3
    s_lshl_b32 s6, s6, 4
    s_add_u32 s35, s35, s6
    s_lshl_b32 s6, s49, 2
    s_add_u32 s35, s35, s6
    s_add_u32 s35, s35, 4096
    s_waitcnt lgkmcnt(0)
    s_barrier
    """)
    k.st(); k(f"s_cmp_ge_u32 s3, 6\ns_cbranch_scc1 {k.lab('p3d')}")
    items=[(4,(rb*12+s)*1024) for s in range(12) for rb in range(2)]
    gemm_loop(k,items,OP,12,lambda i,b: mf(k,ACC+4*(i%2),WB+4*(i//2),b,i<2))
    k(f"""
    s_mul_i32 s32, s22, 12288
    s_lshl_b32 s6, s50, 9
    s_add_u32 s32, s32, s6
    s_add_u32 s32, s32, {X1_P:#x}
    v_and_b32 v5, 1, v3
    v_mul_u32_u24 v5, 12288, v5
    v_lshrrev_b32 v6, 1, v3
    v_lshl_add_u32 v5, v6, 8, v5
    v_lshl_add_u32 v5, v2, 4, v5
    """)
    for rb in range(2):
        for j in range(2):
            x=XG+2*rb+j; a=ACC+4*rb+2*j
            k(f"v_lshlrev_b32 v8, 16, v{x}\nv_and_b32 v9, 0xffff0000, v{x}\nv_fma_f32 v{a}, v{a}, v{XG+4+2*j}, v8\nv_fma_f32 v{a+1}, v{a+1}, v{XG+4+2*j+1}, v9")
    swap_pack(k,ACC,ACC+4,12); st4(k,12,5,32)
    k(f"s_waitcnt vmcnt(0)\ns_branch {k.lab('p3e')}\n{k.lab('p3d')}:")
    def f1loop(n,nm):
        k(f"s_mov_b32 s39, {n}\n{k.lab(nm)}:\ns_mov_b32 m0, s27\ns_add_u32 s27, s27, 4096")
        for i in range(4): dma(k,28,i*1024,SC)
        k(f"s_add_u32 s28, s28, 4096\ns_sub_u32 s39, s39, 1\ns_cmp_lg_u32 s39, 0\ns_cbranch_scc1 {k.lab(nm)}")
    f1loop(5,'p3l')
    k(f"{k.lab('p3e')}:")
    signal(k,'3',35,63); k.st()
    k(f"s_cmp_lt_u32 s3, 6\ns_cbranch_scc1 {k.lab('p3z')}"); f1loop(4,'p3m'); k(f"{k.lab('p3z')}:")

def f2addr(q):
    if q<20: return 98304+q*3072
    if q<28: return (q-20)*3072
    return FC1L+(q-28)*3072
RL=FC1L+60*1024
def f2dma(k,q0,q1):
    for q in range(q0,q1,8):
        hi=min(q+8,q1)
        if hi-q<8: k(f"s_cmp_ge_u32 s3, {hi-q}\ns_cbranch_scc1 {k.lab('f2_%d'%q)}")
        k(f"s_add_u32 s6, s57, {(q//2)*1024}\ns_add_u32 s7, s38, {f2addr(q)}")
        for i in range(3): k(f"s_mov_b32 m0, s7\ns_add_u32 s7, s7, 1024\nbuffer_load_dwordx4 v{U+i}, s[8:11], s6 offen sc1 lds")
        if hi-q<8: k(f"{k.lab('f2_%d'%q)}:")
def p5setup(k):
    k(f"""
    s_lshl_b32 s54, s4, 2
    s_and_b32 s6, s5, 3
    s_add_u32 s54, s54, s6
    s_lshr_b32 s55, s5, 2
    s_lshl_b32 s56, s54, 2
    s_and_b32 s6, s3, 3
    s_add_u32 s56, s56, s6
    s_mul_i32 s57, s55, 147456
    s_and_b32 s6, s3, 1
    s_mul_i32 s6, s6, 24576
    s_add_u32 s57, s57, s6
    s_lshr_b32 s6, s3, 1
    s_lshl_b32 s6, s6, 10
    s_add_u32 s57, s57, s6
    s_add_u32 s57, s57, {FC2_P:#x}
    s_mul_i32 s38, s3, 3072
    s_lshr_b32 s25, s51, 3
    s_mul_i32 s30, s25, 12288
    s_mul_i32 s31, s52, 384
    s_add_u32 s30, s30, s31
    s_add_u32 s30, s30, {UV:#x}
    v_cmp_le_u32 vcc, 384, v4
    v_add_u32 v6, {6144-384}, v4
    s_mov_b32 m0, 159744
    v_cndmask_b32 v6, v4, v6, vcc
    s_cmp_lg_u32 s3, 0
    s_cbranch_scc1 {k.lab('uv')}
    buffer_load_dwordx4 v6, s[8:11], s30 offen sc1 lds
    {k.lab('uv')}:
    """)
    for i in range(3): k(f"v_add_u32 v{U+i}, {i*49152}, v4")

def p4(k):
    UU=WB
    k(f"s_mul_i32 s23, s53, 12288\ns_add_u32 s23, s23, {X1_P:#x}")
    poll(k,'4',"s_lshl_b32 s6, s51, 6\ns_add_u32 s6, s6, 4096\nv_lshlrev_b32 v5, 2, v2\nv_add_u32 v5, s6, v5",pw=1,drain=True)
    k.st()
    for s in range(12):
        if s and s%4==0: k("s_add_u32 s23, s23, 4096")
        ld(k,A+4*s,4,4,23,(s%4)*1024,sc=SC)
    k(f"""
    v_add_u32 v6, {FC1L}, v4
    v_add_u32 v7, {FC1L+36864}, v4
    s_mul_i32 s32, s53, 48
    s_mul_i32 s33, s52, 3
    s_add_u32 s32, s32, s33
    s_lshl_b32 s32, s32, 10
    s_add_u32 s32, s32, {G_P:#x}
    v_mov_b32 v86, 1.0
    v_mov_b32 v84, {f2u(-2*math.sqrt(2/math.pi)*math.log2(math.e)*0.044715):#x}
    v_mov_b32 v85, {f2u(-2*math.sqrt(2/math.pi)*math.log2(math.e)):#x}
    s_lshl_b32 s35, s51, 6
    s_lshl_b32 s6, s52, 2
    s_add_u32 s35, s35, s6
    s_add_u32 s35, s35, 5120
    """)
    k("v_lshlrev_b32 v1, 4, v3\nv_add_u32 v1, 159744, v1"); ones(k)
    for cb in range(6): k(f"ds_read_b128 {vr(WB+4*cb,4)}, v1 offset:{cb*64}\nds_read_b128 {vr(WB+24+4*cb,4)}, v1 offset:{384+cb*64}")
    k("s_waitcnt lgkmcnt(0)")
    order=[(s,cb) for s in range(12) for cb in range(4)]+[(s,cb) for s in range(12) for cb in (4,5)]
    items=[((6 if cb<3 else 7),((cb%3)*12+s)*1024) for s,cb in order]
    T=[64+j for j in range(8)]
    def gl(i,P=True):
        R=[ACC+8*i+j for j in range(8)]; L=[]
        E=(0,2,4,6)
        pk=globals()['pk']
        if not P:
            def pk(op,d,*src):
                f=lambda x,h: (f"v{x+h}" if isinstance(x,int) else ("-" if x[0]=='nb' else "")+f"v{x[1]}")
                return "\n".join(f"v_{op}_f32 v{d+h}, "+", ".join(f(x,h) for x in src) for h in (0,1))
        for j in E: L.append(pk('fma',R[j],('nb',S),UU+8*i+j,R[j]))
        for j in E: L.append(pk('fma',R[j],R[j],('b',S+1),UU+24+8*i+j))
        for j in E: L.append(pk('mul',T[j],R[j],R[j]))
        for j in E: L.append(pk('fma',T[j],T[j],('b',84),('b',85)))
        for j in E: L.append(pk('mul',T[j],T[j],R[j]))
        for j in range(8): L.append(f"v_exp_f32 v{T[j]}, v{T[j]}")
        for j in E: L.append(pk('add',T[j],T[j],('b',86)))
        for j in range(8): L.append(f"v_rcp_f32 v{T[j]}, v{T[j]}")
        for j in E: L.append(pk('mul',R[j],R[j],T[j]))
        for j in range(4): L.append(f"v_cvt_pk_bf16_f32 v{72+4*i+j}, v{R[2*j]}, v{R[2*j+1]}")
        L.append(f"buffer_store_dwordx4 {vr(72+4*i,4)}, v4, s[8:11], s32 offen offset:{i*1024} sc1")
        return L
    Q=[l for x in gl(0,False) for l in x.split('\n')]
    def m(i,b):
        s,cb=order[i]
        if cb==0: k(f"s_waitcnt vmcnt({11-s+(3 if s==11 else 0)})")
        mf(k,ACC+4*cb,b,A+4*s,s==0)
        if cb==0: mstat(k,A+4*s,s==0)
        if i==48: mstat_fin(k,S)
        if i in (40,46,54,62): f2dma(k,*{40:(0,8),46:(8,16),54:(16,20),62:(20,28)}[i])
        if i>48:
            for _ in range(4):
                if Q: k(Q.pop(0))
    gemm_loop(k,items,BB,8,m); k.st()
    for l in Q+gl(1)+gl(2): k(l)
    k.st()
    signal(k,'4',35); k.st()
    if LOC>1:
        for j in range(3): ld(k,104,4,4,32,j*1024,sc=SC)
    f2dma(k,28,48)

def p5(k):
    X5=WB
    k(f"""
    s_lshr_b32 s23, s3, 2
    s_mul_i32 s25, s56, 49152
    s_mul_i32 s6, s23, 24576
    s_add_u32 s25, s25, s6
    s_add_u32 s25, s25, {G_P:#x}
    s_mul_i32 s29, s56, 12288
    s_mul_i32 s6, s55, 1536
    s_add_u32 s29, s29, s6
    s_add_u32 s29, s29, {X1_P:#x}
    s_lshr_b32 s6, s54, 4
    s_mul_i32 s30, s6, 9216
    s_mul_i32 s6, s55, 192
    s_add_u32 s30, s30, s6
    s_add_u32 s30, s30, {1920*4}
    """)
    poll(k,'5',"s_lshr_b32 s6, s54, 1\ns_lshl_b32 s6, s6, 6\ns_add_u32 s6, s6, 5120\nv_lshlrev_b32 v5, 2, v2\nv_add_u32 v5, s6, v5")
    k.st()
    def lda(s):
        if s and s%4==0: k("s_add_u32 s25, s25, 4096")
        ld(k,A+4*s,4,4,25,(s%4)*1024,sc=SC)
    for s in range(12): lda(s)
    k(f"""
    s_mul_i32 s6, s23, 3072
    v_add_u32 v5, s6, v4
    v_add_u32 v6, 61440, v5
    v_add_u32 v7, 61440, v6
    v_lshlrev_b32 v1, 4, v3
    v_lshrrev_b32 v{S}, 1, v3
    v_lshlrev_b32 v{S}, 8, v{S}
    v_lshl_add_u32 v{S}, v2, 4, v{S}
    v_and_b32 v{S+1}, 1, v3
    v_lshl_add_u32 v{S}, v{S+1}, 3, v{S}
    """)
    items=[(5+f2addr(2*(n//3))//61440,f2addr(2*(n//3))%61440+(n%3)*1024) for n in range(72)]
    def m(i,b):
        s,cb=divmod(i,3)
        if cb==0:
            k(f"s_waitcnt vmcnt({11 if s<12 else 23-s+6})")
            if s<12: lda(12+s)
            if s==8: k('s_barrier')
            if s==11:
                for c in range(3):
                    ld(k,X5+2*c,2,S,29,c*512,sc=SC); ld(k,X5+8+4*c,4,1,30,c*64,sc=SC)
        mf(k,ACC+4*cb,b,A+4*s,s==0)
    gemm_loop(k,items,BB,8,m); k.st()
    k(f"""
    s_and_b32 s6, s3, 3
    s_mul_i32 s6, s6, 3072
    s_add_u32 s6, s6, {RL}
    v_add_u32 v5, s6, v4
    s_cmp_eq_u32 s23, 0
    s_cbranch_scc1 {k.lab('lo')}
    s_nop 4
    """)
    for cb in range(3): k(f"ds_write_b128 v5, {vr(ACC+4*cb,4)} offset:{cb*1024}")
    k(f"s_waitcnt lgkmcnt(0)\ns_barrier\ns_endpgm\n{k.lab('lo')}:")
    k(f"v_mul_u32_u24 v6, 768, v2\nv_lshl_add_u32 v6, v3, 3, v6\ns_mul_i32 s31, s56, {16*768}\ns_mul_i32 s6, s55, 96\ns_add_u32 s31, s31, s6\ns_barrier")
    for cb in range(3): k(f"ds_read_b128 {vr(BB+4*cb,4)}, v5 offset:{cb*1024}")
    k("s_waitcnt vmcnt(0) lgkmcnt(0)")
    for cb in range(3):
        for t in range(4): k(f"v_add_f32 v{ACC+4*cb+t}, v{ACC+4*cb+t}, v{BB+4*cb+t}")
        for j in range(2):
            x=X5+2*cb+j
            k(f"v_lshlrev_b32 v8, 16, v{x}\nv_and_b32 v9, 0xffff0000, v{x}")
            k(f"v_fma_f32 v8, v{ACC+4*cb+2*j}, v{X5+8+4*cb+2*j}, v8\nv_fma_f32 v9, v{ACC+4*cb+2*j+1}, v{X5+8+4*cb+2*j+1}, v9\nv_cvt_pk_bf16_f32 v{x}, v8, v9")
        k(f"buffer_store_dwordx2 {vr(X5+2*cb,2)}, v6, s[44:47], s31 offen offset:{cb*32}")

def km():
    k=K(NAME,256,512,163840,256,sgpr=102)
    k(f"s_cmp_ge_u32 s2, 256\ns_cbranch_scc1 {k.lab('end')}")
    k.srds([('ws',8),('x',12),('fc1',16),('wo',20),('wqkv',24),('c',28),('wmod',32),('out',44),('dbg',96)])
    k("v_lshrrev_b32 v1, 6, v0\nv_and_b32 v2, 15, v0\nv_readfirstlane_b32 s3, v1\nv_bfe_u32 v3, v0, 4, 2\nv_and_b32 v4, 63, v0\nv_lshlrev_b32 v4, 4, v4\ns_and_b32 s4, s2, 7\ns_lshr_b32 s5, s2, 3")
    p1(k); p3setup(k); p2(k); p4setup(k); p5setup(k); p3(k); p4(k); p5(k)
    k(f"{k.lab('end')}:\ns_endpgm")
    return k
```

```python
from common import *
from k14 import f2u, stats, stats_fin
import math, os
SC=" sc1"
SLP=int(os.environ.get('SLP','3'))
NAME='standalone__dit_block__diffusion_kernel'
def mf(k,c,a,b,first): k(f"v_mfma_f32_16x16x32_bf16 {vr(c,4)}, {vr(a,4)}, {vr(b,4)}, {0 if first else vr(c,4)}")
def ld(k,dst,n,voff,soff,off=0,srd=8,sc=""):
    w={1:"dword",2:"dwordx2",4:"dwordx4"}[n]
    k(f"buffer_load_{w} {vr(dst,n)}, v{voff}, s[{srd}:{srd+3}], s{soff} offen"+(f" offset:{off}" if off else "")+sc)
def dma(k,soff,off=0,sc=""): k(f"buffer_load_dwordx4 v4, s[8:11], s{soff} offen"+(f" offset:{off}" if off else "")+sc+" lds")
def st4(k,src,voff,soff,off=0): k(f"buffer_store_dwordx4 {vr(src,4)}, v{voff}, s[8:11], s{soff} offen"+(f" offset:{off}" if off else "")+SC)

def signal(k,name,soff,n=0):
    k(f"s_waitcnt vmcnt({n})\ns_barrier\ns_cmp_lg_u32 s3, 0\ns_cbranch_scc1 {k.lab('sg'+name)}")
    k(f"v_mov_b32 v5, 0\nv_mov_b32 v6, 1\ns_lshl_b32 s{soff}, s{soff}, 5\ns_add_u32 s{soff}, s{soff}, {FL:#x}\ns_mov_b64 exec, 1\nbuffer_store_dword v6, v5, s[8:11], s{soff} offen sc1\ns_mov_b64 exec, -1")
    k(f"{k.lab('sg'+name)}:")
def poll(k,name,setup,pw=7,drain=False,bar=True):
    k(f"s_cmp_lg_u32 s3, {pw}\ns_cbranch_scc1 {k.lab('pd'+name)}")
    k(setup)
    k(f"v_lshlrev_b32 v5, 5, v5\ns_mov_b32 s6, {FL:#x}\ns_mov_b32 s7, 0\n{k.lab('pl'+name)}:")
    k(f"buffer_load_dword v6, v5, s[8:11], s6 offen sc1\ns_waitcnt vmcnt(0)\nv_cmp_eq_u32 vcc, 0, v6\ns_add_u32 s7, s7, 1\ns_cmp_ge_u32 s7, 0x10000\ns_cbranch_scc1 {k.lab('pd'+name)}\ns_nop 2")
    k(f"s_cbranch_vccz {k.lab('pd'+name)}\ns_sleep {SLP}\ns_branch {k.lab('pl'+name)}\n{k.lab('pd'+name)}:")
    if drain: k("s_waitcnt vmcnt(0)")
    if bar: k("s_barrier")
def swap_pack(k,X,Y,D):
    k(f"v_cvt_pk_bf16_f32 v{D}, v{X}, v{X+1}\nv_cvt_pk_bf16_f32 v{D+1}, v{X+2}, v{X+3}\nv_cvt_pk_bf16_f32 v{D+2}, v{Y}, v{Y+1}\nv_cvt_pk_bf16_f32 v{D+3}, v{Y+2}, v{Y+3}")
    k(f"s_nop 1\nv_permlane16_swap_b32 v{D}, v{D+2}\nv_permlane16_swap_b32 v{D+1}, v{D+3}\ns_nop 0")

ON=192; SM=184; GR=188
def ones(k):
    for j in range(4): k(f"v_mov_b32 v{ON+j}, 0x3f803f80")
def mstat(k,a,first): mf(k,SM,ON,a,first); mf(k,GR,a,a,first)
def mstat_fin(k,S):
    k(f"""
    v_and_b32 v{S+2}, 1, v2
    v_cmp_eq_u32 vcc, 0, v{S+2}
    v_and_b32 v{S+2}, 2, v2
    v_lshrrev_b32 v{S+3}, 2, v2
    v_cndmask_b32 v{GR}, v{GR+1}, v{GR}, vcc
    v_cndmask_b32 v{GR+2}, v{GR+3}, v{GR+2}, vcc
    v_cmp_eq_u32 vcc, 0, v{S+2}
    v_mul_f32 v{S}, {f2u(1/384):#x}, v{SM}
    s_nop 0
    v_cndmask_b32 v{GR}, v{GR+2}, v{GR}, vcc
    v_cmp_eq_u32 vcc, v3, v{S+3}
    s_nop 1
    v_cndmask_b32 v{S+1}, 0, v{GR}, vcc
    """)
    xreduce(k,[S+1],[S+2],"v_add_f32")
    k(f"v_mul_f32 v{S+1}, {f2u(1/384):#x}, v{S+1}\nv_fma_f32 v{S+1}, -v{S}, v{S}, v{S+1}\nv_max_f32 v{S+1}, 0, v{S+1}\nv_add_f32 v{S+1}, {f2u(1e-5):#x}, v{S+1}\nv_rsq_f32 v{S+1}, v{S+1}\ns_nop 0")
def pk(op,d,*src):
    o=[];lo=[];hi=[];ng=[]
    for x in src:
        if isinstance(x,int): assert x%2==0; o.append(vr(x,2)); lo.append(0); hi.append(1); ng.append(0)
        else: o.append(vr(x[1]&~1,2)); lo.append(x[1]&1); hi.append(x[1]&1); ng.append(int(x[0]=='nb'))
    f=lambda l:"["+",".join(map(str,l))+"]"
    assert d%2==0
    return f"v_pk_{op}_f32 {vr(d,2)}, "+", ".join(o)+f" op_sel:{f(lo)} op_sel_hi:{f(hi)}"+(f" neg_lo:{f(ng)} neg_hi:{f(ng)}" if any(ng) else "")
A=8; ACC=104; BB=128; S=160; U=168; WB=200; XG=248

LOC=int(os.environ.get('LOC','1'))
MAP2=("s_bfe_u32 s21, s5, 0x10002\ns_lshr_b32 s22, s5, 3\ns_and_b32 s23, s4, 3\ns_lshl_b32 s23, s23, 2\ns_and_b32 s6, s5, 3\ns_add_u32 s23, s23, s6" if LOC else
      "s_bfe_u32 s21, s4, 0x10001\ns_and_b32 s22, s4, 1\ns_lshl_b32 s22, s22, 1\ns_and_b32 s6, s5, 1\ns_add_u32 s22, s22, s6\ns_lshr_b32 s23, s5, 1")
MAP4=("s_lshl_b32 s51, s4, 1\ns_and_b32 s6, s5, 1\ns_add_u32 s51, s51, s6\ns_lshr_b32 s52, s5, 1" if LOC else
      "s_lshr_b32 s51, s4, 1\ns_lshl_b32 s51, s51, 2\ns_and_b32 s6, s5, 3\ns_add_u32 s51, s51, s6\ns_and_b32 s52, s4, 1\ns_lshl_b32 s52, s52, 3\ns_lshr_b32 s6, s5, 2\ns_add_u32 s52, s52, s6")
WOL=77824
def tr_loop(k,items,breg0,nbuf,mfn,hoff):
    n=len(items)
    def rd(i):
        a,o=items[i]; r=breg0+4*(i%nbuf)
        k(f"ds_read_b64_tr_b16 {vr(r,2)}, v{a} offset:{o}\nds_read_b64_tr_b16 {vr(r+2,2)}, v{a} offset:{o+hoff}")
    pre=min(nbuf-1,n)
    for i in range(pre): rd(i)
    issued=pre
    for i in range(n):
        k(f"s_waitcnt lgkmcnt({2*(issued-i-1)})")
        mfn(i, breg0+4*(i%nbuf))
        if issued<n: rd(issued); issued+=1
def chunk_offs(k,dst,per,stride,swz,t):
    k(f"s_mov_b32 s6, {(2**32+per-1)//per:#x}\ns_mov_b32 s7, {stride}")
    for i in range(3):
        d=dst+i
        k(f"v_lshrrev_b32 v{t}, 4, v4\nv_add_u32 v{t}, {64*i}, v{t}\nv_mul_hi_u32 v{d}, v{t}, s6\nv_mul_u32_u24 v{t+1}, {per}, v{d}\nv_sub_u32 v{t}, v{t}, v{t+1}")
        if swz: k(f"v_lshrrev_b32 v{t+1}, 2, v{d}\nv_and_b32 v{t+1}, 2, v{t+1}\nv_xor_b32 v{t}, v{t}, v{t+1}")
        k(f"v_mul_lo_u32 v{d}, v{d}, s7\nv_lshl_add_u32 v{d}, v{t}, 4, v{d}")
def w_dma(k,srd,vo,sl,sg,stride):
    for g in range(3):
        for i in range(3):
            k(f"s_mov_b32 m0, s{sl}\ns_add_u32 s{sl}, s{sl}, 1024\nbuffer_load_dwordx4 v{vo+i}, s[{srd}:{srd+3}], s{sg} offen lds")
        k(f"s_add_u32 s{sg}, s{sg}, {16*stride}")
def tr_addr(k,d,base):
    k(f"v_lshrrev_b32 v{d}, 2, v2\nv_lshl_add_u32 v{d}, v3, 3, v{d}\nv_mul_u32_u24 v{d}, 192, v{d}\nv_and_b32 v{d+1}, 3, v2\nv_lshl_add_u32 v{d}, v{d+1}, 3, v{d}\nv_add_u32 v{d}, {base}, v{d}")
    k(f"v_and_b32 v{d+2}, 1, v3\nv_lshlrev_b32 v{d+2}, 5, v{d+2}\nv_sub_u32 v{d+1}, v{d}, v{d+2}\nv_add_u32 v{d}, v{d}, v{d+2}\nv_add_u32 v{d+2}, 36864, v{d}\nv_add_u32 v{d+3}, 36864, v{d+1}")
def wo_dma(k,U=U,setup_only=False):
    chunk_offs(k,U,12,768,True,U+3)
    k(f"s_mul_i32 s36, s3, 9216\ns_add_u32 s36, s36, {WOL}\ns_mul_i32 s37, s3, {48*768}\ns_mul_i32 s6, s49, 192\ns_add_u32 s37, s37, s6")
    if not setup_only: w_dma(k,20,U,36,37,768)
def modpoll(k,name,sl=SLP,both=False):
    ex='v_and_b32 v6, 1, v3\nv_lshlrev_b32 v5, 2, v6\n' if both else ''
    k(f"s_cmp_lg_u32 s3, 7\ns_cbranch_scc1 {k.lab('pd'+name)}\nv_mov_b32 v5, 0\n{ex}s_mov_b32 s7, 0\n{k.lab('pl'+name)}:")
    k(f"buffer_load_dword v6, v5, s[96:99], 0 offen sc1\ns_waitcnt vmcnt(0)\nv_cmp_eq_u32 vcc, 0, v6\ns_add_u32 s7, s7, 1\ns_cmp_ge_u32 s7, 0x10000\ns_cbranch_scc1 {k.lab('pd'+name)}\ns_nop 2")
    k(f"s_cbranch_vccz {k.lab('pd'+name)}\ns_sleep {sl}\ns_branch {k.lab('pl'+name)}\n{k.lab('pd'+name)}:\ns_barrier")

def touch(k,lst,name):
    k(f"s_sub_u32 s6, s2, 64\ns_lshl_b32 s6, s6, 1\ns_and_b32 s7, s3, 1\ns_add_u32 s6, s6, s7\ns_lshl_b32 s6, s6, 12\nv_lshlrev_b32 v7, 2, v4\ns_lshr_b32 s7, s3, 1")
    for i,srd in enumerate(lst):
        k(f"s_cmp_lg_u32 s7, {i}\ns_cbranch_scc1 {k.lab('t%s%d'%(name,i))}\nbuffer_load_dword v199, v7, s[{srd}:{srd+3}], s6 offen\n{k.lab('t%s%d'%(name,i))}:")
def pmod(k):
    k("""
    v_and_b32 v8, 7, v0
    v_lshrrev_b32 v9, 3, v0
    v_mul_u32_u24 v10, 27648, v9
    v_lshl_add_u32 v10, v8, 4, v10
    v_mul_u32_u24 v11, 12, v9
    s_lshl_b32 s7, s2, 7
    """)
    for b in range(2): k(f"buffer_load_dwordx3 v[{80+4*b}:{82+4*b}], v11, s[28:31], 0 offen offset:{b*768}")
    for i in range(6):
        k(f"buffer_load_dwordx4 {vr(16+4*i,4)}, v10, s[32:35], s7 offen")
        if i<5: k(f"s_add_u32 s7, s7, 4608")
    k("s_waitcnt vmcnt(6)"); k.st(106)
    for r in range(40,52):
        src=80+4*((r-40)//6)+((r-40)%6)//2
        k(f"v_and_b32 v{r}, 0xffff0000, v{src}" if r%2 else f"v_lshlrev_b32 v{r}, 16, v{src}")
    for r in range(40,52): k(f"v_mul_f32 v{r+12}, 0xbfb8aa3b, v{r}\nv_exp_f32 v{r+12}, v{r+12}")
    for r in range(40,52): k(f"v_add_f32 v{r+12}, 1.0, v{r+12}\nv_rcp_f32 v{r+12}, v{r+12}")
    for r in range(40,52): k(f"v_mul_f32 v{r}, v{r}, v{r+12}\nv_cvt_pk_bf16_f32 v{r}, v{r}, v{r}\nv_lshlrev_b32 v{r}, 16, v{r}")
    AC=[64,72]
    for i in range(6):
        k(f"s_waitcnt vmcnt({5-i})")
        for j in range(4):
            k(f"v_lshlrev_b32 v5, 16, v{16+4*i+j}\nv_and_b32 v6, 0xffff0000, v{16+4*i+j}")
            op="v_fmac_f32" if i else "v_mul_f32"
            for b in range(2): k(f"{op} v{AC[b]+2*j}, v5, v{40+b*6+i}\n{op} v{AC[b]+2*j+1}, v6, v{40+b*6+i}")
    k.st(107)
    k(f"s_cmp_ge_u32 s2, 12\ns_cbranch_scc1 {k.lab('nz')}\nv_mov_b32 v12, 0\nv_mov_b32 v13, 0\nv_mov_b32 v14, 0\nv_mov_b32 v15, 0\nv_lshlrev_b32 v5, 4, v0\ns_lshl_b32 s6, s2, 14\ns_add_u32 s6, s6, {FL:#x}")
    k(f"buffer_store_dwordx4 v[12:15], v5, s[8:11], s6 offen sc1\ns_add_u32 s6, s6, 8192\nbuffer_store_dwordx4 v[12:15], v5, s[8:11], s6 offen sc1\n{k.lab('nz')}:")
    k("s_nop 1")
    for r in range(64,80): k(f"v_add_f32_dpp v{r}, v{r}, v{r} row_ror:8 row_mask:0xf bank_mask:0xf")
    k("s_nop 1")
    for j in range(8): k(f"v_permlane32_swap_b32 v{64+j}, v{72+j}")
    for j in range(8): k(f"v_add_f32 v{64+j}, v{64+j}, v{72+j}")
    k("s_nop 1")
    for j in range(4): k(f"v_permlane16_swap_b32 v{64+j}, v{68+j}")
    k("v_lshlrev_b32 v5, 9, v1\nv_lshl_add_u32 v5, v8, 6, v5\nv_lshl_add_u32 v5, v3, 4, v5")
    for j in range(4): k(f"v_add_f32 v{64+j}, v{64+j}, v{68+j}")
    k("ds_write_b128 v5, v[64:67]")
    k(f"s_waitcnt lgkmcnt(0)\ns_barrier\ns_cmp_ge_u32 s3, 2\ns_cbranch_scc1 {k.lab('m2')}\nv_lshlrev_b32 v5, 2, v0")
    for p in range(8): k(f"ds_read_b32 v{16+p}, v5 offset:{p*512}")
    k("s_waitcnt lgkmcnt(0)")
    for st in (4,2,1):
        for p in range(st): k(f"v_add_f32 v{16+p}, v{16+p}, v{16+p+st}")
    k(f"""
    v_cvt_pk_bf16_f32 v8, v16, v16
    v_lshlrev_b32 v8, 16, v8
    s_sub_u32 s7, s2, 6
    s_cmp_lt_u32 s7, 6
    s_cselect_b32 s6, 1.0, 0
    s_sub_u32 s7, s2, 24
    s_cmp_lt_u32 s7, 6
    s_cselect_b32 s6, 1.0, s6
    v_add_f32 v8, s6, v8
    v_cvt_pk_bf16_f32 v8, v8, v8
    v_lshlrev_b32 v8, 16, v8
    v_lshrrev_b32 v5, 4, v0
    v_lshlrev_b32 v5, 5, v5
    v_and_b32 v6, 7, v0
    v_lshl_add_u32 v5, v6, 2, v5
    v_bfe_u32 v6, v0, 3, 1
    v_mul_u32_u24 v6, 9216, v6
    v_add_u32 v5, v5, v6
    s_lshl_b32 s6, s2, 8
    buffer_store_dword v8, v5, s[8:11], s6 offen sc1
    {k.lab('m2')}:
    """); k.st(108); k(f"""
    s_waitcnt vmcnt(0)
    s_barrier
    """); k.st(109); k(f"""
    s_cmp_lg_u32 s3, 0
    s_cbranch_scc1 {k.lab('m3')}
    s_cmp_lt_u32 s2, 12
    s_cselect_b32 s6, 0, 4
    s_sub_u32 s7, s2, 12
    s_cmp_lt_u32 s7, 6
    s_cbranch_scc1 {k.lab('m3')}
    s_cmp_ge_u32 s2, 30
    s_cbranch_scc1 {k.lab('m3')}
    v_mov_b32 v5, 0
    v_mov_b32 v6, 1
    s_mov_b64 exec, 1
    buffer_atomic_add v6, v5, s[96:99], s6 offen offset:128 sc0 sc1
    s_waitcnt vmcnt(0)
    v_readfirstlane_b32 s7, v6
    s_nop 3
    s_cmp_lg_u32 s7, 11
    s_cbranch_scc1 {k.lab('m4')}
    buffer_store_dword v6, v5, s[96:99], s6 offen sc1
    {k.lab('m4')}:
    s_mov_b64 exec, -1
    {k.lab('m3')}:
    """)

def pfc1(k):
    F=8; PQ=32; O=128; T=152
    k(f"""
    s_sub_u32 s24, s2, 36
    v_lshrrev_b32 v5, 7, v4
    v_mul_u32_u24 v5, 3072, v5
    v_and_b32 v6, 0x70, v4
    v_add_u32 v5, v5, v6
    s_mul_i32 s25, s3, 6144
    s_mul_i32 s26, s3, {48*3072}
    s_lshl_b32 s6, s24, 7
    s_add_u32 s26, s26, s6
    """)
    for i in range(6): k(f"s_mov_b32 m0, s25\ns_add_u32 s25, s25, 1024\nbuffer_load_dwordx4 v5, s[16:19], s26 offen lds\ns_add_u32 s26, s26, {8*3072}")
    wo_dma(k)
    k(f"""
    s_lshr_b32 s27, s3, 1
    s_and_b32 s25, s3, 1
    v_lshrrev_b32 v7, 2, v2
    v_lshl_add_u32 v7, v3, 3, v7
    v_lshlrev_b32 v7, 7, v7
    v_and_b32 v6, 3, v2
    v_lshl_add_u32 v7, v6, 3, v7
    s_mul_i32 s6, s25, 24576
    s_lshl_b32 s7, s27, 5
    s_add_u32 s6, s6, s7
    v_add_u32 v7, s6, v7
    s_lshl_b32 s6, s24, 2
    s_add_u32 s27, s27, s6
    s_min_u32 s6, s3, 5
    s_lshl_b32 s37, s6, 10
    s_cmp_ge_u32 s6, 3
    s_cselect_b32 s26, {9216-3072}, 0
    s_add_u32 s26, s26, s37
    s_add_u32 s26, s26, {1152*4:#x}
    s_add_u32 s37, s37, 53248
    s_mul_i32 s36, s27, 12288
    s_mul_i32 s6, s25, 6144
    s_add_u32 s36, s36, s6
    s_add_u32 s36, s36, {FC1_P:#x}
    s_mov_b32 s40, 0x3f803f80
    s_waitcnt vmcnt(0)
    """)
    ones(k); modpoll(k,'f',6,True)
    k("s_mov_b32 m0, s37\ns_nop 0"); dma(k,26,0,SC)
    for i in range(6): k(f"ds_read_b64_tr_b16 {vr(F+4*i,2)}, v7 offset:{i*4096}\nds_read_b64_tr_b16 {vr(F+4*i+2,2)}, v7 offset:{i*4096+512}")
    k("v_lshlrev_b32 v6, 5, v3\ns_mul_i32 s6, s25, 768\ns_add_u32 s6, s6, 53248\nv_add_u32 v6, s6, v6\ns_waitcnt vmcnt(0) lgkmcnt(0)\ns_barrier")
    for b in range(2):
        k("s_add_u32 s37, s36, 4096")
        u=S+2*b
        for i in range(6):
            if i%3==0:
                for ii in range(i,i+3):
                    for q in range(2):
                        k(f"ds_read_b128 {vr(PQ+16*ii+4*q,4)}, v6 offset:{b*3072+ii*128+16*q}\nds_read_b128 {vr(PQ+16*ii+8+4*q,4)}, v6 offset:{b*3072+1536+ii*128+16*q}")
            k(f"s_waitcnt lgkmcnt({8-4*(i%3)})")
            for j in range(4): k(f"v_lshlrev_b32 v{T+2*j}, 16, v{F+4*i+j}\nv_and_b32 v{T+2*j+1}, 0xffff0000, v{F+4*i+j}\nv_cvt_pk_bf16_f32 v{PQ+16*i+j}, v{PQ+16*i+2*j}, v{PQ+16*i+2*j+1}")
            for j in range(8): k(f"v_mul_f32 v{T+j}, v{T+j}, v{PQ+16*i+8+j}")
            mf(k,200+8*b+4,PQ+16*i,F+4*i,i==0)
            for j in range(4): k(f"v_cvt_pk_bf16_f32 v{O+4*i+j}, v{T+2*j}, v{T+2*j+1}")
            k("s_nop 1"); mf(k,200+8*b,ON,O+4*i,i==0)
            st4(k,O+4*i,4,36 if i<4 else 37,(i%4)*1024)
        if b==0: k("s_add_u32 s36, s36, 0x120000")
    k("s_nop 7")
    for j in range(4): k(f"v_mov_b32 v{S+j}, v{200+4*j}")
    k(f"""
    s_lshr_b32 s6, s3, 1
    s_lshl_b32 s6, s6, 10
    s_add_u32 s6, s6, 49152
    v_add_u32 v5, s6, v4
    s_lshl_b32 s35, s24, 2
    s_add_u32 s35, s35, 1024
    s_cmp_eq_u32 s25, 0
    s_cbranch_scc1 {k.lab('f1')}
    ds_write_b128 v5, {vr(S,4)}
    s_waitcnt lgkmcnt(0)
    s_barrier
    s_branch {k.lab('p1e')}
    {k.lab('f1')}:
    s_barrier
    ds_read_b128 {vr(T,4)}, v5
    s_lshl_b32 s6, s27, 6
    s_add_u32 s6, s6, {UV:#x}
    v_lshlrev_b32 v5, 2, v2
    s_waitcnt lgkmcnt(0)
    """)
    for j in range(4):
        k(f"v_add_f32 v{S+j}, v{S+j}, v{T+j}\nbuffer_store_dword v{S+j}, v5, s[8:11], s6 offen sc1\ns_add_u32 s6, s6, 6144")
    k(f"s_branch {k.lab('p1e')}")

def p1(k):
    k(f"""
    s_lshl_b32 s48, s4, 3
    s_and_b32 s6, s5, 7
    s_add_u32 s48, s48, s6
    s_lshr_b32 s49, s5, 3
    s_mul_i32 s50, s49, 6
    s_add_u32 s50, s50, s3
    s_waitcnt lgkmcnt(0)
    s_cmp_lt_u32 s2, 36
    s_cbranch_scc1 {k.lab('mod')}
    s_cmp_lt_u32 s3, 7
    s_cbranch_scc1 {k.lab('nt')}
    v_lshlrev_b32 v7, 15, v4
    buffer_load_dword v198, v7, s[96:99], 0 offen sc1
    buffer_load_dword v197, v7, s[8:11], 0 offen sc1
    buffer_load_dword v196, v7, s[44:47], 0 offen sc1
    {k.lab('nt')}:
    s_cmp_ge_u32 s2, 64
    s_cbranch_scc1 {k.lab('gemm')}
    s_cmp_lt_u32 s2, 36
    s_cbranch_scc1 {k.lab('mod')}
    s_getpc_b64 s[52:53]
    {k.lab('pc')}:
    s_mov_b32 s54, {k.lab('end')}-{k.lab('pc')}
    s_mov_b32 s55, 0x20000
    s_lshl_b32 s6, s3, 13
    v_lshlrev_b32 v7, 3, v4
    buffer_load_dword v199, v7, s[52:55], s6 offen
    s_cmp_ge_u32 s2, 60
    s_cbranch_scc1 {k.lab('idle')}
    s_branch {k.lab('fc1')}
    {k.lab('mod')}:
    """)
    k.st(105); pmod(k)
    k(f"{k.lab('idle')}:"); modpoll(k,'i',16); k.st(114)
    k(f"s_cmp_ge_u32 s2, 36\ns_cbranch_scc1 {k.lab('i2')}\ns_lshl_b32 s35, s2, 2\ns_add_u32 s35, s35, 1120")
    k(f"""
    s_load_dwordx2 s[16:17], s[0:1], {KOFF['fc2']}
    s_mul_hi_u32 s24, s2, 0x2aaaaaab
    s_mul_i32 s6, s24, 6
    s_sub_u32 s25, s2, s6
    s_lshl_b32 s24, s24, 3
    s_add_u32 s24, s24, s3
    s_mul_i32 s26, s24, {32*768}
    s_lshl_b32 s6, s25, 7
    s_add_u32 s26, s26, s6
    s_lshl_b32 s27, s3, 12
    s_add_u32 s27, s27, 8192
    v_lshrrev_b32 v5, 7, v4
    v_mul_u32_u24 v5, 768, v5
    v_and_b32 v6, 0x70, v4
    v_add_u32 v5, v5, v6
    v_lshrrev_b32 v7, 2, v2
    v_lshl_add_u32 v7, v3, 2, v7
    v_lshlrev_b32 v7, 7, v7
    v_and_b32 v6, 3, v2
    v_lshl_add_u32 v7, v6, 3, v7
    v_add_u32 v7, s27, v7
    s_waitcnt lgkmcnt(0)
    """)
    for i in range(4): k(f"s_mov_b32 m0, s27\ns_add_u32 s27, s27, 1024\nbuffer_load_dwordx4 v5, s[16:19], s26 offen lds\ns_add_u32 s26, s26, {8*768}")
    k(f"s_mul_i32 s26, s25, {4*49152}\ns_lshl_b32 s6, s24, 10\ns_add_u32 s26, s26, s6\ns_add_u32 s26, s26, {FC2_P:#x}\ns_waitcnt vmcnt(0)")
    for c in range(4): k(f"ds_read_b64_tr_b16 {vr(8+4*c,2)}, v7 offset:{c*32}\nds_read_b64_tr_b16 {vr(10+4*c,2)}, v7 offset:{c*32+2048}")
    k("s_waitcnt lgkmcnt(0)")
    for c in range(4): st4(k,8+4*c,4,26); k("s_add_u32 s26, s26, 49152")
    signal(k,'m',35)
    k(f"{k.lab('i2')}:"); wo_dma(k); k("s_waitcnt vmcnt(0)\ns_barrier"); k(f"s_branch {k.lab('p1x')}\n{k.lab('fc1')}:")
    pfc1(k)
    k(f"""
    {k.lab('gemm')}:
    """)
    if not os.environ.get('NOTOUCH'): touch(k,[24,20],'a')
    k(f"""
    s_sub_u32 s41, s5, 8
    s_lshl_b32 s28, s4, 1
    s_and_b32 s6, s41, 1
    s_add_u32 s28, s28, s6
    s_lshr_b32 s29, s41, 1
    s_lshl_b32 s42, s28, 3
    s_add_u32 s42, s42, s3
    s_mul_i32 s30, s42, 12288
    """)
    XL=61440; XO=U+4
    k(f"s_mov_b32 s6, {(2**32+47)//48:#x}")
    for i in range(3):
        d=XO+i; t=XO+3
        k(f"v_lshrrev_b32 v{t}, 4, v4\nv_add_u32 v{t}, {64*i}, v{t}\nv_mul_hi_u32 v{d}, v{t}, s6\nv_mul_u32_u24 v{t+1}, 48, v{d}\nv_sub_u32 v{t}, v{t}, v{t+1}\nv_xor_b32 v{t}, v{t}, v{d}\nv_mul_u32_u24 v{d}, 768, v{d}\nv_lshl_add_u32 v{d}, v{t}, 4, v{d}")
    k(f"s_mul_i32 s31, s3, 12288\ns_add_u32 s31, s31, {XL}\nv_mul_u32_u24 v7, 768, v2\nv_add_u32 v7, s31, v7\nv_xor_b32 v6, v2, v3")
    k.st(110)
    for m_ in range(4):
        for i in range(3):
            k(f"s_mov_b32 m0, s31\ns_add_u32 s31, s31, 1024\nv_xor_b32 v5, {m_<<6}, v{XO+i}\nbuffer_load_dwordx4 v5, s[12:15], s30 offen lds")
        k("s_add_u32 s30, s30, 3072")
    k.st(112)
    for b_ in range(4): k(f"v_xor_b32 v{XO+8+b_}, {4*b_}, v6\nv_lshl_add_u32 v{XO+8+b_}, v{XO+8+b_}, 4, v7")
    chunk_offs(k,U,12,2304,True,S)
    k(f"s_mul_i32 s36, s3, 3072\ns_mul_i32 s37, s3, {16*2304}\ns_mul_i32 s6, s29, 192\ns_add_u32 s37, s37, s6")
    def wgrp():
        for i in range(3): k(f"s_mov_b32 m0, s36\ns_add_u32 s36, s36, 1024\nbuffer_load_dwordx4 v{U+i}, s[24:27], s37 offen lds")
    k("s_waitcnt vmcnt(0) lgkmcnt(0)"); k.st(113)
    for s in range(12): k(f"ds_read_b128 {vr(A+4*s,4)}, v{XO+8+s%4} offset:{(s//4)*256}")
    for g in range(2):
        wgrp(); k(f"s_add_u32 s36, s36, {7*3072}\ns_add_u32 s37, s37, {128*2304}")
    k("s_waitcnt lgkmcnt(0)\ns_barrier"); k.st(1)
    ones(k); k("s_nop 1")
    for s_ in range(12): mstat(k,A+4*s_,s_==0)
    wgrp(); wo_dma(k,XO,True)
    XF=lambda e: (56+e if e<48 else 200+e-48)
    for i in range(48): k(f"v_lshlrev_b32 v{XF(2*i)}, 16, v{A+i}\nv_and_b32 v{XF(2*i+1)}, 0xffff0000, v{A+i}")
    mstat_fin(k,S)
    k(f"v_mul_f32 v{S}, v{S}, v{S+1}")
    for e in range(0,96,2): k(pk('fma',XF(e),XF(e),('b',S+1),('nb',S)))
    k(f"""
    s_lshr_b32 s43, s28, 3
    s_mul_i32 s30, s43, 9216
    s_and_b32 s6, s3, 1
    s_lshl_b32 s6, s6, 10
    s_add_u32 s30, s30, s6
    s_bitcmp1_b32 s3, 1
    s_cselect_b32 s6, 1536, 0
    s_add_u32 s30, s30, s6
    s_and_b32 s31, s3, 3
    s_lshl_b32 s31, s31, 10
    s_add_u32 s31, s31, 73728
    """)
    k.st(2); modpoll(k,'g'); k.st(21)
    k("s_mov_b32 m0, s31\ns_nop 0"); dma(k,30,0,SC)
    tr_addr(k,U,0)
    qs=f2u(192**-0.5*math.log2(math.e))
    k(f"""
    s_cmp_lt_u32 s29, 4
    s_cselect_b32 s30, {qs:#x}, 1.0
    s_cselect_b64 vcc, -1, 0
    s_cselect_b32 s33, -1, -2
    s_and_b32 s33, s42, s33
    s_mul_i32 s33, s33, 12
    s_lshr_b32 s31, s29, 2
    s_mul_i32 s31, s31, {ACT:#x}
    s_and_b32 s32, s29, 3
    s_mul_i32 s32, s32, 3
    s_add_u32 s32, s32, s33
    s_lshl_b32 s32, s32, 10
    s_add_u32 s31, s31, s32
    s_add_u32 s31, s31, {Q_P:#x}
    s_and_b32 s34, s3, 1
    v_bfe_u32 v5, v2, 2, 1
    v_mul_u32_u24 v5, 12288, v5
    v_lshl_add_u32 v5, v3, 8, v5
    v_lshrrev_b32 v6, 3, v2
    v_lshl_add_u32 v5, v6, 6, v5
    v_and_b32 v6, 3, v2
    v_lshl_add_u32 v5, v6, 4, v5
    s_lshl_b32 s6, s34, 7
    v_add_u32 v5, s6, v5
    v_cndmask_b32 v5, v5, v4, vcc
    s_lshl_b32 s35, s28, 6
    s_lshl_b32 s6, s29, 2
    s_add_u32 s35, s35, s6
    v_lshlrev_b32 v1, 5, v3
    v_add_u32 v1, 73728, v1
    s_waitcnt vmcnt(0)
    s_barrier
    """)
    k.st(22)
    k(f"s_cmp_ge_u32 s29, 8\ns_cbranch_scc1 {k.lab('v')}")
    def body(isv):
        PP=176
        order=[(s,cb) for s in range(12) for cb in range(4)]+[(s,cb) for s in range(12) for cb in (4,5)]
        ops=[]
        for i,(s,cb) in enumerate(order):
            if cb==0: ops+=[('p',s,0),('p',s,1)]
            ops.append(('w',s,cb))
        nw=[0]; reg={}; iss=[0]
        def rd(n):
            t,s,x=ops[n]
            if t=='p': k(f"ds_read_b128 {vr(PP+8*x,4)}, v1 offset:{s*128+16*x}\nds_read_b128 {vr(PP+8*x+4,4)}, v1 offset:{2048+s*128+16*x}")
            else:
                r=BB+4*(nw[0]%8); nw[0]+=1; reg[n]=r; a_=U+(x%2)+2*(s//6); o=(s%6)*6144+x*32
                k(f"ds_read_b64_tr_b16 {vr(r,2)}, v{a_} offset:{o}\nds_read_b64_tr_b16 {vr(r+2,2)}, v{a_} offset:{o+768}")
        def fill(n):
            while iss[0]<len(ops) and iss[0]<n+6: rd(iss[0]); iss[0]+=1
        def epi(c):
            R=ACC+8*c; D=S+4*(c%2)
            if isv:
                swap_pack(k,R,R+4,D); st4(k,D,5,31); k("s_add_u32 s31, s31, 65536")
            else:
                for j in range(8): k(f"v_mul_f32 v{R+j}, s30, v{R+j}")
                for j in range(4): k(f"v_cvt_pk_bf16_f32 v{D+j}, v{R+2*j}, v{R+2*j+1}")
                st4(k,D,5,31,c*1024)
        fill(0); i=0
        for n,(t,s,x) in enumerate(ops):
            k(f"s_waitcnt lgkmcnt({2*(iss[0]-n-1)})")
            if t=='p':
                for j in range(4): e=8*s+4*x+j; k(f"v_fma_f32 v{XF(e)}, v{XF(e)}, v{PP+8*x+4+j}, v{PP+8*x+j}")
                for j in range(2): e=8*s+4*x+2*j; k(f"v_cvt_pk_bf16_f32 v{A+4*s+2*x+j}, v{XF(e)}, v{XF(e+1)}")
            else:
                if isv: mf(k,ACC+4*x,A+4*s,reg[n],s==0)
                else: mf(k,ACC+4*x,reg[n],A+4*s,s==0)
                if i==52: epi(0)
                if i==60: epi(1)
                if i%5==0 and i<45:
                    q=i//5
                    k(f"s_mov_b32 m0, s36\ns_add_u32 s36, s36, 1024\nbuffer_load_dwordx4 v{XO+q%3}, s[20:23], s37 offen lds")
                    if q%3==2: k(f"s_add_u32 s37, s37, {16*768}")
                i+=1
            fill(n+1)
        k("s_nop 7"); epi(2)
        k("v_lshrrev_b32 v1, 6, v0")
    body(False)
    k(f"""
    s_branch {k.lab('p1e')}
    {k.lab('v')}:
    s_sub_u32 s31, s29, 8
    s_mul_i32 s31, s31, 6
    s_mul_i32 s32, s43, 24
    s_add_u32 s31, s31, s32
    s_lshl_b32 s31, s31, 5
    s_and_b32 s32, s42, 63
    s_lshr_b32 s32, s32, 1
    s_add_u32 s31, s31, s32
    s_lshl_b32 s31, s31, 10
    s_lshl_b32 s32, s34, 9
    s_add_u32 s31, s31, s32
    s_add_u32 s31, s31, {VT_P:#x}
    v_and_b32 v5, 1, v3
    v_lshlrev_b32 v5, 15, v5
    v_lshrrev_b32 v6, 1, v3
    v_lshl_add_u32 v5, v6, 8, v5
    v_lshl_add_u32 v5, v2, 4, v5
    """)
    body(True)
    k(f"{k.lab('p1e')}:"); k.st(3)
    signal(k,'1',35)
    k(f"{k.lab('p1x')}:"); k.st(4)

def p3setup(k):
    k(f"""
    s_cmp_ge_u32 s3, 6
    s_cbranch_scc1 {k.lab('p3s')}
    v_mul_u32_u24 v6, 768, v2
    v_lshl_add_u32 v6, v3, 3, v6
    s_mul_i32 s29, s48, {32*768}
    s_lshl_b32 s6, s50, 5
    s_add_u32 s29, s29, s6
    s_add_u32 s30, s29, {16*768}
    """)
    ld(k,XG,2,6,29,srd=12); ld(k,XG+2,2,6,30,srd=12)
    tr_addr(k,U,WOL)
    k(f"s_bitcmp1_b32 s3, 0\ns_cselect_b64 vcc, -1, 0\ns_lshl_b32 s6, s3, 5\nv_cndmask_b32 v{U}, v{U}, v{U+1}, vcc\nv_add_u32 v{U}, s6, v{U}\nv_add_u32 v{U+1}, 36864, v{U}")
    for s in range(12):
        for hh in range(2): k(f"ds_read_b64_tr_b16 {vr(WB+4*s+2*hh,2)}, v{U+s//6} offset:{(s%6)*6144+hh*768}")
    k(f"s_waitcnt lgkmcnt(0)\n{k.lab('p3s')}:")

def p2(k):
    QL=0; PL=24576; VL=57344; ML=155648; SL=157696
    KF=8; SA=56; B2=88; T=120
    k(f"""
    s_lshr_b32 s20, s4, 2
    {MAP2}
    s_lshl_b32 s24, s20, 6
    s_lshl_b32 s6, s23, 2
    s_add_u32 s24, s24, s6
    s_lshr_b32 s6, s3, 1
    s_add_u32 s25, s24, s6
    s_mul_i32 s25, s25, 12
    s_mul_i32 s26, s21, 6
    s_add_u32 s25, s25, s26
    s_and_b32 s6, s3, 1
    s_mul_i32 s6, s6, 3
    s_add_u32 s25, s25, s6
    s_lshl_b32 s25, s25, 10
    s_add_u32 s25, s25, {Q_P:#x}
    s_lshl_b32 s27, s20, 6
    s_lshl_b32 s6, s22, 4
    s_add_u32 s27, s27, s6
    s_lshl_b32 s6, s3, 1
    s_add_u32 s27, s27, s6
    s_mul_i32 s27, s27, 12
    s_add_u32 s27, s27, s26
    s_lshl_b32 s27, s27, 10
    s_add_u32 s27, s27, {K_P:#x}
    s_add_u32 s36, s27, 12288
    s_mul_i32 s28, s20, 24
    s_mul_i32 s6, s21, 12
    s_add_u32 s28, s28, s6
    s_lshl_b32 s28, s28, 5
    s_lshl_b32 s6, s22, 3
    s_add_u32 s28, s28, s6
    s_add_u32 s28, s28, s3
    s_lshl_b32 s28, s28, 10
    s_add_u32 s28, s28, {VT_P:#x}
    s_lshl_b32 s29, s3, 10
    s_add_u32 s29, s29, {VL}
    """)
    poll(k,'2',f"""
    v_bfe_u32 v6, v0, 2, 2
    v_min_u32 v6, 2, v6
    v_bfe_u32 v7, v0, 1, 1
    s_lshl_b32 s6, s22, 1
    v_add_u32 v7, s6, v7
    s_lshr_b32 s6, s23, 1
    v_mov_b32 v5, s6
    v_cmp_eq_u32 vcc, 0, v6
    s_lshl_b32 s6, s20, 9
    s_lshl_b32 s7, s21, 3
    v_cndmask_b32 v7, v7, v5, vcc
    s_add_u32 s6, s6, s7
    v_lshlrev_b32 v7, 6, v7
    v_lshl_add_u32 v7, v6, 4, v7
    v_and_b32 v6, 1, v0
    v_lshl_add_u32 v7, v6, 2, v7
    v_add_u32 v5, s6, v7
    """)
    k.st()
    k("s_mul_i32 s6, s3, 3072\ns_mov_b32 m0, s6\ns_nop 0")
    for i in range(3): dma(k,25,i*1024,SC)
    def ldk(s):
        if s==4: k("s_add_u32 s27, s27, 4096\ns_add_u32 s36, s36, 4096")
        for kb in range(2): ld(k,KF+24*kb+4*s,4,4,(27,36)[kb],(s%4)*1024,sc=SC)
    for s in range(6): ldk(s)
    k("s_waitcnt vmcnt(12)\ns_barrier"); k.st()
    items=[(4,QL+(qb*6+s)*1024) for s in range(6) for qb in range(4)]
    def mf1(i,b):
        s,qb=divmod(i,4)
        if qb==0: k("s_waitcnt vmcnt(10)")
        if qb in (0,2):
            k(f"s_mov_b32 m0, s29\ns_add_u32 s29, s29, 8192"); dma(k,28,0,SC); k("s_add_u32 s28, s28, 32768")
        for kb in range(2): mf(k,SA+8*qb+4*kb,KF+24*kb+4*s,b,s==0)
    gemm_loop(k,items,B2,8,mf1); k.st()
    k(f"v_lshrrev_b32 v5, 4, v4\nv_min_u32 v5, 59, v5\nv_lshlrev_b32 v5, 2, v5\nv_add_u32 v5, 1024, v5\nv_lshlrev_b32 v5, 5, v5\ns_mov_b32 s6, {FL:#x}\nbuffer_load_dword v199, v5, s[8:11], s6 offen sc1")
    k(f"""
    v_and_b32 v5, 63, v0
    v_lshlrev_b32 v5, 5, v5
    v_lshl_add_u32 v5, v1, 2, v5
    v_add_u32 v5, {ML}, v5
    v_lshlrev_b32 v6, 5, v2
    v_add_u32 v6, {ML}, v6
    s_lshl_b32 s6, s3, 10
    s_add_u32 s6, s6, {PL}
    v_add_u32 v7, s6, v4
    """)
    M=KF
    def max8(m,r): k(f"v_max3_f32 v{m}, v{r}, v{r+1}, v{r+2}\nv_max3_f32 v{m}, v{m}, v{r+3}, v{r+4}\nv_max3_f32 v{m}, v{m}, v{r+5}, v{r+6}\nv_max_f32 v{m}, v{m}, v{r+7}")
    for qb in range(4): max8(M+qb,SA+8*qb)
    def treduce(op,addr_off):
        k(f"s_nop 1\nv_permlane32_swap_b32 v{M}, v{M+2}\nv_permlane32_swap_b32 v{M+1}, v{M+3}\ns_nop 1\n{op} v{M}, v{M}, v{M+2}\n{op} v{M+1}, v{M+1}, v{M+3}")
        k(f"s_nop 1\nv_permlane16_swap_b32 v{M}, v{M+1}\ns_nop 1\n{op} v{M}, v{M}, v{M+1}\nds_write_b32 v5, v{M} offset:{addr_off}")
    treduce("v_max_f32",0)
    k("s_waitcnt lgkmcnt(0)\ns_barrier")
    G=KF+8
    for qb in range(4):
        for q in range(2): k(f"ds_read_b128 {vr(G+8*qb+4*q,4)}, v6 offset:{qb*512+16*q}")
    for qb in range(4):
        k(f"s_waitcnt lgkmcnt({6-2*qb})"); max8(T+qb,G+8*qb)
    k("s_mov_b32 s40, 0x3f803f80")
    for qb in range(4):
        r=SA+8*qb
        for j in (0,2,4,6): k(pk('add',r+j,r+j,('nb',T+qb)))
        for j in range(8): k(f"v_exp_f32 v{r+j}, v{r+j}")
        k("s_nop 0")
        for j in range(4): k(f"v_cvt_pk_bf16_f32 v{B2+4*qb+j}, v{r+2*j}, v{r+2*j+1}")
        k(f"ds_write_b128 v7, {vr(B2+4*qb,4)} offset:{qb*8192}")
        k(pk('add',r,r,r+2)); k(pk('add',r+4,r+4,r+6)); k(pk('add',r,r,r+4)); k(f"v_add_f32 v{M+qb}, v{r}, v{r+1}")
    k("s_nop 1")
    treduce("v_add_f32",SL-ML)
    k(f"s_waitcnt vmcnt(0) lgkmcnt(0)\nv_cmp_eq_u32 vcc, 0, v199\nv_mov_b32 v198, v6\ns_nop 3\ns_cbranch_vccz {k.lab('pds')}")
    poll(k,'s',"v_lshrrev_b32 v5, 4, v4\nv_min_u32 v5, 59, v5\nv_lshlrev_b32 v5, 2, v5\nv_add_u32 v5, 1024, v5",bar=False)
    k("v_mov_b32 v6, v198")
    k(f"""
    s_and_b32 s30, s3, 3
    s_lshr_b32 s31, s3, 2
    s_mul_i32 s6, s30, 24576
    s_add_u32 s6, s6, {VL}
    v_add_u32 v5, s6, v4
    s_lshl_b32 s6, s31, 14
    s_add_u32 s6, s6, {PL}
    v_add_u32 v7, s6, v4
    s_lshl_b32 s6, s31, 10
    v_add_u32 v6, s6, v6
    s_cmp_eq_u32 s31, 0
    s_cselect_b64 vcc, -1, 0
    v_cndmask_b32 v{T}, v{T+2}, v{T}, vcc
    v_cndmask_b32 v{T+1}, v{T+3}, v{T+1}, vcc
    """)
    k.st(); k("s_waitcnt vmcnt(0) lgkmcnt(0)\ns_barrier"); k.st()
    for qq in range(2):
        for q in range(2): k(f"ds_read_b128 {vr(G+8*qq+4*q,4)}, v6 offset:{SL-ML+qq*512+16*q}")
    OA=SA; PR=128
    k(f"""
    s_lshl_b32 s6, s31, 1
    s_add_u32 s24, s24, s6
    s_mul_i32 s32, s24, 12288
    s_mul_i32 s6, s22, {ACT:#x}
    s_add_u32 s32, s32, s6
    s_add_u32 s32, s32, {O_P:#x}
    s_mul_i32 s33, s21, 12
    s_mul_i32 s6, s30, 3
    s_add_u32 s33, s33, s6
    s_lshl_b32 s33, s33, 9
    s_add_u32 s32, s32, s33
    v_and_b32 v197, 1, v3
    v_mul_u32_u24 v197, 12288, v197
    v_lshrrev_b32 v6, 1, v3
    v_lshl_add_u32 v197, v6, 8, v197
    v_lshl_add_u32 v197, v2, 4, v197
    """)
    seq=[]
    for ks in range(8): seq+=[('p',0,ks),('p',1,ks),('v',0,ks)]
    seq+=[('v',j,ks) for j in (1,2) for ks in range(8)]
    nv=[0]; reg={}
    def rd(i):
        t,x,ks=seq[i]
        if t=='p': r=PR+32*x+4*ks; a_=7
        else: r=B2+4*(nv[0]%8); nv[0]+=1; a_=5
        reg[i]=r; k(f"ds_read_b128 {vr(r,4)}, v{a_} offset:{x*8192+ks*1024}")
    def oepi(j):
        for qq in range(2):
            r=OA+8*j+4*qq
            for t in range(4): k(f"v_mul_f32 v{r+t}, v{r+t}, v{G+8*qq+1}")
        swap_pack(k,OA+8*j,OA+8*j+4,40+4*j); st4(k,40+4*j,197,32,j*512)
    issued=0
    def fill(i):
        nonlocal issued
        while issued<len(seq) and issued<i+9 and sum(1 for q in range(i,issued+1) if seq[q][0]=='v')<=7:
            rd(issued); issued+=1
    fill(0)
    for i,(t,x,ks) in enumerate(seq):
        if t=='v':
            k(f"s_waitcnt lgkmcnt({issued-i-1})")
            for qq in range(2): mf(k,OA+8*x+4*qq,reg[i],PR+32*qq+4*ks,ks==0)
            if x==0 and ks==1:
                for qq in range(2):
                    r=G+8*qq
                    k(f"v_add_f32 v{r}, v{r}, v{r+1}")
                    for j in range(2,8): k(f"v_add_f32 v{r}, v{r}, v{r+j}")
                    k(f"v_rcp_f32 v{r+1}, v{r}\nv_log_f32 v{r+2}, v{r}")
            if x and ks==3: oepi(x-1)
        fill(i+1)
    k.st()
    k("s_nop 7"); oepi(2)
    k(f"""
    s_lshl_b32 s35, s20, 4
    s_add_u32 s35, s35, s23
    s_lshl_b32 s35, s35, 6
    s_lshl_b32 s6, s21, 4
    s_add_u32 s35, s35, s6
    s_lshl_b32 s6, s22, 2
    s_add_u32 s35, s35, s6
    s_add_u32 s35, s35, 2048
    s_cmp_lg_u32 s30, 0
    s_cbranch_scc1 {k.lab('p2e')}
    v_add_f32 v{T}, v{T}, v{G+2}
    v_add_f32 v{T+1}, v{T+1}, v{G+10}
    v_cmp_eq_u32 vcc, 0, v3
    s_lshl_b32 s6, s22, 1
    s_add_u32 s6, s6, s21
    v_cndmask_b32 v{T}, v{T+1}, v{T}, vcc
    s_lshl_b32 s6, s6, 13
    s_lshl_b32 s7, s24, 6
    s_add_u32 s6, s6, s7
    s_add_u32 s6, s6, {LSE:#x}
    v_lshrrev_b32 v5, 2, v4
    s_mov_b32 exec_hi, 0
    buffer_store_dword v{T}, v5, s[8:11], s6 offen sc1
    s_mov_b64 exec, -1
    {k.lab('p2e')}:
    """)
    signal(k,'2',35); k.st()
    if LOC>1:
        for j in range(3): ld(k,64,4,197,32,j*512,sc=SC)

FC1L=24576
def p4setup(k):
    k(f"""
    {MAP4}
    s_lshl_b32 s53, s51, 3
    s_add_u32 s53, s53, s3
    s_lshr_b32 s25, s51, 3
    s_and_b32 s27, s3, 1
    s_mul_i32 s27, s27, 20480
    s_lshl_b32 s6, s3, 13
    s_add_u32 s6, s6, 40960
    s_cmp_lt_u32 s3, 4
    s_cselect_b32 s27, s6, s27
    s_mul_i32 s28, s52, 73728
    s_add_u32 s28, s28, s27
    s_mul_i32 s29, s25, 0x120000
    s_add_u32 s28, s28, s29
    s_add_u32 s28, s28, {FC1_P:#x}
    s_add_u32 s27, s27, {FC1L}
    """)
    k(f"s_lshr_b32 s6, s48, 5\ns_mul_i32 s31, s6, 9216\ns_lshl_b32 s6, s50, 6\ns_add_u32 s31, s31, s6\ns_add_u32 s31, s31, {768*4}\nv_lshlrev_b32 v7, 4, v3")
    ld(k,XG+4,4,7,31,sc=SC)
    k(f"s_cmp_ge_u32 s3, 4\ns_cbranch_scc1 {k.lab('p4z')}"); f1loop(k,2,'p4l'); k(f"{k.lab('p4z')}:")
def f1loop(k,n,nm):
    k(f"s_mov_b32 s39, {n}\n{k.lab(nm)}:\ns_mov_b32 m0, s27\ns_add_u32 s27, s27, 4096")
    for i in range(4): dma(k,28,i*1024,SC)
    k(f"s_add_u32 s28, s28, 4096\ns_sub_u32 s39, s39, 1\ns_cmp_lg_u32 s39, 0\ns_cbranch_scc1 {k.lab(nm)}")

def p3(k):
    OP=8; LS=56; t=ACC
    k(f"""
    s_lshl_b32 s22, s48, 1
    s_lshr_b32 s6, s3, 2
    s_add_u32 s23, s22, s6
    s_and_b32 s24, s3, 3
    s_mul_i32 s25, s23, 12288
    s_mul_i32 s6, s24, 3072
    s_add_u32 s25, s25, s6
    s_add_u32 s25, s25, {O_P:#x}
    s_lshr_b32 s6, s24, 1
    s_lshl_b32 s26, s6, 13
    s_lshl_b32 s6, s23, 6
    s_add_u32 s26, s26, s6
    s_add_u32 s26, s26, {LSE:#x}
    """)
    poll(k,'3',"s_lshr_b32 s6, s48, 1\ns_lshl_b32 s6, s6, 6\ns_add_u32 s6, s6, 2048\nv_and_b32 v5, 7, v0\nv_lshlrev_b32 v5, 2, v5\nv_add_u32 v5, s6, v5")
    k.st(); k("v_lshlrev_b32 v5, 2, v2")
    for sp in range(4):
        ld(k,LS+sp,1,5,26,sc=SC)
        if sp<3: k("s_add_u32 s26, s26, 16384")
    for i in range(3):
        for sp in range(4):
            k(f"s_add_u32 s6, s25, {sp*ACT:#x}"); ld(k,OP+16*i+4*sp,4,4,6,i*1024,sc=SC)
    k(f"s_waitcnt vmcnt(12)\nv_max3_f32 v{t}, v{LS}, v{LS+1}, v{LS+2}\nv_max_f32 v{t}, v{t}, v{LS+3}")
    for sp in range(4): k(f"v_sub_f32 v{LS+sp}, v{LS+sp}, v{t}")
    for sp in range(4): k(f"v_exp_f32 v{LS+sp}, v{LS+sp}")
    k(f"s_nop 0\nv_add_f32 v{t}, v{LS}, v{LS+1}\nv_add_f32 v{t}, v{t}, v{LS+2}\nv_add_f32 v{t}, v{t}, v{LS+3}\nv_rcp_f32 v{t}, v{t}\ns_mul_i32 s6, s3, 3072")
    for sp in range(4): k(f"v_mul_f32 v{LS+sp}, v{LS+sp}, v{t}")
    k("v_add_u32 v5, s6, v4")
    for i in range(3):
        for sp in range(4):
            k(f"s_waitcnt vmcnt({11-4*i-sp})")
            for j in range(4):
                r=OP+16*i+4*sp+j
                u=60+2*j
                k(f"v_lshlrev_b32 v{u}, 16, v{r}\nv_and_b32 v{u+1}, 0xffff0000, v{r}")
            for j in range(4):
                u=60+2*j
                k(pk('fma',t+2*j,u,('b',LS+sp),t+2*j) if sp else pk('mul',t+2*j,u,('b',LS+sp)))
        for j in range(4): k(f"v_cvt_pk_bf16_f32 v{OP+16*i+j}, v{t+2*j}, v{t+2*j+1}")
        k(f"ds_write_b128 v5, {vr(OP+16*i,4)} offset:{i*1024}")
    k(f"""
    s_lshr_b32 s35, s48, 2
    s_lshl_b32 s35, s35, 6
    s_and_b32 s6, s48, 3
    s_lshl_b32 s6, s6, 4
    s_add_u32 s35, s35, s6
    s_lshl_b32 s6, s49, 2
    s_add_u32 s35, s35, s6
    s_add_u32 s35, s35, 4096
    s_waitcnt lgkmcnt(0)
    s_barrier
    """)
    k.st(); k(f"s_cmp_ge_u32 s3, 6\ns_cbranch_scc1 {k.lab('p3d')}")
    items=[(4,(rb*12+s)*1024) for s in range(12) for rb in range(2)]
    gemm_loop(k,items,OP,12,lambda i,b: mf(k,ACC+4*(i%2),WB+4*(i//2),b,i<2))
    k(f"""
    s_mul_i32 s32, s22, 12288
    s_lshl_b32 s6, s50, 9
    s_add_u32 s32, s32, s6
    s_add_u32 s32, s32, {X1_P:#x}
    v_and_b32 v5, 1, v3
    v_mul_u32_u24 v5, 12288, v5
    v_lshrrev_b32 v6, 1, v3
    v_lshl_add_u32 v5, v6, 8, v5
    v_lshl_add_u32 v5, v2, 4, v5
    """)
    for rb in range(2):
        for j in range(2):
            x=XG+2*rb+j; a=ACC+4*rb+2*j
            k(f"v_lshlrev_b32 v8, 16, v{x}\nv_and_b32 v9, 0xffff0000, v{x}\nv_fma_f32 v{a}, v{a}, v{XG+4+2*j}, v8\nv_fma_f32 v{a+1}, v{a+1}, v{XG+4+2*j+1}, v9")
    swap_pack(k,ACC,ACC+4,12); st4(k,12,5,32)
    k(f"s_waitcnt vmcnt(0)\ns_branch {k.lab('p3e')}\n{k.lab('p3d')}:")
    f1loop(k,5,'p3l')
    k(f"{k.lab('p3e')}:")
    signal(k,'3',35,63); k.st()

def f2addr(q):
    if q<20: return 98304+q*3072
    if q<28: return (q-20)*3072
    return FC1L+(q-28)*3072
RL=FC1L+60*1024
def f2dma(k,q0,q1):
    for q in range(q0,q1,8):
        hi=min(q+8,q1)
        if hi-q<8: k(f"s_cmp_ge_u32 s3, {hi-q}\ns_cbranch_scc1 {k.lab('f2_%d'%q)}")
        k(f"s_add_u32 s6, s57, {(q//2)*1024}\ns_add_u32 s7, s38, {f2addr(q)}")
        for i in range(3): k(f"s_mov_b32 m0, s7\ns_add_u32 s7, s7, 1024\nbuffer_load_dwordx4 v{U+i}, s[8:11], s6 offen sc1 lds")
        if hi-q<8: k(f"{k.lab('f2_%d'%q)}:")
def p5setup(k):
    k(f"""
    s_lshl_b32 s54, s4, 2
    s_and_b32 s6, s5, 3
    s_add_u32 s54, s54, s6
    s_lshr_b32 s55, s5, 2
    s_lshl_b32 s56, s54, 2
    s_and_b32 s6, s3, 3
    s_add_u32 s56, s56, s6
    s_mul_i32 s57, s55, 147456
    s_and_b32 s6, s3, 1
    s_mul_i32 s6, s6, 24576
    s_add_u32 s57, s57, s6
    s_lshr_b32 s6, s3, 1
    s_lshl_b32 s6, s6, 10
    s_add_u32 s57, s57, s6
    s_add_u32 s57, s57, {FC2_P:#x}
    s_mul_i32 s38, s3, 3072
    s_lshr_b32 s25, s51, 3
    s_mul_i32 s30, s25, 12288
    s_mul_i32 s31, s52, 384
    s_add_u32 s30, s30, s31
    s_add_u32 s30, s30, {UV:#x}
    v_cmp_le_u32 vcc, 384, v4
    v_add_u32 v6, {6144-384}, v4
    s_mov_b32 m0, 159744
    v_cndmask_b32 v6, v4, v6, vcc
    s_cmp_lg_u32 s3, 0
    s_cbranch_scc1 {k.lab('uv')}
    buffer_load_dwordx4 v6, s[8:11], s30 offen sc1 lds
    {k.lab('uv')}:
    """)
    for i in range(3): k(f"v_add_u32 v{U+i}, {i*49152}, v4")

def p4(k):
    UU=WB
    k(f"s_mul_i32 s23, s53, 12288\ns_add_u32 s23, s23, {X1_P:#x}")
    poll(k,'4',"s_lshl_b32 s6, s51, 6\ns_add_u32 s6, s6, 4096\nv_lshlrev_b32 v5, 2, v2\nv_add_u32 v5, s6, v5",pw=1,drain=True)
    k.st()
    for s in range(12):
        if s and s%4==0: k("s_add_u32 s23, s23, 4096")
        ld(k,A+4*s,4,4,23,(s%4)*1024,sc=SC)
    k(f"""
    v_add_u32 v6, {FC1L}, v4
    v_add_u32 v7, {FC1L+36864}, v4
    s_mul_i32 s32, s53, 48
    s_mul_i32 s33, s52, 3
    s_add_u32 s32, s32, s33
    s_lshl_b32 s32, s32, 10
    s_add_u32 s32, s32, {G_P:#x}
    v_mov_b32 v86, 1.0
    v_mov_b32 v84, {f2u(-2*math.sqrt(2/math.pi)*math.log2(math.e)*0.044715):#x}
    v_mov_b32 v85, {f2u(-2*math.sqrt(2/math.pi)*math.log2(math.e)):#x}
    s_lshl_b32 s35, s51, 6
    s_lshl_b32 s6, s52, 2
    s_add_u32 s35, s35, s6
    s_add_u32 s35, s35, 5120
    """)
    k("v_lshlrev_b32 v1, 4, v3\nv_add_u32 v1, 159744, v1"); ones(k)
    for cb in range(6): k(f"ds_read_b128 {vr(WB+4*cb,4)}, v1 offset:{cb*64}\nds_read_b128 {vr(WB+24+4*cb,4)}, v1 offset:{384+cb*64}")
    k("s_waitcnt lgkmcnt(0)")
    order=[(s,cb) for s in range(12) for cb in range(4)]+[(s,cb) for s in range(12) for cb in (4,5)]
    items=[((6 if cb<3 else 7),((cb%3)*12+s)*1024) for s,cb in order]
    T=[64+j for j in range(8)]
    def gl(i,P=True):
        R=[ACC+8*i+j for j in range(8)]; L=[]
        E=(0,2,4,6)
        pk=globals()['pk']
        if not P:
            def pk(op,d,*src):
                f=lambda x,h: (f"v{x+h}" if isinstance(x,int) else ("-" if x[0]=='nb' else "")+f"v{x[1]}")
                return "\n".join(f"v_{op}_f32 v{d+h}, "+", ".join(f(x,h) for x in src) for h in (0,1))
        for j in E: L.append(pk('fma',R[j],('nb',S),UU+8*i+j,R[j]))
        for j in E: L.append(pk('fma',R[j],R[j],('b',S+1),UU+24+8*i+j))
        for j in E: L.append(pk('mul',T[j],R[j],R[j]))
        for j in E: L.append(pk('fma',T[j],T[j],('b',84),('b',85)))
        for j in E: L.append(pk('mul',T[j],T[j],R[j]))
        for j in range(8): L.append(f"v_exp_f32 v{T[j]}, v{T[j]}")
        for j in E: L.append(pk('add',T[j],T[j],('b',86)))
        for j in range(8): L.append(f"v_rcp_f32 v{T[j]}, v{T[j]}")
        for j in E: L.append(pk('mul',R[j],R[j],T[j]))
        for j in range(4): L.append(f"v_cvt_pk_bf16_f32 v{72+4*i+j}, v{R[2*j]}, v{R[2*j+1]}")
        L.append(f"buffer_store_dwordx4 {vr(72+4*i,4)}, v4, s[8:11], s32 offen offset:{i*1024} sc1")
        return L
    Q=[l for x in gl(0,False) for l in x.split('\n')]
    def m(i,b):
        s,cb=order[i]
        if cb==0: k(f"s_waitcnt vmcnt({11-s+(3 if s==11 else 0)})")
        mf(k,ACC+4*cb,b,A+4*s,s==0)
        if cb==0: mstat(k,A+4*s,s==0)
        if i==48: mstat_fin(k,S)
        if i in (40,46,54,62): f2dma(k,*{40:(0,8),46:(8,16),54:(16,20),62:(20,28)}[i])
        if i>48:
            for _ in range(4):
                if Q: k(Q.pop(0))
    gemm_loop(k,items,BB,8,m); k.st()
    for l in Q+gl(1)+gl(2): k(l)
    k.st()
    signal(k,'4',35); k.st()
    if LOC>1:
        for j in range(3): ld(k,104,4,4,32,j*1024,sc=SC)
    f2dma(k,28,48)

def p5(k):
    X5=WB
    k(f"""
    s_lshr_b32 s23, s3, 2
    s_mul_i32 s25, s56, 49152
    s_mul_i32 s6, s23, 24576
    s_add_u32 s25, s25, s6
    s_add_u32 s25, s25, {G_P:#x}
    s_mul_i32 s29, s56, 12288
    s_mul_i32 s6, s55, 1536
    s_add_u32 s29, s29, s6
    s_add_u32 s29, s29, {X1_P:#x}
    s_lshr_b32 s6, s54, 4
    s_mul_i32 s30, s6, 9216
    s_mul_i32 s6, s55, 192
    s_add_u32 s30, s30, s6
    s_add_u32 s30, s30, {1920*4}
    """)
    poll(k,'5',"s_lshr_b32 s6, s54, 1\ns_lshl_b32 s6, s6, 6\ns_add_u32 s6, s6, 5120\nv_lshlrev_b32 v5, 2, v2\nv_add_u32 v5, s6, v5")
    k.st()
    def lda(s):
        if s and s%4==0: k("s_add_u32 s25, s25, 4096")
        ld(k,A+4*s,4,4,25,(s%4)*1024,sc=SC)
    for s in range(12): lda(s)
    k(f"""
    s_mul_i32 s6, s23, 3072
    v_add_u32 v5, s6, v4
    v_add_u32 v6, 61440, v5
    v_add_u32 v7, 61440, v6
    v_lshlrev_b32 v1, 4, v3
    v_lshrrev_b32 v{S}, 1, v3
    v_lshlrev_b32 v{S}, 8, v{S}
    v_lshl_add_u32 v{S}, v2, 4, v{S}
    v_and_b32 v{S+1}, 1, v3
    v_lshl_add_u32 v{S}, v{S+1}, 3, v{S}
    """)
    items=[(5+f2addr(2*(n//3))//61440,f2addr(2*(n//3))%61440+(n%3)*1024) for n in range(72)]
    def m(i,b):
        s,cb=divmod(i,3)
        if cb==0:
            k(f"s_waitcnt vmcnt({11 if s<12 else 23-s+6})")
            if s<12: lda(12+s)
            if s==8: k('s_barrier')
            if s==11:
                for c in range(3):
                    ld(k,X5+2*c,2,S,29,c*512,sc=SC); ld(k,X5+8+4*c,4,1,30,c*64,sc=SC)
        mf(k,ACC+4*cb,b,A+4*s,s==0)
    gemm_loop(k,items,BB,8,m); k.st()
    k(f"""
    s_and_b32 s6, s3, 3
    s_mul_i32 s6, s6, 3072
    s_add_u32 s6, s6, {RL}
    v_add_u32 v5, s6, v4
    s_cmp_eq_u32 s23, 0
    s_cbranch_scc1 {k.lab('lo')}
    s_nop 4
    """)
    for cb in range(3): k(f"ds_write_b128 v5, {vr(ACC+4*cb,4)} offset:{cb*1024}")
    k(f"s_waitcnt lgkmcnt(0)\ns_barrier\ns_endpgm\n{k.lab('lo')}:")
    k(f"v_mul_u32_u24 v6, 768, v2\nv_lshl_add_u32 v6, v3, 3, v6\ns_mul_i32 s31, s56, {16*768}\ns_mul_i32 s6, s55, 96\ns_add_u32 s31, s31, s6\ns_barrier")
    for cb in range(3): k(f"ds_read_b128 {vr(BB+4*cb,4)}, v5 offset:{cb*1024}")
    k("s_waitcnt vmcnt(0) lgkmcnt(0)")
    for cb in range(3):
        for t in range(4): k(f"v_add_f32 v{ACC+4*cb+t}, v{ACC+4*cb+t}, v{BB+4*cb+t}")
        for j in range(2):
            x=X5+2*cb+j
            k(f"v_lshlrev_b32 v8, 16, v{x}\nv_and_b32 v9, 0xffff0000, v{x}")
            k(f"v_fma_f32 v8, v{ACC+4*cb+2*j}, v{X5+8+4*cb+2*j}, v8\nv_fma_f32 v9, v{ACC+4*cb+2*j+1}, v{X5+8+4*cb+2*j+1}, v9\nv_cvt_pk_bf16_f32 v{x}, v8, v9")
        k(f"buffer_store_dwordx2 {vr(X5+2*cb,2)}, v6, s[44:47], s31 offen offset:{cb*32}")

def km():
    k=K(NAME,256,512,163840,256,sgpr=102)
    k(f"s_cmp_ge_u32 s2, 256\ns_cbranch_scc1 {k.lab('end')}")
    k.srds([('ws',8),('x',12),('fc1',16),('wo',20),('wqkv',24),('c',28),('wmod',32),('out',44),('dbg',96)])
    k("v_lshrrev_b32 v1, 6, v0\nv_and_b32 v2, 15, v0\nv_readfirstlane_b32 s3, v1\nv_bfe_u32 v3, v0, 4, 2\nv_and_b32 v4, 63, v0\nv_lshlrev_b32 v4, 4, v4\ns_and_b32 s4, s2, 7\ns_lshr_b32 s5, s2, 3")
    p1(k); p3setup(k); p2(k); p4setup(k); p5setup(k); p3(k); p4(k); p5(k)
    k(f"{k.lab('end')}:\ns_endpgm")
    return k
```

```python
from common import *
from k14 import f2u, stats, stats_fin
import math, os
SC=" sc1"
SLP=int(os.environ.get('SLP','3'))
NAME='standalone__dit_block__diffusion_kernel'
def mf(k,c,a,b,first): k(f"v_mfma_f32_16x16x32_bf16 {vr(c,4)}, {vr(a,4)}, {vr(b,4)}, {0 if first else vr(c,4)}")
def ld(k,dst,n,voff,soff,off=0,srd=8,sc=""):
    w={1:"dword",2:"dwordx2",4:"dwordx4"}[n]
    k(f"buffer_load_{w} {vr(dst,n)}, v{voff}, s[{srd}:{srd+3}], s{soff} offen"+(f" offset:{off}" if off else "")+sc)
def dma(k,soff,off=0,sc=""): k(f"buffer_load_dwordx4 v4, s[8:11], s{soff} offen"+(f" offset:{off}" if off else "")+sc+" lds")
def st4(k,src,voff,soff,off=0): k(f"buffer_store_dwordx4 {vr(src,4)}, v{voff}, s[8:11], s{soff} offen"+(f" offset:{off}" if off else "")+SC)

def signal(k,name,soff,n=0):
    k(f"s_waitcnt vmcnt({n})\ns_barrier\ns_cmp_lg_u32 s3, 0\ns_cbranch_scc1 {k.lab('sg'+name)}")
    k(f"v_mov_b32 v5, 0\nv_mov_b32 v6, 1\ns_lshl_b32 s{soff}, s{soff}, 5\ns_add_u32 s{soff}, s{soff}, {FL:#x}\ns_mov_b64 exec, 1\nbuffer_store_dword v6, v5, s[8:11], s{soff} offen sc1\ns_mov_b64 exec, -1")
    k(f"{k.lab('sg'+name)}:")
def poll(k,name,setup,pw=7,drain=False,bar=True):
    k(f"s_cmp_lg_u32 s3, {pw}\ns_cbranch_scc1 {k.lab('pd'+name)}")
    k(setup)
    k(f"v_lshlrev_b32 v5, 5, v5\ns_mov_b32 s6, {FL:#x}\ns_mov_b32 s7, 0\n{k.lab('pl'+name)}:")
    k(f"buffer_load_dword v6, v5, s[8:11], s6 offen sc1\ns_waitcnt vmcnt(0)\nv_cmp_eq_u32 vcc, 0, v6\ns_add_u32 s7, s7, 1\ns_cmp_ge_u32 s7, 0x10000\ns_cbranch_scc1 {k.lab('pd'+name)}\ns_nop 2")
    k(f"s_cbranch_vccz {k.lab('pd'+name)}\ns_sleep {SLP}\ns_branch {k.lab('pl'+name)}\n{k.lab('pd'+name)}:")
    if drain: k("s_waitcnt vmcnt(0)")
    if bar: k("s_barrier")
def swap_pack(k,X,Y,D):
    k(f"v_cvt_pk_bf16_f32 v{D}, v{X}, v{X+1}\nv_cvt_pk_bf16_f32 v{D+1}, v{X+2}, v{X+3}\nv_cvt_pk_bf16_f32 v{D+2}, v{Y}, v{Y+1}\nv_cvt_pk_bf16_f32 v{D+3}, v{Y+2}, v{Y+3}")
    k(f"s_nop 1\nv_permlane16_swap_b32 v{D}, v{D+2}\nv_permlane16_swap_b32 v{D+1}, v{D+3}\ns_nop 0")

ON=192; SM=184; GR=188
def ones(k):
    for j in range(4): k(f"v_mov_b32 v{ON+j}, 0x3f803f80")
def mstat(k,a,first): mf(k,SM,ON,a,first); mf(k,GR,a,a,first)
def mstat_fin(k,S):
    k(f"""
    v_and_b32 v{S+2}, 1, v2
    v_cmp_eq_u32 vcc, 0, v{S+2}
    v_and_b32 v{S+2}, 2, v2
    v_lshrrev_b32 v{S+3}, 2, v2
    v_cndmask_b32 v{GR}, v{GR+1}, v{GR}, vcc
    v_cndmask_b32 v{GR+2}, v{GR+3}, v{GR+2}, vcc
    v_cmp_eq_u32 vcc, 0, v{S+2}
    v_mul_f32 v{S}, {f2u(1/384):#x}, v{SM}
    s_nop 0
    v_cndmask_b32 v{GR}, v{GR+2}, v{GR}, vcc
    v_cmp_eq_u32 vcc, v3, v{S+3}
    s_nop 1
    v_cndmask_b32 v{S+1}, 0, v{GR}, vcc
    """)
    xreduce(k,[S+1],[S+2],"v_add_f32")
    k(f"v_mul_f32 v{S+1}, {f2u(1/384):#x}, v{S+1}\nv_fma_f32 v{S+1}, -v{S}, v{S}, v{S+1}\nv_max_f32 v{S+1}, 0, v{S+1}\nv_add_f32 v{S+1}, {f2u(1e-5):#x}, v{S+1}\nv_rsq_f32 v{S+1}, v{S+1}\ns_nop 0")
def pk(op,d,*src):
    o=[];lo=[];hi=[];ng=[]
    for x in src:
        if isinstance(x,int): assert x%2==0; o.append(vr(x,2)); lo.append(0); hi.append(1); ng.append(0)
        else: o.append(vr(x[1]&~1,2)); lo.append(x[1]&1); hi.append(x[1]&1); ng.append(int(x[0]=='nb'))
    f=lambda l:"["+",".join(map(str,l))+"]"
    assert d%2==0
    return f"v_pk_{op}_f32 {vr(d,2)}, "+", ".join(o)+f" op_sel:{f(lo)} op_sel_hi:{f(hi)}"+(f" neg_lo:{f(ng)} neg_hi:{f(ng)}" if any(ng) else "")
A=8; ACC=104; BB=128; S=160; U=168; WB=200; XG=248

LOC=int(os.environ.get('LOC','1'))
MAP2=("s_bfe_u32 s21, s5, 0x10002\ns_lshr_b32 s22, s5, 3\ns_and_b32 s23, s4, 3\ns_lshl_b32 s23, s23, 2\ns_and_b32 s6, s5, 3\ns_add_u32 s23, s23, s6" if LOC else
      "s_bfe_u32 s21, s4, 0x10001\ns_and_b32 s22, s4, 1\ns_lshl_b32 s22, s22, 1\ns_and_b32 s6, s5, 1\ns_add_u32 s22, s22, s6\ns_lshr_b32 s23, s5, 1")
MAP4=("s_lshl_b32 s51, s4, 1\ns_and_b32 s6, s5, 1\ns_add_u32 s51, s51, s6\ns_lshr_b32 s52, s5, 1" if LOC else
      "s_lshr_b32 s51, s4, 1\ns_lshl_b32 s51, s51, 2\ns_and_b32 s6, s5, 3\ns_add_u32 s51, s51, s6\ns_and_b32 s52, s4, 1\ns_lshl_b32 s52, s52, 3\ns_lshr_b32 s6, s5, 2\ns_add_u32 s52, s52, s6")
WOL=77824
def tr_loop(k,items,breg0,nbuf,mfn,hoff):
    n=len(items)
    def rd(i):
        a,o=items[i]; r=breg0+4*(i%nbuf)
        k(f"ds_read_b64_tr_b16 {vr(r,2)}, v{a} offset:{o}\nds_read_b64_tr_b16 {vr(r+2,2)}, v{a} offset:{o+hoff}")
    pre=min(nbuf-1,n)
    for i in range(pre): rd(i)
    issued=pre
    for i in range(n):
        k(f"s_waitcnt lgkmcnt({2*(issued-i-1)})")
        mfn(i, breg0+4*(i%nbuf))
        if issued<n: rd(issued); issued+=1
def chunk_offs(k,dst,per,stride,swz,t):
    k(f"s_mov_b32 s6, {(2**32+per-1)//per:#x}\ns_mov_b32 s7, {stride}")
    for i in range(3):
        d=dst+i
        k(f"v_lshrrev_b32 v{t}, 4, v4\nv_add_u32 v{t}, {64*i}, v{t}\nv_mul_hi_u32 v{d}, v{t}, s6\nv_mul_u32_u24 v{t+1}, {per}, v{d}\nv_sub_u32 v{t}, v{t}, v{t+1}")
        if swz: k(f"v_lshrrev_b32 v{t+1}, 2, v{d}\nv_and_b32 v{t+1}, 2, v{t+1}\nv_xor_b32 v{t}, v{t}, v{t+1}")
        k(f"v_mul_lo_u32 v{d}, v{d}, s7\nv_lshl_add_u32 v{d}, v{t}, 4, v{d}")
def w_dma(k,srd,vo,sl,sg,stride):
    for g in range(3):
        for i in range(3):
            k(f"s_mov_b32 m0, s{sl}\ns_add_u32 s{sl}, s{sl}, 1024\nbuffer_load_dwordx4 v{vo+i}, s[{srd}:{srd+3}], s{sg} offen lds")
        k(f"s_add_u32 s{sg}, s{sg}, {16*stride}")
def tr_addr(k,d,base):
    k(f"v_lshrrev_b32 v{d}, 2, v2\nv_lshl_add_u32 v{d}, v3, 3, v{d}\nv_mul_u32_u24 v{d}, 192, v{d}\nv_and_b32 v{d+1}, 3, v2\nv_lshl_add_u32 v{d}, v{d+1}, 3, v{d}\nv_add_u32 v{d}, {base}, v{d}")
    k(f"v_and_b32 v{d+2}, 1, v3\nv_lshlrev_b32 v{d+2}, 5, v{d+2}\nv_sub_u32 v{d+1}, v{d}, v{d+2}\nv_add_u32 v{d}, v{d}, v{d+2}\nv_add_u32 v{d+2}, 36864, v{d}\nv_add_u32 v{d+3}, 36864, v{d+1}")
def wo_dma(k,U=U,setup_only=False):
    chunk_offs(k,U,12,768,True,U+3)
    k(f"s_mul_i32 s36, s3, 9216\ns_add_u32 s36, s36, {WOL}\ns_mul_i32 s37, s3, {48*768}\ns_mul_i32 s6, s49, 192\ns_add_u32 s37, s37, s6")
    if not setup_only: w_dma(k,20,U,36,37,768)
def modpoll(k,name,sl=SLP,both=False):
    ex='v_and_b32 v6, 1, v3\nv_lshlrev_b32 v5, 2, v6\n' if both else ''
    k(f"s_cmp_lg_u32 s3, 7\ns_cbranch_scc1 {k.lab('pd'+name)}\nv_mov_b32 v5, 0\n{ex}s_mov_b32 s7, 0\n{k.lab('pl'+name)}:")
    k(f"buffer_load_dword v6, v5, s[96:99], 0 offen sc1\ns_waitcnt vmcnt(0)\nv_cmp_eq_u32 vcc, 0, v6\ns_add_u32 s7, s7, 1\ns_cmp_ge_u32 s7, 0x10000\ns_cbranch_scc1 {k.lab('pd'+name)}\ns_nop 2")
    k(f"s_cbranch_vccz {k.lab('pd'+name)}\ns_sleep {sl}\ns_branch {k.lab('pl'+name)}\n{k.lab('pd'+name)}:\ns_barrier")

def touch(k,lst,name):
    k(f"s_sub_u32 s6, s2, 64\ns_lshl_b32 s6, s6, 1\ns_and_b32 s7, s3, 1\ns_add_u32 s6, s6, s7\ns_lshl_b32 s6, s6, 12\nv_lshlrev_b32 v7, 2, v4\ns_lshr_b32 s7, s3, 1")
    for i,srd in enumerate(lst):
        k(f"s_cmp_lg_u32 s7, {i}\ns_cbranch_scc1 {k.lab('t%s%d'%(name,i))}\nbuffer_load_dword v199, v7, s[{srd}:{srd+3}], s6 offen\n{k.lab('t%s%d'%(name,i))}:")
def pmod(k):
    k("""
    v_and_b32 v8, 7, v0
    v_lshrrev_b32 v9, 3, v0
    v_mul_u32_u24 v10, 27648, v9
    v_lshl_add_u32 v10, v8, 4, v10
    v_mul_u32_u24 v11, 12, v9
    s_lshl_b32 s7, s2, 7
    """)
    for b in range(2): k(f"buffer_load_dwordx3 v[{80+4*b}:{82+4*b}], v11, s[28:31], 0 offen offset:{b*768}")
    for i in range(6):
        k(f"buffer_load_dwordx4 {vr(16+4*i,4)}, v10, s[32:35], s7 offen")
        if i<5: k(f"s_add_u32 s7, s7, 4608")
    k("s_waitcnt vmcnt(6)"); k.st(106)
    for r in range(40,52):
        src=80+4*((r-40)//6)+((r-40)%6)//2
        k(f"v_and_b32 v{r}, 0xffff0000, v{src}" if r%2 else f"v_lshlrev_b32 v{r}, 16, v{src}")
    for r in range(40,52): k(f"v_mul_f32 v{r+12}, 0xbfb8aa3b, v{r}\nv_exp_f32 v{r+12}, v{r+12}")
    for r in range(40,52): k(f"v_add_f32 v{r+12}, 1.0, v{r+12}\nv_rcp_f32 v{r+12}, v{r+12}")
    for r in range(40,52): k(f"v_mul_f32 v{r}, v{r}, v{r+12}\nv_cvt_pk_bf16_f32 v{r}, v{r}, v{r}\nv_lshlrev_b32 v{r}, 16, v{r}")
    AC=[64,72]
    for i in range(6):
        k(f"s_waitcnt vmcnt({5-i})")
        for j in range(4):
            k(f"v_lshlrev_b32 v5, 16, v{16+4*i+j}\nv_and_b32 v6, 0xffff0000, v{16+4*i+j}")
            op="v_fmac_f32" if i else "v_mul_f32"
            for b in range(2): k(f"{op} v{AC[b]+2*j}, v5, v{40+b*6+i}\n{op} v{AC[b]+2*j+1}, v6, v{40+b*6+i}")
    k.st(107)
    k("s_nop 1")
    for r in range(64,80): k(f"v_add_f32_dpp v{r}, v{r}, v{r} row_ror:8 row_mask:0xf bank_mask:0xf")
    k("s_nop 1")
    for j in range(8): k(f"v_permlane32_swap_b32 v{64+j}, v{72+j}")
    for j in range(8): k(f"v_add_f32 v{64+j}, v{64+j}, v{72+j}")
    k("s_nop 1")
    for j in range(4): k(f"v_permlane16_swap_b32 v{64+j}, v{68+j}")
    k("v_lshlrev_b32 v5, 9, v1\nv_lshl_add_u32 v5, v8, 6, v5\nv_lshl_add_u32 v5, v3, 4, v5")
    for j in range(4): k(f"v_add_f32 v{64+j}, v{64+j}, v{68+j}")
    k("ds_write_b128 v5, v[64:67]")
    k(f"s_waitcnt lgkmcnt(0)\ns_barrier\ns_cmp_ge_u32 s3, 2\ns_cbranch_scc1 {k.lab('m2')}\nv_lshlrev_b32 v5, 2, v0")
    for p in range(8): k(f"ds_read_b32 v{16+p}, v5 offset:{p*512}")
    k("s_waitcnt lgkmcnt(0)")
    for st in (4,2,1):
        for p in range(st): k(f"v_add_f32 v{16+p}, v{16+p}, v{16+p+st}")
    k(f"""
    v_cvt_pk_bf16_f32 v8, v16, v16
    v_lshlrev_b32 v8, 16, v8
    s_sub_u32 s7, s2, 6
    s_cmp_lt_u32 s7, 6
    s_cselect_b32 s6, 1.0, 0
    s_sub_u32 s7, s2, 24
    s_cmp_lt_u32 s7, 6
    s_cselect_b32 s6, 1.0, s6
    v_add_f32 v8, s6, v8
    v_cvt_pk_bf16_f32 v8, v8, v8
    v_lshlrev_b32 v8, 16, v8
    v_lshrrev_b32 v5, 4, v0
    v_lshlrev_b32 v5, 5, v5
    v_and_b32 v6, 7, v0
    v_lshl_add_u32 v5, v6, 2, v5
    v_bfe_u32 v6, v0, 3, 1
    v_mul_u32_u24 v6, 9216, v6
    v_add_u32 v5, v5, v6
    s_lshl_b32 s6, s2, 8
    buffer_store_dword v8, v5, s[8:11], s6 offen sc1
    {k.lab('m2')}:
    """); k.st(108); k(f"""
    s_waitcnt vmcnt(0)
    s_barrier
    """); k.st(109); k(f"""
    s_cmp_lg_u32 s3, 0
    s_cbranch_scc1 {k.lab('m3')}
    s_sub_u32 s7, s2, 18
    s_cmp_lt_u32 s7, 12
    s_cselect_b32 s6, 4, 0
    s_cselect_b32 s24, 11, 15
    s_cbranch_scc1 {k.lab('m5')}
    s_sub_u32 s7, s2, 12
    s_cmp_lt_u32 s7, 48
    s_cbranch_scc1 {k.lab('m3')}
    {k.lab('m5')}:
    v_mov_b32 v5, 0
    v_mov_b32 v6, 1
    s_mov_b64 exec, 1
    buffer_atomic_add v6, v5, s[96:99], s6 offen offset:128 sc0 sc1
    s_waitcnt vmcnt(0)
    v_readfirstlane_b32 s7, v6
    s_nop 3
    s_cmp_lg_u32 s7, s24
    s_cbranch_scc1 {k.lab('m4')}
    buffer_store_dword v6, v5, s[96:99], s6 offen sc1
    {k.lab('m4')}:
    s_mov_b64 exec, -1
    {k.lab('m3')}:
    """)

def pfc1(k):
    F=8; PQ=32; O=128; T=152
    k(f"""
    s_sub_u32 s24, s2, 36
    v_lshrrev_b32 v5, 7, v4
    v_mul_u32_u24 v5, 3072, v5
    v_and_b32 v6, 0x70, v4
    v_add_u32 v5, v5, v6
    s_mul_i32 s25, s3, 6144
    s_mul_i32 s26, s3, {48*3072}
    s_lshl_b32 s6, s24, 7
    s_add_u32 s26, s26, s6
    """)
    for i in range(6): k(f"s_mov_b32 m0, s25\ns_add_u32 s25, s25, 1024\nbuffer_load_dwordx4 v5, s[16:19], s26 offen lds\ns_add_u32 s26, s26, {8*3072}")
    wo_dma(k)
    k(f"""
    s_lshr_b32 s27, s3, 1
    s_and_b32 s25, s3, 1
    v_lshrrev_b32 v7, 2, v2
    v_lshl_add_u32 v7, v3, 3, v7
    v_lshlrev_b32 v7, 7, v7
    v_and_b32 v6, 3, v2
    v_lshl_add_u32 v7, v6, 3, v7
    s_mul_i32 s6, s25, 24576
    s_lshl_b32 s7, s27, 5
    s_add_u32 s6, s6, s7
    v_add_u32 v7, s6, v7
    s_lshl_b32 s6, s24, 2
    s_add_u32 s27, s27, s6
    s_min_u32 s6, s3, 5
    s_lshl_b32 s37, s6, 10
    s_cmp_ge_u32 s6, 3
    s_cselect_b32 s26, {9216-3072}, 0
    s_add_u32 s26, s26, s37
    s_add_u32 s26, s26, {1152*4:#x}
    s_add_u32 s37, s37, 53248
    s_mul_i32 s36, s27, 12288
    s_mul_i32 s6, s25, 6144
    s_add_u32 s36, s36, s6
    s_add_u32 s36, s36, {FC1_P:#x}
    s_mov_b32 s40, 0x3f803f80
    s_waitcnt vmcnt(0)
    """)
    ones(k); modpoll(k,'f',6,True)
    k("s_mov_b32 m0, s37\ns_nop 0"); dma(k,26,0,SC)
    for i in range(6): k(f"ds_read_b64_tr_b16 {vr(F+4*i,2)}, v7 offset:{i*4096}\nds_read_b64_tr_b16 {vr(F+4*i+2,2)}, v7 offset:{i*4096+512}")
    k("v_lshlrev_b32 v6, 5, v3\ns_mul_i32 s6, s25, 768\ns_add_u32 s6, s6, 53248\nv_add_u32 v6, s6, v6\ns_waitcnt vmcnt(0) lgkmcnt(0)\ns_barrier")
    for b in range(2):
        k("s_add_u32 s37, s36, 4096")
        u=S+2*b
        for i in range(6):
            if i%3==0:
                for ii in range(i,i+3):
                    for q in range(2):
                        k(f"ds_read_b128 {vr(PQ+16*ii+4*q,4)}, v6 offset:{b*3072+ii*128+16*q}\nds_read_b128 {vr(PQ+16*ii+8+4*q,4)}, v6 offset:{b*3072+1536+ii*128+16*q}")
            k(f"s_waitcnt lgkmcnt({8-4*(i%3)})")
            for j in range(4): k(f"v_lshlrev_b32 v{T+2*j}, 16, v{F+4*i+j}\nv_and_b32 v{T+2*j+1}, 0xffff0000, v{F+4*i+j}\nv_cvt_pk_bf16_f32 v{PQ+16*i+j}, v{PQ+16*i+2*j}, v{PQ+16*i+2*j+1}")
            for j in range(8): k(f"v_mul_f32 v{T+j}, v{T+j}, v{PQ+16*i+8+j}")
            mf(k,200+8*b+4,PQ+16*i,F+4*i,i==0)
            for j in range(4): k(f"v_cvt_pk_bf16_f32 v{O+4*i+j}, v{T+2*j}, v{T+2*j+1}")
            k("s_nop 1"); mf(k,200+8*b,ON,O+4*i,i==0)
            st4(k,O+4*i,4,36 if i<4 else 37,(i%4)*1024)
        if b==0: k("s_add_u32 s36, s36, 0x120000")
    k("s_nop 7")
    for j in range(4): k(f"v_mov_b32 v{S+j}, v{200+4*j}")
    k(f"""
    s_lshr_b32 s6, s3, 1
    s_lshl_b32 s6, s6, 10
    s_add_u32 s6, s6, 49152
    v_add_u32 v5, s6, v4
    s_lshl_b32 s35, s24, 2
    s_add_u32 s35, s35, 1024
    s_cmp_eq_u32 s25, 0
    s_cbranch_scc1 {k.lab('f1')}
    ds_write_b128 v5, {vr(S,4)}
    s_waitcnt lgkmcnt(0)
    s_barrier
    s_branch {k.lab('p1e')}
    {k.lab('f1')}:
    s_barrier
    ds_read_b128 {vr(T,4)}, v5
    s_lshl_b32 s6, s27, 6
    s_add_u32 s6, s6, {UV:#x}
    v_lshlrev_b32 v5, 2, v2
    s_waitcnt lgkmcnt(0)
    """)
    for j in range(4):
        k(f"v_add_f32 v{S+j}, v{S+j}, v{T+j}\nbuffer_store_dword v{S+j}, v5, s[8:11], s6 offen sc1\ns_add_u32 s6, s6, 6144")
    k(f"s_branch {k.lab('p1e')}")

def p1(k):
    k(f"""
    s_lshl_b32 s48, s4, 3
    s_and_b32 s6, s5, 7
    s_add_u32 s48, s48, s6
    s_lshr_b32 s49, s5, 3
    s_mul_i32 s50, s49, 6
    s_add_u32 s50, s50, s3
    s_waitcnt lgkmcnt(0)
    s_cmp_lt_u32 s2, 36
    s_cbranch_scc1 {k.lab('mod')}
    s_cmp_lt_u32 s3, 7
    s_cbranch_scc1 {k.lab('nt')}
    v_lshlrev_b32 v7, 15, v4
    buffer_load_dword v198, v7, s[96:99], 0 offen sc1
    buffer_load_dword v197, v7, s[8:11], 0 offen sc1
    buffer_load_dword v196, v7, s[44:47], 0 offen sc1
    {k.lab('nt')}:
    s_cmp_ge_u32 s2, 64
    s_cbranch_scc1 {k.lab('gemm')}
    s_cmp_lt_u32 s2, 36
    s_cbranch_scc1 {k.lab('mod')}
    s_getpc_b64 s[52:53]
    {k.lab('pc')}:
    s_mov_b32 s54, {k.lab('end')}-{k.lab('pc')}
    s_mov_b32 s55, 0x20000
    s_lshl_b32 s6, s3, 13
    v_lshlrev_b32 v7, 3, v4
    buffer_load_dword v199, v7, s[52:55], s6 offen
    s_cmp_lt_u32 s2, 60
    s_cbranch_scc1 {k.lab('fc1')}
    v_mov_b32 v12, 0
    v_mov_b32 v13, 0
    v_mov_b32 v14, 0
    v_mov_b32 v15, 0
    v_lshlrev_b32 v5, 4, v0
    s_sub_u32 s6, s2, 60
    s_mul_i32 s6, s6, 49152
    s_add_u32 s6, s6, {FL:#x}
    """)
    for i in range(6): k("buffer_store_dwordx4 v[12:15], v5, s[8:11], s6 offen sc1\ns_add_u32 s6, s6, 8192")
    k(f"""
    s_branch {k.lab('m2')}
    {k.lab('mod')}:
    """)
    k.st(105); pmod(k)
    k(f"{k.lab('idle')}:"); modpoll(k,'i',16); k.st(114)
    k(f"s_cmp_ge_u32 s2, 36\ns_cbranch_scc1 {k.lab('i2')}\ns_lshl_b32 s35, s2, 2\ns_add_u32 s35, s35, 1120")
    k(f"""
    s_load_dwordx2 s[16:17], s[0:1], {KOFF['fc2']}
    s_mul_hi_u32 s24, s2, 0x2aaaaaab
    s_mul_i32 s6, s24, 6
    s_sub_u32 s25, s2, s6
    s_lshl_b32 s24, s24, 3
    s_add_u32 s24, s24, s3
    s_mul_i32 s26, s24, {32*768}
    s_lshl_b32 s6, s25, 7
    s_add_u32 s26, s26, s6
    s_lshl_b32 s27, s3, 12
    s_add_u32 s27, s27, 8192
    v_lshrrev_b32 v5, 7, v4
    v_mul_u32_u24 v5, 768, v5
    v_and_b32 v6, 0x70, v4
    v_add_u32 v5, v5, v6
    v_lshrrev_b32 v7, 2, v2
    v_lshl_add_u32 v7, v3, 2, v7
    v_lshlrev_b32 v7, 7, v7
    v_and_b32 v6, 3, v2
    v_lshl_add_u32 v7, v6, 3, v7
    v_add_u32 v7, s27, v7
    s_waitcnt lgkmcnt(0)
    """)
    for i in range(4): k(f"s_mov_b32 m0, s27\ns_add_u32 s27, s27, 1024\nbuffer_load_dwordx4 v5, s[16:19], s26 offen lds\ns_add_u32 s26, s26, {8*768}")
    k(f"s_mul_i32 s26, s25, {4*49152}\ns_lshl_b32 s6, s24, 10\ns_add_u32 s26, s26, s6\ns_add_u32 s26, s26, {FC2_P:#x}\ns_waitcnt vmcnt(0)")
    for c in range(4): k(f"ds_read_b64_tr_b16 {vr(8+4*c,2)}, v7 offset:{c*32}\nds_read_b64_tr_b16 {vr(10+4*c,2)}, v7 offset:{c*32+2048}")
    k("s_waitcnt lgkmcnt(0)")
    for c in range(4): st4(k,8+4*c,4,26); k("s_add_u32 s26, s26, 49152")
    signal(k,'m',35)
    k(f"{k.lab('i2')}:"); wo_dma(k); k("s_waitcnt vmcnt(0)\ns_barrier"); k(f"s_branch {k.lab('p1x')}\n{k.lab('fc1')}:")
    pfc1(k)
    k(f"""
    {k.lab('gemm')}:
    """)
    if not os.environ.get('NOTOUCH'): touch(k,[24,20],'a')
    k(f"""
    s_sub_u32 s41, s5, 8
    s_lshl_b32 s28, s4, 1
    s_and_b32 s6, s41, 1
    s_add_u32 s28, s28, s6
    s_lshr_b32 s29, s41, 1
    s_lshl_b32 s42, s28, 3
    s_add_u32 s42, s42, s3
    s_mul_i32 s30, s42, 12288
    """)
    XL=61440; XO=U+4
    k(f"s_mov_b32 s6, {(2**32+47)//48:#x}")
    for i in range(3):
        d=XO+i; t=XO+3
        k(f"v_lshrrev_b32 v{t}, 4, v4\nv_add_u32 v{t}, {64*i}, v{t}\nv_mul_hi_u32 v{d}, v{t}, s6\nv_mul_u32_u24 v{t+1}, 48, v{d}\nv_sub_u32 v{t}, v{t}, v{t+1}\nv_xor_b32 v{t}, v{t}, v{d}\nv_mul_u32_u24 v{d}, 768, v{d}\nv_lshl_add_u32 v{d}, v{t}, 4, v{d}")
    k(f"s_mul_i32 s31, s3, 12288\ns_add_u32 s31, s31, {XL}\nv_mul_u32_u24 v7, 768, v2\nv_add_u32 v7, s31, v7\nv_xor_b32 v6, v2, v3")
    k.st(110)
    for m_ in range(4):
        for i in range(3):
            k(f"s_mov_b32 m0, s31\ns_add_u32 s31, s31, 1024\nv_xor_b32 v5, {m_<<6}, v{XO+i}\nbuffer_load_dwordx4 v5, s[12:15], s30 offen lds")
        k("s_add_u32 s30, s30, 3072")
    k.st(112)
    for b_ in range(4): k(f"v_xor_b32 v{XO+8+b_}, {4*b_}, v6\nv_lshl_add_u32 v{XO+8+b_}, v{XO+8+b_}, 4, v7")
    chunk_offs(k,U,12,2304,True,S)
    k(f"s_mul_i32 s36, s3, 3072\ns_mul_i32 s37, s3, {16*2304}\ns_mul_i32 s6, s29, 192\ns_add_u32 s37, s37, s6")
    def wgrp():
        for i in range(3): k(f"s_mov_b32 m0, s36\ns_add_u32 s36, s36, 1024\nbuffer_load_dwordx4 v{U+i}, s[24:27], s37 offen lds")
    k("s_waitcnt vmcnt(0) lgkmcnt(0)"); k.st(113)
    for s in range(12): k(f"ds_read_b128 {vr(A+4*s,4)}, v{XO+8+s%4} offset:{(s//4)*256}")
    for g in range(2):
        wgrp(); k(f"s_add_u32 s36, s36, {7*3072}\ns_add_u32 s37, s37, {128*2304}")
    k("s_waitcnt lgkmcnt(0)\ns_barrier"); k.st(1)
    ones(k); k("s_nop 1")
    for s_ in range(12): mstat(k,A+4*s_,s_==0)
    wgrp(); wo_dma(k,XO,True)
    XF=lambda e: (56+e if e<48 else 200+e-48)
    for i in range(48): k(f"v_lshlrev_b32 v{XF(2*i)}, 16, v{A+i}\nv_and_b32 v{XF(2*i+1)}, 0xffff0000, v{A+i}")
    mstat_fin(k,S)
    k(f"v_mul_f32 v{S}, v{S}, v{S+1}")
    for e in range(0,96,2): k(pk('fma',XF(e),XF(e),('b',S+1),('nb',S)))
    k(f"""
    s_lshr_b32 s43, s28, 3
    s_mul_i32 s30, s43, 9216
    s_and_b32 s6, s3, 1
    s_lshl_b32 s6, s6, 10
    s_add_u32 s30, s30, s6
    s_bitcmp1_b32 s3, 1
    s_cselect_b32 s6, 1536, 0
    s_add_u32 s30, s30, s6
    s_and_b32 s31, s3, 3
    s_lshl_b32 s31, s31, 10
    s_add_u32 s31, s31, 73728
    """)
    k.st(2); modpoll(k,'g'); k.st(21)
    k("s_mov_b32 m0, s31\ns_nop 0"); dma(k,30,0,SC)
    tr_addr(k,U,0)
    qs=f2u(192**-0.5*math.log2(math.e))
    k(f"""
    s_cmp_lt_u32 s29, 4
    s_cselect_b32 s30, {qs:#x}, 1.0
    s_cselect_b64 vcc, -1, 0
    s_cselect_b32 s33, -1, -2
    s_and_b32 s33, s42, s33
    s_mul_i32 s33, s33, 12
    s_lshr_b32 s31, s29, 2
    s_mul_i32 s31, s31, {ACT:#x}
    s_and_b32 s32, s29, 3
    s_mul_i32 s32, s32, 3
    s_add_u32 s32, s32, s33
    s_lshl_b32 s32, s32, 10
    s_add_u32 s31, s31, s32
    s_add_u32 s31, s31, {Q_P:#x}
    s_and_b32 s34, s3, 1
    v_bfe_u32 v5, v2, 2, 1
    v_mul_u32_u24 v5, 12288, v5
    v_lshl_add_u32 v5, v3, 8, v5
    v_lshrrev_b32 v6, 3, v2
    v_lshl_add_u32 v5, v6, 6, v5
    v_and_b32 v6, 3, v2
    v_lshl_add_u32 v5, v6, 4, v5
    s_lshl_b32 s6, s34, 7
    v_add_u32 v5, s6, v5
    v_cndmask_b32 v5, v5, v4, vcc
    s_lshl_b32 s35, s28, 6
    s_lshl_b32 s6, s29, 2
    s_add_u32 s35, s35, s6
    v_lshlrev_b32 v1, 5, v3
    v_add_u32 v1, 73728, v1
    s_waitcnt vmcnt(0)
    s_barrier
    """)
    k.st(22)
    k(f"s_cmp_ge_u32 s29, 8\ns_cbranch_scc1 {k.lab('v')}")
    def body(isv):
        PP=176
        order=[(s,cb) for s in range(12) for cb in range(4)]+[(s,cb) for s in range(12) for cb in (4,5)]
        ops=[]
        for i,(s,cb) in enumerate(order):
            if cb==0: ops+=[('p',s,0),('p',s,1)]
            ops.append(('w',s,cb))
        nw=[0]; reg={}; iss=[0]
        def rd(n):
            t,s,x=ops[n]
            if t=='p': k(f"ds_read_b128 {vr(PP+8*x,4)}, v1 offset:{s*128+16*x}\nds_read_b128 {vr(PP+8*x+4,4)}, v1 offset:{2048+s*128+16*x}")
            else:
                r=BB+4*(nw[0]%8); nw[0]+=1; reg[n]=r; a_=U+(x%2)+2*(s//6); o=(s%6)*6144+x*32
                k(f"ds_read_b64_tr_b16 {vr(r,2)}, v{a_} offset:{o}\nds_read_b64_tr_b16 {vr(r+2,2)}, v{a_} offset:{o+768}")
        def fill(n):
            while iss[0]<len(ops) and iss[0]<n+6: rd(iss[0]); iss[0]+=1
        def epi(c):
            R=ACC+8*c; D=S+4*(c%2)
            if isv:
                swap_pack(k,R,R+4,D); st4(k,D,5,31); k("s_add_u32 s31, s31, 65536")
            else:
                for j in range(8): k(f"v_mul_f32 v{R+j}, s30, v{R+j}")
                for j in range(4): k(f"v_cvt_pk_bf16_f32 v{D+j}, v{R+2*j}, v{R+2*j+1}")
                st4(k,D,5,31,c*1024)
        fill(0); i=0
        for n,(t,s,x) in enumerate(ops):
            k(f"s_waitcnt lgkmcnt({2*(iss[0]-n-1)})")
            if t=='p':
                for j in range(4): e=8*s+4*x+j; k(f"v_fma_f32 v{XF(e)}, v{XF(e)}, v{PP+8*x+4+j}, v{PP+8*x+j}")
                for j in range(2): e=8*s+4*x+2*j; k(f"v_cvt_pk_bf16_f32 v{A+4*s+2*x+j}, v{XF(e)}, v{XF(e+1)}")
            else:
                if isv: mf(k,ACC+4*x,A+4*s,reg[n],s==0)
                else: mf(k,ACC+4*x,reg[n],A+4*s,s==0)
                if i==52: epi(0)
                if i==60: epi(1)
                if i%5==0 and i<45:
                    q=i//5
                    k(f"s_mov_b32 m0, s36\ns_add_u32 s36, s36, 1024\nbuffer_load_dwordx4 v{XO+q%3}, s[20:23], s37 offen lds")
                    if q%3==2: k(f"s_add_u32 s37, s37, {16*768}")
                i+=1
            fill(n+1)
        k("s_nop 7"); epi(2)
        k("v_lshrrev_b32 v1, 6, v0")
    body(False)
    k(f"""
    s_branch {k.lab('p1e')}
    {k.lab('v')}:
    s_sub_u32 s31, s29, 8
    s_mul_i32 s31, s31, 6
    s_mul_i32 s32, s43, 24
    s_add_u32 s31, s31, s32
    s_lshl_b32 s31, s31, 5
    s_and_b32 s32, s42, 63
    s_lshr_b32 s32, s32, 1
    s_add_u32 s31, s31, s32
    s_lshl_b32 s31, s31, 10
    s_lshl_b32 s32, s34, 9
    s_add_u32 s31, s31, s32
    s_add_u32 s31, s31, {VT_P:#x}
    v_and_b32 v5, 1, v3
    v_lshlrev_b32 v5, 15, v5
    v_lshrrev_b32 v6, 1, v3
    v_lshl_add_u32 v5, v6, 8, v5
    v_lshl_add_u32 v5, v2, 4, v5
    """)
    body(True)
    k(f"{k.lab('p1e')}:"); k.st(3)
    signal(k,'1',35)
    k(f"{k.lab('p1x')}:"); k.st(4)

def p3setup(k):
    k(f"""
    s_cmp_ge_u32 s3, 6
    s_cbranch_scc1 {k.lab('p3s')}
    v_mul_u32_u24 v6, 768, v2
    v_lshl_add_u32 v6, v3, 3, v6
    s_mul_i32 s29, s48, {32*768}
    s_lshl_b32 s6, s50, 5
    s_add_u32 s29, s29, s6
    s_add_u32 s30, s29, {16*768}
    """)
    ld(k,XG,2,6,29,srd=12); ld(k,XG+2,2,6,30,srd=12)
    tr_addr(k,U,WOL)
    k(f"s_bitcmp1_b32 s3, 0\ns_cselect_b64 vcc, -1, 0\ns_lshl_b32 s6, s3, 5\nv_cndmask_b32 v{U}, v{U}, v{U+1}, vcc\nv_add_u32 v{U}, s6, v{U}\nv_add_u32 v{U+1}, 36864, v{U}")
    for s in range(12):
        for hh in range(2): k(f"ds_read_b64_tr_b16 {vr(WB+4*s+2*hh,2)}, v{U+s//6} offset:{(s%6)*6144+hh*768}")
    k(f"s_waitcnt lgkmcnt(0)\n{k.lab('p3s')}:")

def p2(k):
    QL=0; PL=24576; VL=57344; ML=155648; SL=157696
    KF=8; SA=56; B2=88; T=120
    k(f"""
    s_lshr_b32 s20, s4, 2
    {MAP2}
    s_lshl_b32 s24, s20, 6
    s_lshl_b32 s6, s23, 2
    s_add_u32 s24, s24, s6
    s_lshr_b32 s6, s3, 1
    s_add_u32 s25, s24, s6
    s_mul_i32 s25, s25, 12
    s_mul_i32 s26, s21, 6
    s_add_u32 s25, s25, s26
    s_and_b32 s6, s3, 1
    s_mul_i32 s6, s6, 3
    s_add_u32 s25, s25, s6
    s_lshl_b32 s25, s25, 10
    s_add_u32 s25, s25, {Q_P:#x}
    s_lshl_b32 s27, s20, 6
    s_lshl_b32 s6, s22, 4
    s_add_u32 s27, s27, s6
    s_lshl_b32 s6, s3, 1
    s_add_u32 s27, s27, s6
    s_mul_i32 s27, s27, 12
    s_add_u32 s27, s27, s26
    s_lshl_b32 s27, s27, 10
    s_add_u32 s27, s27, {K_P:#x}
    s_add_u32 s36, s27, 12288
    s_mul_i32 s28, s20, 24
    s_mul_i32 s6, s21, 12
    s_add_u32 s28, s28, s6
    s_lshl_b32 s28, s28, 5
    s_lshl_b32 s6, s22, 3
    s_add_u32 s28, s28, s6
    s_add_u32 s28, s28, s3
    s_lshl_b32 s28, s28, 10
    s_add_u32 s28, s28, {VT_P:#x}
    s_lshl_b32 s29, s3, 10
    s_add_u32 s29, s29, {VL}
    """)
    poll(k,'2',f"""
    v_bfe_u32 v6, v0, 2, 2
    v_min_u32 v6, 2, v6
    v_bfe_u32 v7, v0, 1, 1
    s_lshl_b32 s6, s22, 1
    v_add_u32 v7, s6, v7
    s_lshr_b32 s6, s23, 1
    v_mov_b32 v5, s6
    v_cmp_eq_u32 vcc, 0, v6
    s_lshl_b32 s6, s20, 9
    s_lshl_b32 s7, s21, 3
    v_cndmask_b32 v7, v7, v5, vcc
    s_add_u32 s6, s6, s7
    v_lshlrev_b32 v7, 6, v7
    v_lshl_add_u32 v7, v6, 4, v7
    v_and_b32 v6, 1, v0
    v_lshl_add_u32 v7, v6, 2, v7
    v_add_u32 v5, s6, v7
    """)
    k.st()
    k("s_mul_i32 s6, s3, 3072\ns_mov_b32 m0, s6\ns_nop 0")
    for i in range(3): dma(k,25,i*1024,SC)
    def ldk(s):
        if s==4: k("s_add_u32 s27, s27, 4096\ns_add_u32 s36, s36, 4096")
        for kb in range(2): ld(k,KF+24*kb+4*s,4,4,(27,36)[kb],(s%4)*1024,sc=SC)
    for s in range(6): ldk(s)
    k("s_waitcnt vmcnt(12)\ns_barrier"); k.st()
    items=[(4,QL+(qb*6+s)*1024) for s in range(6) for qb in range(4)]
    def mf1(i,b):
        s,qb=divmod(i,4)
        if qb==0: k("s_waitcnt vmcnt(10)")
        if qb in (0,2):
            k(f"s_mov_b32 m0, s29\ns_add_u32 s29, s29, 8192"); dma(k,28,0,SC); k("s_add_u32 s28, s28, 32768")
        for kb in range(2): mf(k,SA+8*qb+4*kb,KF+24*kb+4*s,b,s==0)
    gemm_loop(k,items,B2,8,mf1); k.st()
    k(f"v_lshrrev_b32 v5, 4, v4\nv_min_u32 v5, 59, v5\nv_lshlrev_b32 v5, 2, v5\nv_add_u32 v5, 1024, v5\nv_lshlrev_b32 v5, 5, v5\ns_mov_b32 s6, {FL:#x}\nbuffer_load_dword v199, v5, s[8:11], s6 offen sc1")
    k(f"""
    v_and_b32 v5, 63, v0
    v_lshlrev_b32 v5, 5, v5
    v_lshl_add_u32 v5, v1, 2, v5
    v_add_u32 v5, {ML}, v5
    v_lshlrev_b32 v6, 5, v2
    v_add_u32 v6, {ML}, v6
    s_lshl_b32 s6, s3, 10
    s_add_u32 s6, s6, {PL}
    v_add_u32 v7, s6, v4
    """)
    M=KF
    def max8(m,r): k(f"v_max3_f32 v{m}, v{r}, v{r+1}, v{r+2}\nv_max3_f32 v{m}, v{m}, v{r+3}, v{r+4}\nv_max3_f32 v{m}, v{m}, v{r+5}, v{r+6}\nv_max_f32 v{m}, v{m}, v{r+7}")
    for qb in range(4): max8(M+qb,SA+8*qb)
    def treduce(op,addr_off):
        k(f"s_nop 1\nv_permlane32_swap_b32 v{M}, v{M+2}\nv_permlane32_swap_b32 v{M+1}, v{M+3}\ns_nop 1\n{op} v{M}, v{M}, v{M+2}\n{op} v{M+1}, v{M+1}, v{M+3}")
        k(f"s_nop 1\nv_permlane16_swap_b32 v{M}, v{M+1}\ns_nop 1\n{op} v{M}, v{M}, v{M+1}\nds_write_b32 v5, v{M} offset:{addr_off}")
    treduce("v_max_f32",0)
    k("s_waitcnt lgkmcnt(0)\ns_barrier")
    G=KF+8
    for qb in range(4):
        for q in range(2): k(f"ds_read_b128 {vr(G+8*qb+4*q,4)}, v6 offset:{qb*512+16*q}")
    for qb in range(4):
        k(f"s_waitcnt lgkmcnt({6-2*qb})"); max8(T+qb,G+8*qb)
    k("s_mov_b32 s40, 0x3f803f80")
    for qb in range(4):
        r=SA+8*qb
        for j in (0,2,4,6): k(pk('add',r+j,r+j,('nb',T+qb)))
        for j in range(8): k(f"v_exp_f32 v{r+j}, v{r+j}")
        k("s_nop 0")
        for j in range(4): k(f"v_cvt_pk_bf16_f32 v{B2+4*qb+j}, v{r+2*j}, v{r+2*j+1}")
        k(f"ds_write_b128 v7, {vr(B2+4*qb,4)} offset:{qb*8192}")
        k(pk('add',r,r,r+2)); k(pk('add',r+4,r+4,r+6)); k(pk('add',r,r,r+4)); k(f"v_add_f32 v{M+qb}, v{r}, v{r+1}")
    k("s_nop 1")
    treduce("v_add_f32",SL-ML)
    k(f"s_waitcnt vmcnt(0) lgkmcnt(0)\nv_cmp_eq_u32 vcc, 0, v199\nv_mov_b32 v198, v6\ns_nop 3\ns_cbranch_vccz {k.lab('pds')}")
    poll(k,'s',"v_lshrrev_b32 v5, 4, v4\nv_min_u32 v5, 59, v5\nv_lshlrev_b32 v5, 2, v5\nv_add_u32 v5, 1024, v5",bar=False)
    k("v_mov_b32 v6, v198")
    k(f"""
    s_and_b32 s30, s3, 3
    s_lshr_b32 s31, s3, 2
    s_mul_i32 s6, s30, 24576
    s_add_u32 s6, s6, {VL}
    v_add_u32 v5, s6, v4
    s_lshl_b32 s6, s31, 14
    s_add_u32 s6, s6, {PL}
    v_add_u32 v7, s6, v4
    s_lshl_b32 s6, s31, 10
    v_add_u32 v6, s6, v6
    s_cmp_eq_u32 s31, 0
    s_cselect_b64 vcc, -1, 0
    v_cndmask_b32 v{T}, v{T+2}, v{T}, vcc
    v_cndmask_b32 v{T+1}, v{T+3}, v{T+1}, vcc
    """)
    k.st(); k("s_waitcnt vmcnt(0) lgkmcnt(0)\ns_barrier"); k.st()
    for qq in range(2):
        for q in range(2): k(f"ds_read_b128 {vr(G+8*qq+4*q,4)}, v6 offset:{SL-ML+qq*512+16*q}")
    OA=SA; PR=128
    k(f"""
    s_lshl_b32 s6, s31, 1
    s_add_u32 s24, s24, s6
    s_mul_i32 s32, s24, 12288
    s_mul_i32 s6, s22, {ACT:#x}
    s_add_u32 s32, s32, s6
    s_add_u32 s32, s32, {O_P:#x}
    s_mul_i32 s33, s21, 12
    s_mul_i32 s6, s30, 3
    s_add_u32 s33, s33, s6
    s_lshl_b32 s33, s33, 9
    s_add_u32 s32, s32, s33
    v_and_b32 v197, 1, v3
    v_mul_u32_u24 v197, 12288, v197
    v_lshrrev_b32 v6, 1, v3
    v_lshl_add_u32 v197, v6, 8, v197
    v_lshl_add_u32 v197, v2, 4, v197
    """)
    seq=[]
    for ks in range(8): seq+=[('p',0,ks),('p',1,ks),('v',0,ks)]
    seq+=[('v',j,ks) for j in (1,2) for ks in range(8)]
    nv=[0]; reg={}
    def rd(i):
        t,x,ks=seq[i]
        if t=='p': r=PR+32*x+4*ks; a_=7
        else: r=B2+4*(nv[0]%8); nv[0]+=1; a_=5
        reg[i]=r; k(f"ds_read_b128 {vr(r,4)}, v{a_} offset:{x*8192+ks*1024}")
    def oepi(j):
        for qq in range(2):
            r=OA+8*j+4*qq
            for t in range(4): k(f"v_mul_f32 v{r+t}, v{r+t}, v{G+8*qq+1}")
        swap_pack(k,OA+8*j,OA+8*j+4,40+4*j); st4(k,40+4*j,197,32,j*512)
    issued=0
    def fill(i):
        nonlocal issued
        while issued<len(seq) and issued<i+9 and sum(1 for q in range(i,issued+1) if seq[q][0]=='v')<=7:
            rd(issued); issued+=1
    fill(0)
    for i,(t,x,ks) in enumerate(seq):
        if t=='v':
            k(f"s_waitcnt lgkmcnt({issued-i-1})")
            for qq in range(2): mf(k,OA+8*x+4*qq,reg[i],PR+32*qq+4*ks,ks==0)
            if x==0 and ks==1:
                for qq in range(2):
                    r=G+8*qq
                    k(f"v_add_f32 v{r}, v{r}, v{r+1}")
                    for j in range(2,8): k(f"v_add_f32 v{r}, v{r}, v{r+j}")
                    k(f"v_rcp_f32 v{r+1}, v{r}\nv_log_f32 v{r+2}, v{r}")
            if x and ks==3: oepi(x-1)
        fill(i+1)
    k.st()
    k("s_nop 7"); oepi(2)
    k(f"""
    s_lshl_b32 s35, s20, 4
    s_add_u32 s35, s35, s23
    s_lshl_b32 s35, s35, 6
    s_lshl_b32 s6, s21, 4
    s_add_u32 s35, s35, s6
    s_lshl_b32 s6, s22, 2
    s_add_u32 s35, s35, s6
    s_add_u32 s35, s35, 2048
    s_cmp_lg_u32 s30, 0
    s_cbranch_scc1 {k.lab('p2e')}
    v_add_f32 v{T}, v{T}, v{G+2}
    v_add_f32 v{T+1}, v{T+1}, v{G+10}
    v_cmp_eq_u32 vcc, 0, v3
    s_lshl_b32 s6, s22, 1
    s_add_u32 s6, s6, s21
    v_cndmask_b32 v{T}, v{T+1}, v{T}, vcc
    s_lshl_b32 s6, s6, 13
    s_lshl_b32 s7, s24, 6
    s_add_u32 s6, s6, s7
    s_add_u32 s6, s6, {LSE:#x}
    v_lshrrev_b32 v5, 2, v4
    s_mov_b32 exec_hi, 0
    buffer_store_dword v{T}, v5, s[8:11], s6 offen sc1
    s_mov_b64 exec, -1
    {k.lab('p2e')}:
    """)
    signal(k,'2',35); k.st()
    if LOC>1:
        for j in range(3): ld(k,64,4,197,32,j*512,sc=SC)

FC1L=24576
def p4setup(k):
    k(f"""
    {MAP4}
    s_lshl_b32 s53, s51, 3
    s_add_u32 s53, s53, s3
    s_lshr_b32 s25, s51, 3
    s_and_b32 s27, s3, 1
    s_mul_i32 s27, s27, 20480
    s_lshl_b32 s6, s3, 13
    s_add_u32 s6, s6, 40960
    s_cmp_lt_u32 s3, 4
    s_cselect_b32 s27, s6, s27
    s_mul_i32 s28, s52, 73728
    s_add_u32 s28, s28, s27
    s_mul_i32 s29, s25, 0x120000
    s_add_u32 s28, s28, s29
    s_add_u32 s28, s28, {FC1_P:#x}
    s_add_u32 s27, s27, {FC1L}
    """)
    k(f"s_lshr_b32 s6, s48, 5\ns_mul_i32 s31, s6, 9216\ns_lshl_b32 s6, s50, 6\ns_add_u32 s31, s31, s6\ns_add_u32 s31, s31, {768*4}\nv_lshlrev_b32 v7, 4, v3")
    ld(k,XG+4,4,7,31,sc=SC)
    k(f"s_cmp_ge_u32 s3, 4\ns_cbranch_scc1 {k.lab('p4z')}"); f1loop(k,2,'p4l'); k(f"{k.lab('p4z')}:")
def f1loop(k,n,nm):
    k(f"s_mov_b32 s39, {n}\n{k.lab(nm)}:\ns_mov_b32 m0, s27\ns_add_u32 s27, s27, 4096")
    for i in range(4): dma(k,28,i*1024,SC)
    k(f"s_add_u32 s28, s28, 4096\ns_sub_u32 s39, s39, 1\ns_cmp_lg_u32 s39, 0\ns_cbranch_scc1 {k.lab(nm)}")

def p3(k):
    OP=8; LS=56; t=ACC
    k(f"""
    s_lshl_b32 s22, s48, 1
    s_lshr_b32 s6, s3, 2
    s_add_u32 s23, s22, s6
    s_and_b32 s24, s3, 3
    s_mul_i32 s25, s23, 12288
    s_mul_i32 s6, s24, 3072
    s_add_u32 s25, s25, s6
    s_add_u32 s25, s25, {O_P:#x}
    s_lshr_b32 s6, s24, 1
    s_lshl_b32 s26, s6, 13
    s_lshl_b32 s6, s23, 6
    s_add_u32 s26, s26, s6
    s_add_u32 s26, s26, {LSE:#x}
    """)
    poll(k,'3',"s_lshr_b32 s6, s48, 1\ns_lshl_b32 s6, s6, 6\ns_add_u32 s6, s6, 2048\nv_and_b32 v5, 7, v0\nv_lshlrev_b32 v5, 2, v5\nv_add_u32 v5, s6, v5")
    k.st(); k("v_lshlrev_b32 v5, 2, v2")
    for sp in range(4):
        ld(k,LS+sp,1,5,26,sc=SC)
        if sp<3: k("s_add_u32 s26, s26, 16384")
    for i in range(3):
        for sp in range(4):
            k(f"s_add_u32 s6, s25, {sp*ACT:#x}"); ld(k,OP+16*i+4*sp,4,4,6,i*1024,sc=SC)
    k(f"s_waitcnt vmcnt(12)\nv_max3_f32 v{t}, v{LS}, v{LS+1}, v{LS+2}\nv_max_f32 v{t}, v{t}, v{LS+3}")
    for sp in range(4): k(f"v_sub_f32 v{LS+sp}, v{LS+sp}, v{t}")
    for sp in range(4): k(f"v_exp_f32 v{LS+sp}, v{LS+sp}")
    k(f"s_nop 0\nv_add_f32 v{t}, v{LS}, v{LS+1}\nv_add_f32 v{t}, v{t}, v{LS+2}\nv_add_f32 v{t}, v{t}, v{LS+3}\nv_rcp_f32 v{t}, v{t}\ns_mul_i32 s6, s3, 3072")
    for sp in range(4): k(f"v_mul_f32 v{LS+sp}, v{LS+sp}, v{t}")
    k("v_add_u32 v5, s6, v4")
    for i in range(3):
        for sp in range(4):
            k(f"s_waitcnt vmcnt({11-4*i-sp})")
            for j in range(4):
                r=OP+16*i+4*sp+j
                u=60+2*j
                k(f"v_lshlrev_b32 v{u}, 16, v{r}\nv_and_b32 v{u+1}, 0xffff0000, v{r}")
            for j in range(4):
                u=60+2*j
                k(pk('fma',t+2*j,u,('b',LS+sp),t+2*j) if sp else pk('mul',t+2*j,u,('b',LS+sp)))
        for j in range(4): k(f"v_cvt_pk_bf16_f32 v{OP+16*i+j}, v{t+2*j}, v{t+2*j+1}")
        k(f"ds_write_b128 v5, {vr(OP+16*i,4)} offset:{i*1024}")
    k(f"""
    s_lshr_b32 s35, s48, 2
    s_lshl_b32 s35, s35, 6
    s_and_b32 s6, s48, 3
    s_lshl_b32 s6, s6, 4
    s_add_u32 s35, s35, s6
    s_lshl_b32 s6, s49, 2
    s_add_u32 s35, s35, s6
    s_add_u32 s35, s35, 4096
    s_waitcnt lgkmcnt(0)
    s_barrier
    """)
    k.st(); k(f"s_cmp_ge_u32 s3, 6\ns_cbranch_scc1 {k.lab('p3d')}")
    items=[(4,(rb*12+s)*1024) for s in range(12) for rb in range(2)]
    gemm_loop(k,items,OP,12,lambda i,b: mf(k,ACC+4*(i%2),WB+4*(i//2),b,i<2))
    k(f"""
    s_mul_i32 s32, s22, 12288
    s_lshl_b32 s6, s50, 9
    s_add_u32 s32, s32, s6
    s_add_u32 s32, s32, {X1_P:#x}
    v_and_b32 v5, 1, v3
    v_mul_u32_u24 v5, 12288, v5
    v_lshrrev_b32 v6, 1, v3
    v_lshl_add_u32 v5, v6, 8, v5
    v_lshl_add_u32 v5, v2, 4, v5
    """)
    for rb in range(2):
        for j in range(2):
            x=XG+2*rb+j; a=ACC+4*rb+2*j
            k(f"v_lshlrev_b32 v8, 16, v{x}\nv_and_b32 v9, 0xffff0000, v{x}\nv_fma_f32 v{a}, v{a}, v{XG+4+2*j}, v8\nv_fma_f32 v{a+1}, v{a+1}, v{XG+4+2*j+1}, v9")
    swap_pack(k,ACC,ACC+4,12); st4(k,12,5,32)
    k(f"s_waitcnt vmcnt(0)\ns_branch {k.lab('p3e')}\n{k.lab('p3d')}:")
    f1loop(k,5,'p3l')
    k(f"{k.lab('p3e')}:")
    signal(k,'3',35,63); k.st()

def f2addr(q):
    if q<20: return 98304+q*3072
    if q<28: return (q-20)*3072
    return FC1L+(q-28)*3072
RL=FC1L+60*1024
def f2dma(k,q0,q1):
    for q in range(q0,q1,8):
        hi=min(q+8,q1)
        if hi-q<8: k(f"s_cmp_ge_u32 s3, {hi-q}\ns_cbranch_scc1 {k.lab('f2_%d'%q)}")
        k(f"s_add_u32 s6, s57, {(q//2)*1024}\ns_add_u32 s7, s38, {f2addr(q)}")
        for i in range(3): k(f"s_mov_b32 m0, s7\ns_add_u32 s7, s7, 1024\nbuffer_load_dwordx4 v{U+i}, s[8:11], s6 offen sc1 lds")
        if hi-q<8: k(f"{k.lab('f2_%d'%q)}:")
def p5setup(k):
    k(f"""
    s_lshl_b32 s54, s4, 2
    s_and_b32 s6, s5, 3
    s_add_u32 s54, s54, s6
    s_lshr_b32 s55, s5, 2
    s_lshl_b32 s56, s54, 2
    s_and_b32 s6, s3, 3
    s_add_u32 s56, s56, s6
    s_mul_i32 s57, s55, 147456
    s_and_b32 s6, s3, 1
    s_mul_i32 s6, s6, 24576
    s_add_u32 s57, s57, s6
    s_lshr_b32 s6, s3, 1
    s_lshl_b32 s6, s6, 10
    s_add_u32 s57, s57, s6
    s_add_u32 s57, s57, {FC2_P:#x}
    s_mul_i32 s38, s3, 3072
    s_lshr_b32 s25, s51, 3
    s_mul_i32 s30, s25, 12288
    s_mul_i32 s31, s52, 384
    s_add_u32 s30, s30, s31
    s_add_u32 s30, s30, {UV:#x}
    v_cmp_le_u32 vcc, 384, v4
    v_add_u32 v6, {6144-384}, v4
    s_mov_b32 m0, 159744
    v_cndmask_b32 v6, v4, v6, vcc
    s_cmp_lg_u32 s3, 0
    s_cbranch_scc1 {k.lab('uv')}
    buffer_load_dwordx4 v6, s[8:11], s30 offen sc1 lds
    {k.lab('uv')}:
    """)
    for i in range(3): k(f"v_add_u32 v{U+i}, {i*49152}, v4")

def p4(k):
    UU=WB
    k(f"s_mul_i32 s23, s53, 12288\ns_add_u32 s23, s23, {X1_P:#x}")
    poll(k,'4',"s_lshl_b32 s6, s51, 6\ns_add_u32 s6, s6, 4096\nv_lshlrev_b32 v5, 2, v2\nv_add_u32 v5, s6, v5",pw=1,drain=True)
    k.st()
    for s in range(12):
        if s and s%4==0: k("s_add_u32 s23, s23, 4096")
        ld(k,A+4*s,4,4,23,(s%4)*1024,sc=SC)
    k(f"""
    v_add_u32 v6, {FC1L}, v4
    v_add_u32 v7, {FC1L+36864}, v4
    s_mul_i32 s32, s53, 48
    s_mul_i32 s33, s52, 3
    s_add_u32 s32, s32, s33
    s_lshl_b32 s32, s32, 10
    s_add_u32 s32, s32, {G_P:#x}
    v_mov_b32 v86, 1.0
    v_mov_b32 v84, {f2u(-2*math.sqrt(2/math.pi)*math.log2(math.e)*0.044715):#x}
    v_mov_b32 v85, {f2u(-2*math.sqrt(2/math.pi)*math.log2(math.e)):#x}
    s_lshl_b32 s35, s51, 6
    s_lshl_b32 s6, s52, 2
    s_add_u32 s35, s35, s6
    s_add_u32 s35, s35, 5120
    """)
    k("v_lshlrev_b32 v1, 4, v3\nv_add_u32 v1, 159744, v1"); ones(k)
    for cb in range(6): k(f"ds_read_b128 {vr(WB+4*cb,4)}, v1 offset:{cb*64}\nds_read_b128 {vr(WB+24+4*cb,4)}, v1 offset:{384+cb*64}")
    k("s_waitcnt lgkmcnt(0)")
    order=[(s,cb) for s in range(12) for cb in range(4)]+[(s,cb) for s in range(12) for cb in (4,5)]
    items=[((6 if cb<3 else 7),((cb%3)*12+s)*1024) for s,cb in order]
    T=[64+j for j in range(8)]
    def gl(i,P=True):
        R=[ACC+8*i+j for j in range(8)]; L=[]
        E=(0,2,4,6)
        pk=globals()['pk']
        if not P:
            def pk(op,d,*src):
                f=lambda x,h: (f"v{x+h}" if isinstance(x,int) else ("-" if x[0]=='nb' else "")+f"v{x[1]}")
                return "\n".join(f"v_{op}_f32 v{d+h}, "+", ".join(f(x,h) for x in src) for h in (0,1))
        for j in E: L.append(pk('fma',R[j],('nb',S),UU+8*i+j,R[j]))
        for j in E: L.append(pk('fma',R[j],R[j],('b',S+1),UU+24+8*i+j))
        for j in E: L.append(pk('mul',T[j],R[j],R[j]))
        for j in E: L.append(pk('fma',T[j],T[j],('b',84),('b',85)))
        for j in E: L.append(pk('mul',T[j],T[j],R[j]))
        for j in range(8): L.append(f"v_exp_f32 v{T[j]}, v{T[j]}")
        for j in E: L.append(pk('add',T[j],T[j],('b',86)))
        for j in range(8): L.append(f"v_rcp_f32 v{T[j]}, v{T[j]}")
        for j in E: L.append(pk('mul',R[j],R[j],T[j]))
        for j in range(4): L.append(f"v_cvt_pk_bf16_f32 v{72+4*i+j}, v{R[2*j]}, v{R[2*j+1]}")
        L.append(f"buffer_store_dwordx4 {vr(72+4*i,4)}, v4, s[8:11], s32 offen offset:{i*1024} sc1")
        return L
    Q=[l for x in gl(0,False) for l in x.split('\n')]
    def m(i,b):
        s,cb=order[i]
        if cb==0: k(f"s_waitcnt vmcnt({11-s+(3 if s==11 else 0)})")
        mf(k,ACC+4*cb,b,A+4*s,s==0)
        if cb==0: mstat(k,A+4*s,s==0)
        if i==48: mstat_fin(k,S)
        if i in (40,46,54,62): f2dma(k,*{40:(0,8),46:(8,16),54:(16,20),62:(20,28)}[i])
        if i>48:
            for _ in range(4):
                if Q: k(Q.pop(0))
    gemm_loop(k,items,BB,8,m); k.st()
    for l in Q+gl(1)+gl(2): k(l)
    k.st()
    signal(k,'4',35); k.st()
    if LOC>1:
        for j in range(3): ld(k,104,4,4,32,j*1024,sc=SC)
    f2dma(k,28,48)

def p5(k):
    X5=WB
    k(f"""
    s_lshr_b32 s23, s3, 2
    s_mul_i32 s25, s56, 49152
    s_mul_i32 s6, s23, 24576
    s_add_u32 s25, s25, s6
    s_add_u32 s25, s25, {G_P:#x}
    s_mul_i32 s29, s56, 12288
    s_mul_i32 s6, s55, 1536
    s_add_u32 s29, s29, s6
    s_add_u32 s29, s29, {X1_P:#x}
    s_lshr_b32 s6, s54, 4
    s_mul_i32 s30, s6, 9216
    s_mul_i32 s6, s55, 192
    s_add_u32 s30, s30, s6
    s_add_u32 s30, s30, {1920*4}
    """)
    poll(k,'5',"s_lshr_b32 s6, s54, 1\ns_lshl_b32 s6, s6, 6\ns_add_u32 s6, s6, 5120\nv_lshlrev_b32 v5, 2, v2\nv_add_u32 v5, s6, v5")
    k.st()
    def lda(s):
        if s and s%4==0: k("s_add_u32 s25, s25, 4096")
        ld(k,A+4*s,4,4,25,(s%4)*1024,sc=SC)
    for s in range(12): lda(s)
    k(f"""
    s_mul_i32 s6, s23, 3072
    v_add_u32 v5, s6, v4
    v_add_u32 v6, 61440, v5
    v_add_u32 v7, 61440, v6
    v_lshlrev_b32 v1, 4, v3
    v_lshrrev_b32 v{S}, 1, v3
    v_lshlrev_b32 v{S}, 8, v{S}
    v_lshl_add_u32 v{S}, v2, 4, v{S}
    v_and_b32 v{S+1}, 1, v3
    v_lshl_add_u32 v{S}, v{S+1}, 3, v{S}
    """)
    items=[(5+f2addr(2*(n//3))//61440,f2addr(2*(n//3))%61440+(n%3)*1024) for n in range(72)]
    def m(i,b):
        s,cb=divmod(i,3)
        if cb==0:
            k(f"s_waitcnt vmcnt({11 if s<12 else 23-s+6})")
            if s<12: lda(12+s)
            if s==8: k('s_barrier')
            if s==11:
                for c in range(3):
                    ld(k,X5+2*c,2,S,29,c*512,sc=SC); ld(k,X5+8+4*c,4,1,30,c*64,sc=SC)
        mf(k,ACC+4*cb,b,A+4*s,s==0)
    gemm_loop(k,items,BB,8,m); k.st()
    k(f"""
    s_and_b32 s6, s3, 3
    s_mul_i32 s6, s6, 3072
    s_add_u32 s6, s6, {RL}
    v_add_u32 v5, s6, v4
    s_cmp_eq_u32 s23, 0
    s_cbranch_scc1 {k.lab('lo')}
    s_nop 4
    """)
    for cb in range(3): k(f"ds_write_b128 v5, {vr(ACC+4*cb,4)} offset:{cb*1024}")
    k(f"s_waitcnt lgkmcnt(0)\ns_barrier\ns_endpgm\n{k.lab('lo')}:")
    k(f"v_mul_u32_u24 v6, 768, v2\nv_lshl_add_u32 v6, v3, 3, v6\ns_mul_i32 s31, s56, {16*768}\ns_mul_i32 s6, s55, 96\ns_add_u32 s31, s31, s6\ns_barrier")
    for cb in range(3): k(f"ds_read_b128 {vr(BB+4*cb,4)}, v5 offset:{cb*1024}")
    k("s_waitcnt vmcnt(0) lgkmcnt(0)")
    for cb in range(3):
        for t in range(4): k(f"v_add_f32 v{ACC+4*cb+t}, v{ACC+4*cb+t}, v{BB+4*cb+t}")
        for j in range(2):
            x=X5+2*cb+j
            a_=ACC+4*cb+2*j
            k(f"v_lshlrev_b32 v8, 16, v{x}\nv_and_b32 v9, 0xffff0000, v{x}")
            k(f"v_fma_f32 v{a_}, v{a_}, v{X5+8+4*cb+2*j}, v8\nv_fma_f32 v{a_+1}, v{a_+1}, v{X5+8+4*cb+2*j+1}, v9")
        if cb==1:
            k("v_mul_u32_u24 v7, 768, v2\nv_and_b32 v8, 1, v3\nv_lshl_add_u32 v7, v8, 5, v7\nv_lshrrev_b32 v8, 1, v3\nv_lshl_add_u32 v7, v8, 4, v7")
            swap_pack(k,ACC,ACC+4,12); k("buffer_store_dwordx4 v[12:15], v7, s[44:47], s31 offen sc1")
    k(f"v_cvt_pk_bf16_f32 v16, v{ACC+8}, v{ACC+9}\nv_cvt_pk_bf16_f32 v17, v{ACC+10}, v{ACC+11}\nbuffer_store_dwordx2 v[16:17], v6, s[44:47], s31 offen offset:64 sc1")

def km():
    k=K(NAME,256,512,163840,256,sgpr=102)
    k(f"s_cmp_ge_u32 s2, 256\ns_cbranch_scc1 {k.lab('end')}")
    k.srds([('ws',8),('x',12),('fc1',16),('wo',20),('wqkv',24),('c',28),('wmod',32),('out',44),('dbg',96)])
    k("v_lshrrev_b32 v1, 6, v0\nv_and_b32 v2, 15, v0\nv_readfirstlane_b32 s3, v1\nv_bfe_u32 v3, v0, 4, 2\nv_and_b32 v4, 63, v0\nv_lshlrev_b32 v4, 4, v4\ns_and_b32 s4, s2, 7\ns_lshr_b32 s5, s2, 3")
    p1(k); p3setup(k); p2(k); p4setup(k); p5setup(k); p3(k); p4(k); p5(k)
    k(f"{k.lab('end')}:\ns_endpgm")
    return k
```

```python
from common import *
from k14 import f2u, stats, stats_fin
import math, os
SC=" sc1"
SLP=int(os.environ.get('SLP','3'))
NAME='standalone__dit_block__diffusion_kernel'
def mf(k,c,a,b,first): k(f"v_mfma_f32_16x16x32_bf16 {vr(c,4)}, {vr(a,4)}, {vr(b,4)}, {0 if first else vr(c,4)}")
def ld(k,dst,n,voff,soff,off=0,srd=8,sc=""):
    w={1:"dword",2:"dwordx2",4:"dwordx4"}[n]
    k(f"buffer_load_{w} {vr(dst,n)}, v{voff}, s[{srd}:{srd+3}], s{soff} offen"+(f" offset:{off}" if off else "")+sc)
def dma(k,soff,off=0,sc=""): k(f"buffer_load_dwordx4 v4, s[8:11], s{soff} offen"+(f" offset:{off}" if off else "")+sc+" lds")
def st4(k,src,voff,soff,off=0): k(f"buffer_store_dwordx4 {vr(src,4)}, v{voff}, s[8:11], s{soff} offen"+(f" offset:{off}" if off else "")+SC)

def signal(k,name,soff,n=0):
    k(f"s_waitcnt vmcnt({n})\ns_barrier\ns_cmp_lg_u32 s3, 0\ns_cbranch_scc1 {k.lab('sg'+name)}")
    k(f"v_mov_b32 v5, 0\nv_mov_b32 v6, 1\ns_lshl_b32 s{soff}, s{soff}, 5\ns_add_u32 s{soff}, s{soff}, {FL:#x}\ns_mov_b64 exec, 1\nbuffer_store_dword v6, v5, s[8:11], s{soff} offen sc1\ns_mov_b64 exec, -1")
    k(f"{k.lab('sg'+name)}:")
def poll(k,name,setup,pw=7,drain=False,bar=True):
    k(f"s_cmp_lg_u32 s3, {pw}\ns_cbranch_scc1 {k.lab('pd'+name)}")
    k(setup)
    k(f"v_lshlrev_b32 v5, 5, v5\ns_mov_b32 s6, {FL:#x}\ns_mov_b32 s7, 0\n{k.lab('pl'+name)}:")
    k(f"buffer_load_dword v6, v5, s[8:11], s6 offen sc1\ns_waitcnt vmcnt(0)\nv_cmp_eq_u32 vcc, 0, v6\ns_add_u32 s7, s7, 1\ns_cmp_ge_u32 s7, 0x10000\ns_cbranch_scc1 {k.lab('pd'+name)}\ns_nop 2")
    k(f"s_cbranch_vccz {k.lab('pd'+name)}\ns_sleep {SLP}\ns_branch {k.lab('pl'+name)}\n{k.lab('pd'+name)}:")
    if drain: k("s_waitcnt vmcnt(0)")
    if bar: k("s_barrier")
def swap_pack(k,X,Y,D):
    k(f"v_cvt_pk_bf16_f32 v{D}, v{X}, v{X+1}\nv_cvt_pk_bf16_f32 v{D+1}, v{X+2}, v{X+3}\nv_cvt_pk_bf16_f32 v{D+2}, v{Y}, v{Y+1}\nv_cvt_pk_bf16_f32 v{D+3}, v{Y+2}, v{Y+3}")
    k(f"s_nop 1\nv_permlane16_swap_b32 v{D}, v{D+2}\nv_permlane16_swap_b32 v{D+1}, v{D+3}\ns_nop 0")

ON=192; SM=184; GR=188
def ones(k):
    for j in range(4): k(f"v_mov_b32 v{ON+j}, 0x3f803f80")
def mstat(k,a,first): mf(k,SM,ON,a,first); mf(k,GR,a,a,first)
def mstat_fin(k,S):
    k(f"""
    v_and_b32 v{S+2}, 1, v2
    v_cmp_eq_u32 vcc, 0, v{S+2}
    v_and_b32 v{S+2}, 2, v2
    v_lshrrev_b32 v{S+3}, 2, v2
    v_cndmask_b32 v{GR}, v{GR+1}, v{GR}, vcc
    v_cndmask_b32 v{GR+2}, v{GR+3}, v{GR+2}, vcc
    v_cmp_eq_u32 vcc, 0, v{S+2}
    v_mul_f32 v{S}, {f2u(1/384):#x}, v{SM}
    s_nop 0
    v_cndmask_b32 v{GR}, v{GR+2}, v{GR}, vcc
    v_cmp_eq_u32 vcc, v3, v{S+3}
    s_nop 1
    v_cndmask_b32 v{S+1}, 0, v{GR}, vcc
    """)
    xreduce(k,[S+1],[S+2],"v_add_f32")
    k(f"v_mul_f32 v{S+1}, {f2u(1/384):#x}, v{S+1}\nv_fma_f32 v{S+1}, -v{S}, v{S}, v{S+1}\nv_max_f32 v{S+1}, 0, v{S+1}\nv_add_f32 v{S+1}, {f2u(1e-5):#x}, v{S+1}\nv_rsq_f32 v{S+1}, v{S+1}\ns_nop 0")
def pk(op,d,*src):
    o=[];lo=[];hi=[];ng=[]
    for x in src:
        if isinstance(x,int): assert x%2==0; o.append(vr(x,2)); lo.append(0); hi.append(1); ng.append(0)
        else: o.append(vr(x[1]&~1,2)); lo.append(x[1]&1); hi.append(x[1]&1); ng.append(int(x[0]=='nb'))
    f=lambda l:"["+",".join(map(str,l))+"]"
    assert d%2==0
    return f"v_pk_{op}_f32 {vr(d,2)}, "+", ".join(o)+f" op_sel:{f(lo)} op_sel_hi:{f(hi)}"+(f" neg_lo:{f(ng)} neg_hi:{f(ng)}" if any(ng) else "")
A=8; ACC=104; BB=128; S=160; U=168; WB=200; XG=248

LOC=int(os.environ.get('LOC','1'))
MAP2=("s_bfe_u32 s21, s5, 0x10002\ns_lshr_b32 s22, s5, 3\ns_and_b32 s23, s4, 3\ns_lshl_b32 s23, s23, 2\ns_and_b32 s6, s5, 3\ns_add_u32 s23, s23, s6" if LOC else
      "s_bfe_u32 s21, s4, 0x10001\ns_and_b32 s22, s4, 1\ns_lshl_b32 s22, s22, 1\ns_and_b32 s6, s5, 1\ns_add_u32 s22, s22, s6\ns_lshr_b32 s23, s5, 1")
MAP4=("s_lshl_b32 s51, s4, 1\ns_and_b32 s6, s5, 1\ns_add_u32 s51, s51, s6\ns_lshr_b32 s52, s5, 1" if LOC else
      "s_lshr_b32 s51, s4, 1\ns_lshl_b32 s51, s51, 2\ns_and_b32 s6, s5, 3\ns_add_u32 s51, s51, s6\ns_and_b32 s52, s4, 1\ns_lshl_b32 s52, s52, 3\ns_lshr_b32 s6, s5, 2\ns_add_u32 s52, s52, s6")
WOL=77824
def tr_loop(k,items,breg0,nbuf,mfn,hoff):
    n=len(items)
    def rd(i):
        a,o=items[i]; r=breg0+4*(i%nbuf)
        k(f"ds_read_b64_tr_b16 {vr(r,2)}, v{a} offset:{o}\nds_read_b64_tr_b16 {vr(r+2,2)}, v{a} offset:{o+hoff}")
    pre=min(nbuf-1,n)
    for i in range(pre): rd(i)
    issued=pre
    for i in range(n):
        k(f"s_waitcnt lgkmcnt({2*(issued-i-1)})")
        mfn(i, breg0+4*(i%nbuf))
        if issued<n: rd(issued); issued+=1
def chunk_offs(k,dst,per,stride,swz,t):
    k(f"s_mov_b32 s6, {(2**32+per-1)//per:#x}\ns_mov_b32 s7, {stride}")
    for i in range(3):
        d=dst+i
        k(f"v_lshrrev_b32 v{t}, 4, v4\nv_add_u32 v{t}, {64*i}, v{t}\nv_mul_hi_u32 v{d}, v{t}, s6\nv_mul_u32_u24 v{t+1}, {per}, v{d}\nv_sub_u32 v{t}, v{t}, v{t+1}")
        if swz: k(f"v_lshrrev_b32 v{t+1}, 2, v{d}\nv_and_b32 v{t+1}, 2, v{t+1}\nv_xor_b32 v{t}, v{t}, v{t+1}")
        k(f"v_mul_lo_u32 v{d}, v{d}, s7\nv_lshl_add_u32 v{d}, v{t}, 4, v{d}")
def w_dma(k,srd,vo,sl,sg,stride):
    for g in range(3):
        for i in range(3):
            k(f"s_mov_b32 m0, s{sl}\ns_add_u32 s{sl}, s{sl}, 1024\nbuffer_load_dwordx4 v{vo+i}, s[{srd}:{srd+3}], s{sg} offen lds")
        k(f"s_add_u32 s{sg}, s{sg}, {16*stride}")
def tr_addr(k,d,base):
    k(f"v_lshrrev_b32 v{d}, 2, v2\nv_lshl_add_u32 v{d}, v3, 3, v{d}\nv_mul_u32_u24 v{d}, 192, v{d}\nv_and_b32 v{d+1}, 3, v2\nv_lshl_add_u32 v{d}, v{d+1}, 3, v{d}\nv_add_u32 v{d}, {base}, v{d}")
    k(f"v_and_b32 v{d+2}, 1, v3\nv_lshlrev_b32 v{d+2}, 5, v{d+2}\nv_sub_u32 v{d+1}, v{d}, v{d+2}\nv_add_u32 v{d}, v{d}, v{d+2}\nv_add_u32 v{d+2}, 36864, v{d}\nv_add_u32 v{d+3}, 36864, v{d+1}")
def wo_dma(k,U=U,setup_only=False):
    chunk_offs(k,U,12,768,True,U+3)
    k(f"s_mul_i32 s36, s3, 9216\ns_add_u32 s36, s36, {WOL}\ns_mul_i32 s37, s3, {48*768}\ns_mul_i32 s6, s49, 192\ns_add_u32 s37, s37, s6")
    if not setup_only: w_dma(k,20,U,36,37,768)
def modpoll(k,name,sl=SLP,both=False):
    ex='v_and_b32 v6, 1, v3\nv_lshlrev_b32 v5, 2, v6\n' if both else ''
    k(f"s_cmp_lg_u32 s3, 7\ns_cbranch_scc1 {k.lab('pd'+name)}\nv_mov_b32 v5, 0\n{ex}s_mov_b32 s7, 0\n{k.lab('pl'+name)}:")
    k(f"buffer_load_dword v6, v5, s[96:99], 0 offen sc1\ns_waitcnt vmcnt(0)\nv_cmp_eq_u32 vcc, 0, v6\ns_add_u32 s7, s7, 1\ns_cmp_ge_u32 s7, 0x10000\ns_cbranch_scc1 {k.lab('pd'+name)}\ns_nop 2")
    k(f"s_cbranch_vccz {k.lab('pd'+name)}\ns_sleep {sl}\ns_branch {k.lab('pl'+name)}\n{k.lab('pd'+name)}:\ns_barrier")

def touch(k,lst,name):
    k(f"s_sub_u32 s6, s2, 64\ns_lshl_b32 s6, s6, 1\ns_and_b32 s7, s3, 1\ns_add_u32 s6, s6, s7\ns_lshl_b32 s6, s6, 12\nv_lshlrev_b32 v7, 2, v4\ns_lshr_b32 s7, s3, 1")
    for i,srd in enumerate(lst):
        k(f"s_cmp_lg_u32 s7, {i}\ns_cbranch_scc1 {k.lab('t%s%d'%(name,i))}\nbuffer_load_dword v199, v7, s[{srd}:{srd+3}], s6 offen\n{k.lab('t%s%d'%(name,i))}:")
def pmod(k):
    k("""
    v_and_b32 v8, 7, v0
    v_lshrrev_b32 v9, 3, v0
    v_mul_u32_u24 v10, 27648, v9
    v_lshl_add_u32 v10, v8, 4, v10
    v_mul_u32_u24 v11, 12, v9
    s_lshl_b32 s7, s2, 7
    """)
    for b in range(2): k(f"buffer_load_dwordx3 v[{80+4*b}:{82+4*b}], v11, s[28:31], 0 offen offset:{b*768}")
    for i in range(6):
        k(f"buffer_load_dwordx4 {vr(16+4*i,4)}, v10, s[32:35], s7 offen")
        if i<5: k(f"s_add_u32 s7, s7, 4608")
    k("s_waitcnt vmcnt(6)"); k.st(106)
    for r in range(40,52):
        src=80+4*((r-40)//6)+((r-40)%6)//2
        k(f"v_and_b32 v{r}, 0xffff0000, v{src}" if r%2 else f"v_lshlrev_b32 v{r}, 16, v{src}")
    for r in range(40,52): k(f"v_mul_f32 v{r+12}, 0xbfb8aa3b, v{r}\nv_exp_f32 v{r+12}, v{r+12}")
    for r in range(40,52): k(f"v_add_f32 v{r+12}, 1.0, v{r+12}\nv_rcp_f32 v{r+12}, v{r+12}")
    for r in range(40,52): k(f"v_mul_f32 v{r}, v{r}, v{r+12}\nv_cvt_pk_bf16_f32 v{r}, v{r}, v{r}\nv_lshlrev_b32 v{r}, 16, v{r}")
    AC=[64,72]
    for i in range(6):
        k(f"s_waitcnt vmcnt({5-i})")
        for j in range(4):
            k(f"v_lshlrev_b32 v5, 16, v{16+4*i+j}\nv_and_b32 v6, 0xffff0000, v{16+4*i+j}")
            op="v_fmac_f32" if i else "v_mul_f32"
            for b in range(2): k(f"{op} v{AC[b]+2*j}, v5, v{40+b*6+i}\n{op} v{AC[b]+2*j+1}, v6, v{40+b*6+i}")
    k.st(107)
    k("s_nop 1")
    for r in range(64,80): k(f"v_add_f32_dpp v{r}, v{r}, v{r} row_ror:8 row_mask:0xf bank_mask:0xf")
    k("s_nop 1")
    for j in range(8): k(f"v_permlane32_swap_b32 v{64+j}, v{72+j}")
    for j in range(8): k(f"v_add_f32 v{64+j}, v{64+j}, v{72+j}")
    k("s_nop 1")
    for j in range(4): k(f"v_permlane16_swap_b32 v{64+j}, v{68+j}")
    k("v_lshlrev_b32 v5, 9, v1\nv_lshl_add_u32 v5, v8, 6, v5\nv_lshl_add_u32 v5, v3, 4, v5")
    for j in range(4): k(f"v_add_f32 v{64+j}, v{64+j}, v{68+j}")
    k("ds_write_b128 v5, v[64:67]")
    k(f"s_waitcnt lgkmcnt(0)\ns_barrier\ns_cmp_ge_u32 s3, 2\ns_cbranch_scc1 {k.lab('m2')}\nv_lshlrev_b32 v5, 2, v0")
    for p in range(8): k(f"ds_read_b32 v{16+p}, v5 offset:{p*512}")
    k("s_waitcnt lgkmcnt(0)")
    for st in (4,2,1):
        for p in range(st): k(f"v_add_f32 v{16+p}, v{16+p}, v{16+p+st}")
    k(f"""
    v_cvt_pk_bf16_f32 v8, v16, v16
    v_lshlrev_b32 v8, 16, v8
    s_sub_u32 s7, s2, 6
    s_cmp_lt_u32 s7, 6
    s_cselect_b32 s6, 1.0, 0
    s_sub_u32 s7, s2, 24
    s_cmp_lt_u32 s7, 6
    s_cselect_b32 s6, 1.0, s6
    v_add_f32 v8, s6, v8
    v_cvt_pk_bf16_f32 v8, v8, v8
    v_lshlrev_b32 v8, 16, v8
    v_lshrrev_b32 v5, 4, v0
    v_lshlrev_b32 v5, 5, v5
    v_and_b32 v6, 7, v0
    v_lshl_add_u32 v5, v6, 2, v5
    v_bfe_u32 v6, v0, 3, 1
    v_mul_u32_u24 v6, 9216, v6
    v_add_u32 v5, v5, v6
    s_lshl_b32 s6, s2, 8
    buffer_store_dword v8, v5, s[8:11], s6 offen sc1
    {k.lab('m2')}:
    """); k.st(108); k(f"""
    s_waitcnt vmcnt(0)
    s_barrier
    """); k.st(109); k(f"""
    s_cmp_lg_u32 s3, 0
    s_cbranch_scc1 {k.lab('m3')}
    s_sub_u32 s7, s2, 18
    s_cmp_lt_u32 s7, 12
    s_cselect_b32 s6, 4, 0
    s_cselect_b32 s24, 11, 15
    s_cbranch_scc1 {k.lab('m5')}
    s_sub_u32 s7, s2, 12
    s_cmp_lt_u32 s7, 48
    s_cbranch_scc1 {k.lab('m3')}
    {k.lab('m5')}:
    v_mov_b32 v5, 0
    v_mov_b32 v6, 1
    s_mov_b64 exec, 1
    buffer_atomic_add v6, v5, s[96:99], s6 offen offset:128 sc0 sc1
    s_waitcnt vmcnt(0)
    v_readfirstlane_b32 s7, v6
    s_nop 3
    s_cmp_lg_u32 s7, s24
    s_cbranch_scc1 {k.lab('m4')}
    buffer_store_dword v6, v5, s[96:99], s6 offen sc1
    {k.lab('m4')}:
    s_mov_b64 exec, -1
    {k.lab('m3')}:
    """)

def pfc1(k):
    F=8; PQ=32; O=128; T=152
    k(f"""
    s_getpc_b64 s[52:53]
    {k.lab('pc')}:
    s_mov_b32 s54, {k.lab('end')}-{k.lab('pc')}
    s_mov_b32 s55, 0x20000
    s_lshl_b32 s6, s3, 13
    v_lshlrev_b32 v7, 3, v4
    buffer_load_dword v199, v7, s[52:55], s6 offen
    s_cmp_lt_u32 s3, 7
    s_cbranch_scc1 {k.lab('nt')}
    v_lshlrev_b32 v7, 15, v4
    buffer_load_dword v198, v7, s[96:99], 0 offen sc1
    buffer_load_dword v197, v7, s[8:11], 0 offen sc1
    buffer_load_dword v196, v7, s[44:47], 0 offen sc1
    {k.lab('nt')}:
    s_sub_u32 s24, s2, 36
    v_lshrrev_b32 v5, 7, v4
    v_mul_u32_u24 v5, 3072, v5
    v_and_b32 v6, 0x70, v4
    v_add_u32 v5, v5, v6
    s_mul_i32 s25, s3, 6144
    s_mul_i32 s26, s3, {48*3072}
    s_lshl_b32 s6, s24, 7
    s_add_u32 s26, s26, s6
    """)
    for i in range(6): k(f"s_mov_b32 m0, s25\ns_add_u32 s25, s25, 1024\nbuffer_load_dwordx4 v5, s[16:19], s26 offen lds\ns_add_u32 s26, s26, {8*3072}")
    wo_dma(k)
    k(f"""
    s_lshr_b32 s27, s3, 1
    s_and_b32 s25, s3, 1
    v_lshrrev_b32 v7, 2, v2
    v_lshl_add_u32 v7, v3, 3, v7
    v_lshlrev_b32 v7, 7, v7
    v_and_b32 v6, 3, v2
    v_lshl_add_u32 v7, v6, 3, v7
    s_mul_i32 s6, s25, 24576
    s_lshl_b32 s7, s27, 5
    s_add_u32 s6, s6, s7
    v_add_u32 v7, s6, v7
    s_lshl_b32 s6, s24, 2
    s_add_u32 s27, s27, s6
    s_min_u32 s6, s3, 5
    s_lshl_b32 s37, s6, 10
    s_cmp_ge_u32 s6, 3
    s_cselect_b32 s26, {9216-3072}, 0
    s_add_u32 s26, s26, s37
    s_add_u32 s26, s26, {1152*4:#x}
    s_add_u32 s37, s37, 53248
    s_mul_i32 s36, s27, 12288
    s_mul_i32 s6, s25, 6144
    s_add_u32 s36, s36, s6
    s_add_u32 s36, s36, {FC1_P:#x}
    s_mov_b32 s40, 0x3f803f80
    s_waitcnt vmcnt(0)
    """)
    ones(k); modpoll(k,'f',6,True)
    k("s_mov_b32 m0, s37\ns_nop 0"); dma(k,26,0,SC)
    for i in range(6): k(f"ds_read_b64_tr_b16 {vr(F+4*i,2)}, v7 offset:{i*4096}\nds_read_b64_tr_b16 {vr(F+4*i+2,2)}, v7 offset:{i*4096+512}")
    k("v_lshlrev_b32 v6, 5, v3\ns_mul_i32 s6, s25, 768\ns_add_u32 s6, s6, 53248\nv_add_u32 v6, s6, v6\ns_waitcnt vmcnt(0) lgkmcnt(0)\ns_barrier")
    for b in range(2):
        k("s_add_u32 s37, s36, 4096")
        u=S+2*b
        for i in range(6):
            if i%3==0:
                for ii in range(i,i+3):
                    for q in range(2):
                        k(f"ds_read_b128 {vr(PQ+16*ii+4*q,4)}, v6 offset:{b*3072+ii*128+16*q}\nds_read_b128 {vr(PQ+16*ii+8+4*q,4)}, v6 offset:{b*3072+1536+ii*128+16*q}")
            k(f"s_waitcnt lgkmcnt({8-4*(i%3)})")
            for j in range(4): k(f"v_lshlrev_b32 v{T+2*j}, 16, v{F+4*i+j}\nv_and_b32 v{T+2*j+1}, 0xffff0000, v{F+4*i+j}\nv_cvt_pk_bf16_f32 v{PQ+16*i+j}, v{PQ+16*i+2*j}, v{PQ+16*i+2*j+1}")
            for j in range(8): k(f"v_mul_f32 v{T+j}, v{T+j}, v{PQ+16*i+8+j}")
            mf(k,200+8*b+4,PQ+16*i,F+4*i,i==0)
            for j in range(4): k(f"v_cvt_pk_bf16_f32 v{O+4*i+j}, v{T+2*j}, v{T+2*j+1}")
            k("s_nop 1"); mf(k,200+8*b,ON,O+4*i,i==0)
            st4(k,O+4*i,4,36 if i<4 else 37,(i%4)*1024)
        if b==0: k("s_add_u32 s36, s36, 0x120000")
    k("s_nop 7")
    for j in range(4): k(f"v_mov_b32 v{S+j}, v{200+4*j}")
    k(f"""
    s_lshr_b32 s6, s3, 1
    s_lshl_b32 s6, s6, 10
    s_add_u32 s6, s6, 49152
    v_add_u32 v5, s6, v4
    s_lshl_b32 s35, s24, 2
    s_add_u32 s35, s35, 1024
    s_cmp_eq_u32 s25, 0
    s_cbranch_scc1 {k.lab('f1')}
    ds_write_b128 v5, {vr(S,4)}
    s_waitcnt lgkmcnt(0)
    s_barrier
    s_branch {k.lab('p1e')}
    {k.lab('f1')}:
    s_barrier
    ds_read_b128 {vr(T,4)}, v5
    s_lshl_b32 s6, s27, 6
    s_add_u32 s6, s6, {UV:#x}
    v_lshlrev_b32 v5, 2, v2
    s_waitcnt lgkmcnt(0)
    """)
    for j in range(4):
        k(f"v_add_f32 v{S+j}, v{S+j}, v{T+j}\nbuffer_store_dword v{S+j}, v5, s[8:11], s6 offen sc1\ns_add_u32 s6, s6, 6144")
    k(f"s_branch {k.lab('p1e')}")

def p1(k):
    k(f"""
    s_lshl_b32 s48, s4, 3
    s_and_b32 s6, s5, 7
    s_add_u32 s48, s48, s6
    s_lshr_b32 s49, s5, 3
    s_mul_i32 s50, s49, 6
    s_add_u32 s50, s50, s3
    s_waitcnt lgkmcnt(0)
    s_cmp_lt_u32 s2, 36
    s_cbranch_scc1 {k.lab('mod')}
    s_cmp_ge_u32 s2, 64
    s_cbranch_scc1 {k.lab('gemm')}
    s_cmp_lt_u32 s2, 36
    s_cbranch_scc1 {k.lab('mod')}
    s_cmp_lt_u32 s2, 60
    s_cbranch_scc1 {k.lab('fc1')}
    v_mov_b32 v12, 0
    v_lshlrev_b32 v5, 7, v0
    s_sub_u32 s6, s2, 60
    s_lshl_b32 s6, s6, 16
    s_add_u32 s6, s6, {FL:#x}
    """)
    k("buffer_store_dword v12, v5, s[8:11], s6 offen sc1")
    k(f"""
    s_branch {k.lab('m2')}
    {k.lab('mod')}:
    """)
    k.st(105); pmod(k)
    k(f"{k.lab('idle')}:"); modpoll(k,'i',16); k.st(114)
    k(f"s_cmp_ge_u32 s2, 36\ns_cbranch_scc1 {k.lab('i2')}\ns_lshl_b32 s35, s2, 2\ns_add_u32 s35, s35, 1120")
    k(f"""
    s_load_dwordx2 s[16:17], s[0:1], {KOFF['fc2']}
    s_mul_hi_u32 s24, s2, 0x2aaaaaab
    s_mul_i32 s6, s24, 6
    s_sub_u32 s25, s2, s6
    s_lshl_b32 s24, s24, 3
    s_add_u32 s24, s24, s3
    s_mul_i32 s26, s24, {32*768}
    s_lshl_b32 s6, s25, 7
    s_add_u32 s26, s26, s6
    s_lshl_b32 s27, s3, 12
    s_add_u32 s27, s27, 8192
    v_lshrrev_b32 v5, 7, v4
    v_mul_u32_u24 v5, 768, v5
    v_and_b32 v6, 0x70, v4
    v_add_u32 v5, v5, v6
    v_lshrrev_b32 v7, 2, v2
    v_lshl_add_u32 v7, v3, 2, v7
    v_lshlrev_b32 v7, 7, v7
    v_and_b32 v6, 3, v2
    v_lshl_add_u32 v7, v6, 3, v7
    v_add_u32 v7, s27, v7
    s_waitcnt lgkmcnt(0)
    """)
    for i in range(4): k(f"s_mov_b32 m0, s27\ns_add_u32 s27, s27, 1024\nbuffer_load_dwordx4 v5, s[16:19], s26 offen lds\ns_add_u32 s26, s26, {8*768}")
    k(f"s_mul_i32 s26, s25, {4*49152}\ns_lshl_b32 s6, s24, 10\ns_add_u32 s26, s26, s6\ns_add_u32 s26, s26, {FC2_P:#x}\ns_waitcnt vmcnt(0)")
    for c in range(4): k(f"ds_read_b64_tr_b16 {vr(8+4*c,2)}, v7 offset:{c*32}\nds_read_b64_tr_b16 {vr(10+4*c,2)}, v7 offset:{c*32+2048}")
    k("s_waitcnt lgkmcnt(0)")
    for c in range(4): st4(k,8+4*c,4,26); k("s_add_u32 s26, s26, 49152")
    signal(k,'m',35)
    k(f"{k.lab('i2')}:"); wo_dma(k); k("s_waitcnt vmcnt(0)\ns_barrier"); k(f"s_branch {k.lab('p1x')}\n{k.lab('fc1')}:")
    pfc1(k)
    k(f"""
    {k.lab('gemm')}:
    """)
    if not os.environ.get('NOTOUCH'): touch(k,[24,20],'a')
    k(f"""
    s_sub_u32 s41, s5, 8
    s_lshl_b32 s28, s4, 1
    s_and_b32 s6, s41, 1
    s_add_u32 s28, s28, s6
    s_lshr_b32 s29, s41, 1
    s_lshl_b32 s42, s28, 3
    s_add_u32 s42, s42, s3
    s_mul_i32 s30, s42, 12288
    """)
    XL=61440; XO=U+4
    k(f"s_mov_b32 s6, {(2**32+47)//48:#x}")
    for i in range(3):
        d=XO+i; t=XO+3
        k(f"v_lshrrev_b32 v{t}, 4, v4\nv_add_u32 v{t}, {64*i}, v{t}\nv_mul_hi_u32 v{d}, v{t}, s6\nv_mul_u32_u24 v{t+1}, 48, v{d}\nv_sub_u32 v{t}, v{t}, v{t+1}\nv_xor_b32 v{t}, v{t}, v{d}\nv_mul_u32_u24 v{d}, 768, v{d}\nv_lshl_add_u32 v{d}, v{t}, 4, v{d}")
    k(f"s_mul_i32 s31, s3, 12288\ns_add_u32 s31, s31, {XL}\nv_mul_u32_u24 v7, 768, v2\nv_add_u32 v7, s31, v7\nv_xor_b32 v6, v2, v3")
    k.st(110)
    for m_ in range(4):
        for i in range(3):
            k(f"s_mov_b32 m0, s31\ns_add_u32 s31, s31, 1024\nv_xor_b32 v5, {m_<<6}, v{XO+i}\nbuffer_load_dwordx4 v5, s[12:15], s30 offen lds")
        k("s_add_u32 s30, s30, 3072")
    k.st(112)
    for b_ in range(4): k(f"v_xor_b32 v{XO+8+b_}, {4*b_}, v6\nv_lshl_add_u32 v{XO+8+b_}, v{XO+8+b_}, 4, v7")
    chunk_offs(k,U,12,2304,True,S)
    k(f"s_mul_i32 s36, s3, 3072\ns_mul_i32 s37, s3, {16*2304}\ns_mul_i32 s6, s29, 192\ns_add_u32 s37, s37, s6")
    def wgrp():
        for i in range(3): k(f"s_mov_b32 m0, s36\ns_add_u32 s36, s36, 1024\nbuffer_load_dwordx4 v{U+i}, s[24:27], s37 offen lds")
    k("s_waitcnt vmcnt(0) lgkmcnt(0)"); k.st(113)
    for s in range(12): k(f"ds_read_b128 {vr(A+4*s,4)}, v{XO+8+s%4} offset:{(s//4)*256}")
    for g in range(2):
        wgrp(); k(f"s_add_u32 s36, s36, {7*3072}\ns_add_u32 s37, s37, {128*2304}")
    k("s_waitcnt lgkmcnt(0)\ns_barrier"); k.st(1)
    ones(k); k("s_nop 1")
    for s_ in range(12): mstat(k,A+4*s_,s_==0)
    wgrp(); wo_dma(k,XO,True)
    XF=lambda e: (56+e if e<48 else 200+e-48)
    for i in range(48): k(f"v_lshlrev_b32 v{XF(2*i)}, 16, v{A+i}\nv_and_b32 v{XF(2*i+1)}, 0xffff0000, v{A+i}")
    mstat_fin(k,S)
    k(f"v_mul_f32 v{S}, v{S}, v{S+1}")
    for e in range(0,96,2): k(pk('fma',XF(e),XF(e),('b',S+1),('nb',S)))
    k(f"""
    s_lshr_b32 s43, s28, 3
    s_mul_i32 s30, s43, 9216
    s_and_b32 s6, s3, 1
    s_lshl_b32 s6, s6, 10
    s_add_u32 s30, s30, s6
    s_bitcmp1_b32 s3, 1
    s_cselect_b32 s6, 1536, 0
    s_add_u32 s30, s30, s6
    s_and_b32 s31, s3, 3
    s_lshl_b32 s31, s31, 10
    s_add_u32 s31, s31, 73728
    """)
    k.st(2); modpoll(k,'g'); k.st(21)
    k("s_mov_b32 m0, s31\ns_nop 0"); dma(k,30,0,SC)
    tr_addr(k,U,0)
    qs=f2u(192**-0.5*math.log2(math.e))
    k(f"""
    s_cmp_lt_u32 s29, 4
    s_cselect_b32 s30, {qs:#x}, 1.0
    s_cselect_b64 vcc, -1, 0
    s_cselect_b32 s33, -1, -2
    s_and_b32 s33, s42, s33
    s_mul_i32 s33, s33, 12
    s_lshr_b32 s31, s29, 2
    s_mul_i32 s31, s31, {ACT:#x}
    s_and_b32 s32, s29, 3
    s_mul_i32 s32, s32, 3
    s_add_u32 s32, s32, s33
    s_lshl_b32 s32, s32, 10
    s_add_u32 s31, s31, s32
    s_add_u32 s31, s31, {Q_P:#x}
    s_and_b32 s34, s3, 1
    v_bfe_u32 v5, v2, 2, 1
    v_mul_u32_u24 v5, 12288, v5
    v_lshl_add_u32 v5, v3, 8, v5
    v_lshrrev_b32 v6, 3, v2
    v_lshl_add_u32 v5, v6, 6, v5
    v_and_b32 v6, 3, v2
    v_lshl_add_u32 v5, v6, 4, v5
    s_lshl_b32 s6, s34, 7
    v_add_u32 v5, s6, v5
    v_cndmask_b32 v5, v5, v4, vcc
    s_lshl_b32 s35, s28, 6
    s_lshl_b32 s6, s29, 2
    s_add_u32 s35, s35, s6
    v_lshlrev_b32 v1, 5, v3
    v_add_u32 v1, 73728, v1
    s_waitcnt vmcnt(0)
    s_barrier
    """)
    k.st(22)
    k(f"s_cmp_ge_u32 s29, 8\ns_cbranch_scc1 {k.lab('v')}")
    def body(isv):
        PP=176
        order=[(s,cb) for s in range(12) for cb in range(4)]+[(s,cb) for s in range(12) for cb in (4,5)]
        ops=[]
        for i,(s,cb) in enumerate(order):
            if cb==0: ops+=[('p',s,0),('p',s,1)]
            ops.append(('w',s,cb))
        nw=[0]; reg={}; iss=[0]
        def rd(n):
            t,s,x=ops[n]
            if t=='p': k(f"ds_read_b128 {vr(PP+8*x,4)}, v1 offset:{s*128+16*x}\nds_read_b128 {vr(PP+8*x+4,4)}, v1 offset:{2048+s*128+16*x}")
            else:
                r=BB+4*(nw[0]%8); nw[0]+=1; reg[n]=r; a_=U+(x%2)+2*(s//6); o=(s%6)*6144+x*32
                k(f"ds_read_b64_tr_b16 {vr(r,2)}, v{a_} offset:{o}\nds_read_b64_tr_b16 {vr(r+2,2)}, v{a_} offset:{o+768}")
        def fill(n):
            while iss[0]<len(ops) and iss[0]<n+6: rd(iss[0]); iss[0]+=1
        def epi(c):
            R=ACC+8*c; D=S+4*(c%2)
            if isv:
                swap_pack(k,R,R+4,D); st4(k,D,5,31); k("s_add_u32 s31, s31, 65536")
            else:
                for j in range(8): k(f"v_mul_f32 v{R+j}, s30, v{R+j}")
                for j in range(4): k(f"v_cvt_pk_bf16_f32 v{D+j}, v{R+2*j}, v{R+2*j+1}")
                st4(k,D,5,31,c*1024)
        fill(0); i=0
        for n,(t,s,x) in enumerate(ops):
            k(f"s_waitcnt lgkmcnt({2*(iss[0]-n-1)})")
            if t=='p':
                for j in range(4): e=8*s+4*x+j; k(f"v_fma_f32 v{XF(e)}, v{XF(e)}, v{PP+8*x+4+j}, v{PP+8*x+j}")
                for j in range(2): e=8*s+4*x+2*j; k(f"v_cvt_pk_bf16_f32 v{A+4*s+2*x+j}, v{XF(e)}, v{XF(e+1)}")
            else:
                if isv: mf(k,ACC+4*x,A+4*s,reg[n],s==0)
                else: mf(k,ACC+4*x,reg[n],A+4*s,s==0)
                if i==52: epi(0)
                if i==60: epi(1)
                if i%5==0 and i<45:
                    q=i//5
                    k(f"s_mov_b32 m0, s36\ns_add_u32 s36, s36, 1024\nbuffer_load_dwordx4 v{XO+q%3}, s[20:23], s37 offen lds")
                    if q%3==2: k(f"s_add_u32 s37, s37, {16*768}")
                i+=1
            fill(n+1)
        k("s_nop 7"); epi(2)
        k("v_lshrrev_b32 v1, 6, v0")
    body(False)
    k(f"""
    s_branch {k.lab('p1e')}
    {k.lab('v')}:
    s_sub_u32 s31, s29, 8
    s_mul_i32 s31, s31, 6
    s_mul_i32 s32, s43, 24
    s_add_u32 s31, s31, s32
    s_lshl_b32 s31, s31, 5
    s_and_b32 s32, s42, 63
    s_lshr_b32 s32, s32, 1
    s_add_u32 s31, s31, s32
    s_lshl_b32 s31, s31, 10
    s_lshl_b32 s32, s34, 9
    s_add_u32 s31, s31, s32
    s_add_u32 s31, s31, {VT_P:#x}
    v_and_b32 v5, 1, v3
    v_lshlrev_b32 v5, 15, v5
    v_lshrrev_b32 v6, 1, v3
    v_lshl_add_u32 v5, v6, 8, v5
    v_lshl_add_u32 v5, v2, 4, v5
    """)
    body(True)
    k(f"{k.lab('p1e')}:"); k.st(3)
    signal(k,'1',35)
    k(f"{k.lab('p1x')}:"); k.st(4)

def p3setup(k):
    k(f"""
    s_cmp_ge_u32 s3, 6
    s_cbranch_scc1 {k.lab('p3s')}
    v_mul_u32_u24 v6, 768, v2
    v_lshl_add_u32 v6, v3, 3, v6
    s_mul_i32 s29, s48, {32*768}
    s_lshl_b32 s6, s50, 5
    s_add_u32 s29, s29, s6
    s_add_u32 s30, s29, {16*768}
    """)
    ld(k,XG,2,6,29,srd=12); ld(k,XG+2,2,6,30,srd=12)
    tr_addr(k,U,WOL)
    k(f"s_bitcmp1_b32 s3, 0\ns_cselect_b64 vcc, -1, 0\ns_lshl_b32 s6, s3, 5\nv_cndmask_b32 v{U}, v{U}, v{U+1}, vcc\nv_add_u32 v{U}, s6, v{U}\nv_add_u32 v{U+1}, 36864, v{U}")
    for s in range(12):
        for hh in range(2): k(f"ds_read_b64_tr_b16 {vr(WB+4*s+2*hh,2)}, v{U+s//6} offset:{(s%6)*6144+hh*768}")
    k(f"s_waitcnt lgkmcnt(0)\n{k.lab('p3s')}:")

def p2(k):
    QL=0; PL=24576; VL=57344; ML=155648; SL=157696
    KF=8; SA=56; B2=88; T=120
    k(f"""
    s_lshr_b32 s20, s4, 2
    {MAP2}
    s_lshl_b32 s24, s20, 6
    s_lshl_b32 s6, s23, 2
    s_add_u32 s24, s24, s6
    s_lshr_b32 s6, s3, 1
    s_add_u32 s25, s24, s6
    s_mul_i32 s25, s25, 12
    s_mul_i32 s26, s21, 6
    s_add_u32 s25, s25, s26
    s_and_b32 s6, s3, 1
    s_mul_i32 s6, s6, 3
    s_add_u32 s25, s25, s6
    s_lshl_b32 s25, s25, 10
    s_add_u32 s25, s25, {Q_P:#x}
    s_lshl_b32 s27, s20, 6
    s_lshl_b32 s6, s22, 4
    s_add_u32 s27, s27, s6
    s_lshl_b32 s6, s3, 1
    s_add_u32 s27, s27, s6
    s_mul_i32 s27, s27, 12
    s_add_u32 s27, s27, s26
    s_lshl_b32 s27, s27, 10
    s_add_u32 s27, s27, {K_P:#x}
    s_add_u32 s36, s27, 12288
    s_mul_i32 s28, s20, 24
    s_mul_i32 s6, s21, 12
    s_add_u32 s28, s28, s6
    s_lshl_b32 s28, s28, 5
    s_lshl_b32 s6, s22, 3
    s_add_u32 s28, s28, s6
    s_add_u32 s28, s28, s3
    s_lshl_b32 s28, s28, 10
    s_add_u32 s28, s28, {VT_P:#x}
    s_lshl_b32 s29, s3, 10
    s_add_u32 s29, s29, {VL}
    """)
    poll(k,'2',f"""
    v_bfe_u32 v6, v0, 2, 2
    v_min_u32 v6, 2, v6
    v_bfe_u32 v7, v0, 1, 1
    s_lshl_b32 s6, s22, 1
    v_add_u32 v7, s6, v7
    s_lshr_b32 s6, s23, 1
    v_mov_b32 v5, s6
    v_cmp_eq_u32 vcc, 0, v6
    s_lshl_b32 s6, s20, 9
    s_lshl_b32 s7, s21, 3
    v_cndmask_b32 v7, v7, v5, vcc
    s_add_u32 s6, s6, s7
    v_lshlrev_b32 v7, 6, v7
    v_lshl_add_u32 v7, v6, 4, v7
    v_and_b32 v6, 1, v0
    v_lshl_add_u32 v7, v6, 2, v7
    v_add_u32 v5, s6, v7
    """)
    k.st()
    k("s_mul_i32 s6, s3, 3072\ns_mov_b32 m0, s6\ns_nop 0")
    for i in range(3): dma(k,25,i*1024,SC)
    def ldk(s):
        if s==4: k("s_add_u32 s27, s27, 4096\ns_add_u32 s36, s36, 4096")
        for kb in range(2): ld(k,KF+24*kb+4*s,4,4,(27,36)[kb],(s%4)*1024,sc=SC)
    for s in range(6): ldk(s)
    k("s_waitcnt vmcnt(12)\ns_barrier"); k.st()
    items=[(4,QL+(qb*6+s)*1024) for s in range(6) for qb in range(4)]
    def mf1(i,b):
        s,qb=divmod(i,4)
        if qb==0: k("s_waitcnt vmcnt(10)")
        if qb in (0,2):
            k(f"s_mov_b32 m0, s29\ns_add_u32 s29, s29, 8192"); dma(k,28,0,SC); k("s_add_u32 s28, s28, 32768")
        for kb in range(2): mf(k,SA+8*qb+4*kb,KF+24*kb+4*s,b,s==0)
    gemm_loop(k,items,B2,8,mf1); k.st()
    k(f"v_lshrrev_b32 v5, 4, v4\nv_min_u32 v5, 59, v5\nv_lshlrev_b32 v5, 2, v5\nv_add_u32 v5, 1024, v5\nv_lshlrev_b32 v5, 5, v5\ns_mov_b32 s6, {FL:#x}\nbuffer_load_dword v199, v5, s[8:11], s6 offen sc1")
    k(f"""
    v_and_b32 v5, 63, v0
    v_lshlrev_b32 v5, 5, v5
    v_lshl_add_u32 v5, v1, 2, v5
    v_add_u32 v5, {ML}, v5
    v_lshlrev_b32 v6, 5, v2
    v_add_u32 v6, {ML}, v6
    s_lshl_b32 s6, s3, 10
    s_add_u32 s6, s6, {PL}
    v_add_u32 v7, s6, v4
    """)
    M=KF
    def max8(m,r): k(f"v_max3_f32 v{m}, v{r}, v{r+1}, v{r+2}\nv_max3_f32 v{m}, v{m}, v{r+3}, v{r+4}\nv_max3_f32 v{m}, v{m}, v{r+5}, v{r+6}\nv_max_f32 v{m}, v{m}, v{r+7}")
    for qb in range(4): max8(M+qb,SA+8*qb)
    def treduce(op,addr_off):
        k(f"s_nop 1\nv_permlane32_swap_b32 v{M}, v{M+2}\nv_permlane32_swap_b32 v{M+1}, v{M+3}\ns_nop 1\n{op} v{M}, v{M}, v{M+2}\n{op} v{M+1}, v{M+1}, v{M+3}")
        k(f"s_nop 1\nv_permlane16_swap_b32 v{M}, v{M+1}\ns_nop 1\n{op} v{M}, v{M}, v{M+1}\nds_write_b32 v5, v{M} offset:{addr_off}")
    treduce("v_max_f32",0)
    k("s_waitcnt lgkmcnt(0)\ns_barrier")
    G=KF+8
    for qb in range(4):
        for q in range(2): k(f"ds_read_b128 {vr(G+8*qb+4*q,4)}, v6 offset:{qb*512+16*q}")
    for qb in range(4):
        k(f"s_waitcnt lgkmcnt({6-2*qb})"); max8(T+qb,G+8*qb)
    k("s_mov_b32 s40, 0x3f803f80")
    for qb in range(4):
        r=SA+8*qb
        for j in (0,2,4,6): k(pk('add',r+j,r+j,('nb',T+qb)))
        for j in range(8): k(f"v_exp_f32 v{r+j}, v{r+j}")
        k("s_nop 0")
        for j in range(4): k(f"v_cvt_pk_bf16_f32 v{B2+4*qb+j}, v{r+2*j}, v{r+2*j+1}")
        k(f"ds_write_b128 v7, {vr(B2+4*qb,4)} offset:{qb*8192}")
        k(pk('add',r,r,r+2)); k(pk('add',r+4,r+4,r+6)); k(pk('add',r,r,r+4)); k(f"v_add_f32 v{M+qb}, v{r}, v{r+1}")
    k("s_nop 1")
    treduce("v_add_f32",SL-ML)
    k(f"s_waitcnt vmcnt(0) lgkmcnt(0)\nv_cmp_eq_u32 vcc, 0, v199\nv_mov_b32 v198, v6\ns_nop 3\ns_cbranch_vccz {k.lab('pds')}")
    poll(k,'s',"v_lshrrev_b32 v5, 4, v4\nv_min_u32 v5, 59, v5\nv_lshlrev_b32 v5, 2, v5\nv_add_u32 v5, 1024, v5",bar=False)
    k("v_mov_b32 v6, v198")
    k(f"""
    s_and_b32 s30, s3, 3
    s_lshr_b32 s31, s3, 2
    s_mul_i32 s6, s30, 24576
    s_add_u32 s6, s6, {VL}
    v_add_u32 v5, s6, v4
    s_lshl_b32 s6, s31, 14
    s_add_u32 s6, s6, {PL}
    v_add_u32 v7, s6, v4
    s_lshl_b32 s6, s31, 10
    v_add_u32 v6, s6, v6
    s_cmp_eq_u32 s31, 0
    s_cselect_b64 vcc, -1, 0
    v_cndmask_b32 v{T}, v{T+2}, v{T}, vcc
    v_cndmask_b32 v{T+1}, v{T+3}, v{T+1}, vcc
    """)
    k.st(); k("s_waitcnt vmcnt(0) lgkmcnt(0)\ns_barrier"); k.st()
    for qq in range(2):
        for q in range(2): k(f"ds_read_b128 {vr(G+8*qq+4*q,4)}, v6 offset:{SL-ML+qq*512+16*q}")
    OA=SA; PR=128
    k(f"""
    s_lshl_b32 s6, s31, 1
    s_add_u32 s24, s24, s6
    s_mul_i32 s32, s24, 12288
    s_mul_i32 s6, s22, {ACT:#x}
    s_add_u32 s32, s32, s6
    s_add_u32 s32, s32, {O_P:#x}
    s_mul_i32 s33, s21, 12
    s_mul_i32 s6, s30, 3
    s_add_u32 s33, s33, s6
    s_lshl_b32 s33, s33, 9
    s_add_u32 s32, s32, s33
    v_and_b32 v197, 1, v3
    v_mul_u32_u24 v197, 12288, v197
    v_lshrrev_b32 v6, 1, v3
    v_lshl_add_u32 v197, v6, 8, v197
    v_lshl_add_u32 v197, v2, 4, v197
    """)
    seq=[]
    for ks in range(8): seq+=[('p',0,ks),('p',1,ks),('v',0,ks)]
    seq+=[('v',j,ks) for j in (1,2) for ks in range(8)]
    nv=[0]; reg={}
    def rd(i):
        t,x,ks=seq[i]
        if t=='p': r=PR+32*x+4*ks; a_=7
        else: r=B2+4*(nv[0]%8); nv[0]+=1; a_=5
        reg[i]=r; k(f"ds_read_b128 {vr(r,4)}, v{a_} offset:{x*8192+ks*1024}")
    def oepi(j):
        for qq in range(2):
            r=OA+8*j+4*qq
            for t in range(4): k(f"v_mul_f32 v{r+t}, v{r+t}, v{G+8*qq+1}")
        swap_pack(k,OA+8*j,OA+8*j+4,40+4*j); st4(k,40+4*j,197,32,j*512)
    issued=0
    def fill(i):
        nonlocal issued
        while issued<len(seq) and issued<i+9 and sum(1 for q in range(i,issued+1) if seq[q][0]=='v')<=7:
            rd(issued); issued+=1
    fill(0)
    for i,(t,x,ks) in enumerate(seq):
        if t=='v':
            k(f"s_waitcnt lgkmcnt({issued-i-1})")
            for qq in range(2): mf(k,OA+8*x+4*qq,reg[i],PR+32*qq+4*ks,ks==0)
            if x==0 and ks==1:
                for qq in range(2):
                    r=G+8*qq
                    k(f"v_add_f32 v{r}, v{r}, v{r+1}")
                    for j in range(2,8): k(f"v_add_f32 v{r}, v{r}, v{r+j}")
                    k(f"v_rcp_f32 v{r+1}, v{r}\nv_log_f32 v{r+2}, v{r}")
            if x and ks==3: oepi(x-1)
        fill(i+1)
    k.st()
    k("s_nop 7"); oepi(2)
    k(f"""
    s_lshl_b32 s35, s20, 4
    s_add_u32 s35, s35, s23
    s_lshl_b32 s35, s35, 6
    s_lshl_b32 s6, s21, 4
    s_add_u32 s35, s35, s6
    s_lshl_b32 s6, s22, 2
    s_add_u32 s35, s35, s6
    s_add_u32 s35, s35, 2048
    s_cmp_lg_u32 s30, 0
    s_cbranch_scc1 {k.lab('p2e')}
    v_add_f32 v{T}, v{T}, v{G+2}
    v_add_f32 v{T+1}, v{T+1}, v{G+10}
    v_cmp_eq_u32 vcc, 0, v3
    s_lshl_b32 s6, s22, 1
    s_add_u32 s6, s6, s21
    v_cndmask_b32 v{T}, v{T+1}, v{T}, vcc
    s_lshl_b32 s6, s6, 13
    s_lshl_b32 s7, s24, 6
    s_add_u32 s6, s6, s7
    s_add_u32 s6, s6, {LSE:#x}
    v_lshrrev_b32 v5, 2, v4
    s_mov_b32 exec_hi, 0
    buffer_store_dword v{T}, v5, s[8:11], s6 offen sc1
    s_mov_b64 exec, -1
    {k.lab('p2e')}:
    """)
    signal(k,'2',35); k.st()
    if LOC>1:
        for j in range(3): ld(k,64,4,197,32,j*512,sc=SC)

FC1L=24576
def p4setup(k):
    k(f"""
    {MAP4}
    s_lshl_b32 s53, s51, 3
    s_add_u32 s53, s53, s3
    s_lshr_b32 s25, s51, 3
    s_and_b32 s27, s3, 1
    s_mul_i32 s27, s27, 20480
    s_lshl_b32 s6, s3, 13
    s_add_u32 s6, s6, 40960
    s_cmp_lt_u32 s3, 4
    s_cselect_b32 s27, s6, s27
    s_mul_i32 s28, s52, 73728
    s_add_u32 s28, s28, s27
    s_mul_i32 s29, s25, 0x120000
    s_add_u32 s28, s28, s29
    s_add_u32 s28, s28, {FC1_P:#x}
    s_add_u32 s27, s27, {FC1L}
    """)
    k(f"s_lshr_b32 s6, s48, 5\ns_mul_i32 s31, s6, 9216\ns_lshl_b32 s6, s50, 6\ns_add_u32 s31, s31, s6\ns_add_u32 s31, s31, {768*4}\nv_lshlrev_b32 v7, 4, v3")
    ld(k,XG+4,4,7,31,sc=SC)
    k(f"s_cmp_ge_u32 s3, 4\ns_cbranch_scc1 {k.lab('p4z')}"); f1loop(k,2,'p4l'); k(f"{k.lab('p4z')}:")
def f1loop(k,n,nm):
    k(f"s_mov_b32 s39, {n}\n{k.lab(nm)}:\ns_mov_b32 m0, s27\ns_add_u32 s27, s27, 4096")
    for i in range(4): dma(k,28,i*1024,SC)
    k(f"s_add_u32 s28, s28, 4096\ns_sub_u32 s39, s39, 1\ns_cmp_lg_u32 s39, 0\ns_cbranch_scc1 {k.lab(nm)}")

def p3(k):
    OP=8; LS=56; t=ACC
    k(f"""
    s_lshl_b32 s22, s48, 1
    s_lshr_b32 s6, s3, 2
    s_add_u32 s23, s22, s6
    s_and_b32 s24, s3, 3
    s_mul_i32 s25, s23, 12288
    s_mul_i32 s6, s24, 3072
    s_add_u32 s25, s25, s6
    s_add_u32 s25, s25, {O_P:#x}
    s_lshr_b32 s6, s24, 1
    s_lshl_b32 s26, s6, 13
    s_lshl_b32 s6, s23, 6
    s_add_u32 s26, s26, s6
    s_add_u32 s26, s26, {LSE:#x}
    """)
    poll(k,'3',"s_lshr_b32 s6, s48, 1\ns_lshl_b32 s6, s6, 6\ns_add_u32 s6, s6, 2048\nv_and_b32 v5, 7, v0\nv_lshlrev_b32 v5, 2, v5\nv_add_u32 v5, s6, v5")
    k.st(); k("v_lshlrev_b32 v5, 2, v2")
    for sp in range(4):
        ld(k,LS+sp,1,5,26,sc=SC)
        if sp<3: k("s_add_u32 s26, s26, 16384")
    for i in range(3):
        for sp in range(4):
            k(f"s_add_u32 s6, s25, {sp*ACT:#x}"); ld(k,OP+16*i+4*sp,4,4,6,i*1024,sc=SC)
    k(f"s_waitcnt vmcnt(12)\nv_max3_f32 v{t}, v{LS}, v{LS+1}, v{LS+2}\nv_max_f32 v{t}, v{t}, v{LS+3}")
    for sp in range(4): k(f"v_sub_f32 v{LS+sp}, v{LS+sp}, v{t}")
    for sp in range(4): k(f"v_exp_f32 v{LS+sp}, v{LS+sp}")
    k(f"s_nop 0\nv_add_f32 v{t}, v{LS}, v{LS+1}\nv_add_f32 v{t}, v{t}, v{LS+2}\nv_add_f32 v{t}, v{t}, v{LS+3}\nv_rcp_f32 v{t}, v{t}\ns_mul_i32 s6, s3, 3072")
    for sp in range(4): k(f"v_mul_f32 v{LS+sp}, v{LS+sp}, v{t}")
    k("v_add_u32 v5, s6, v4")
    for i in range(3):
        for sp in range(4):
            k(f"s_waitcnt vmcnt({11-4*i-sp})")
            for j in range(4):
                r=OP+16*i+4*sp+j
                u=60+2*j
                k(f"v_lshlrev_b32 v{u}, 16, v{r}\nv_and_b32 v{u+1}, 0xffff0000, v{r}")
            for j in range(4):
                u=60+2*j
                k(pk('fma',t+2*j,u,('b',LS+sp),t+2*j) if sp else pk('mul',t+2*j,u,('b',LS+sp)))
        for j in range(4): k(f"v_cvt_pk_bf16_f32 v{OP+16*i+j}, v{t+2*j}, v{t+2*j+1}")
        k(f"ds_write_b128 v5, {vr(OP+16*i,4)} offset:{i*1024}")
    k(f"""
    s_lshr_b32 s35, s48, 2
    s_lshl_b32 s35, s35, 6
    s_and_b32 s6, s48, 3
    s_lshl_b32 s6, s6, 4
    s_add_u32 s35, s35, s6
    s_lshl_b32 s6, s49, 2
    s_add_u32 s35, s35, s6
    s_add_u32 s35, s35, 4096
    s_waitcnt lgkmcnt(0)
    s_barrier
    """)
    k.st(); k(f"s_cmp_ge_u32 s3, 6\ns_cbranch_scc1 {k.lab('p3d')}")
    items=[(4,(rb*12+s)*1024) for s in range(12) for rb in range(2)]
    gemm_loop(k,items,OP,12,lambda i,b: mf(k,ACC+4*(i%2),WB+4*(i//2),b,i<2))
    k(f"""
    s_mul_i32 s32, s22, 12288
    s_lshl_b32 s6, s50, 9
    s_add_u32 s32, s32, s6
    s_add_u32 s32, s32, {X1_P:#x}
    v_and_b32 v5, 1, v3
    v_mul_u32_u24 v5, 12288, v5
    v_lshrrev_b32 v6, 1, v3
    v_lshl_add_u32 v5, v6, 8, v5
    v_lshl_add_u32 v5, v2, 4, v5
    """)
    for rb in range(2):
        for j in range(2):
            x=XG+2*rb+j; a=ACC+4*rb+2*j
            k(f"v_lshlrev_b32 v8, 16, v{x}\nv_and_b32 v9, 0xffff0000, v{x}\nv_fma_f32 v{a}, v{a}, v{XG+4+2*j}, v8\nv_fma_f32 v{a+1}, v{a+1}, v{XG+4+2*j+1}, v9")
    swap_pack(k,ACC,ACC+4,12); st4(k,12,5,32)
    k(f"s_waitcnt vmcnt(0)\ns_branch {k.lab('p3e')}\n{k.lab('p3d')}:")
    f1loop(k,5,'p3l')
    k(f"{k.lab('p3e')}:")
    signal(k,'3',35,63); k.st()

def f2addr(q):
    if q<20: return 98304+q*3072
    if q<28: return (q-20)*3072
    return FC1L+(q-28)*3072
RL=FC1L+60*1024
def f2dma(k,q0,q1):
    for q in range(q0,q1,8):
        hi=min(q+8,q1)
        if hi-q<8: k(f"s_cmp_ge_u32 s3, {hi-q}\ns_cbranch_scc1 {k.lab('f2_%d'%q)}")
        k(f"s_add_u32 s6, s57, {(q//2)*1024}\ns_add_u32 s7, s38, {f2addr(q)}")
        for i in range(3): k(f"s_mov_b32 m0, s7\ns_add_u32 s7, s7, 1024\nbuffer_load_dwordx4 v{U+i}, s[8:11], s6 offen sc1 lds")
        if hi-q<8: k(f"{k.lab('f2_%d'%q)}:")
def p5setup(k):
    k(f"""
    s_lshl_b32 s54, s4, 2
    s_and_b32 s6, s5, 3
    s_add_u32 s54, s54, s6
    s_lshr_b32 s55, s5, 2
    s_lshl_b32 s56, s54, 2
    s_and_b32 s6, s3, 3
    s_add_u32 s56, s56, s6
    s_mul_i32 s57, s55, 147456
    s_and_b32 s6, s3, 1
    s_mul_i32 s6, s6, 24576
    s_add_u32 s57, s57, s6
    s_lshr_b32 s6, s3, 1
    s_lshl_b32 s6, s6, 10
    s_add_u32 s57, s57, s6
    s_add_u32 s57, s57, {FC2_P:#x}
    s_mul_i32 s38, s3, 3072
    s_lshr_b32 s25, s51, 3
    s_mul_i32 s30, s25, 12288
    s_mul_i32 s31, s52, 384
    s_add_u32 s30, s30, s31
    s_add_u32 s30, s30, {UV:#x}
    v_cmp_le_u32 vcc, 384, v4
    v_add_u32 v6, {6144-384}, v4
    s_mov_b32 m0, 159744
    v_cndmask_b32 v6, v4, v6, vcc
    s_cmp_lg_u32 s3, 0
    s_cbranch_scc1 {k.lab('uv')}
    buffer_load_dwordx4 v6, s[8:11], s30 offen sc1 lds
    {k.lab('uv')}:
    """)
    for i in range(3): k(f"v_add_u32 v{U+i}, {i*49152}, v4")

def p4(k):
    UU=WB
    k(f"s_mul_i32 s23, s53, 12288\ns_add_u32 s23, s23, {X1_P:#x}")
    poll(k,'4',"s_lshl_b32 s6, s51, 6\ns_add_u32 s6, s6, 4096\nv_lshlrev_b32 v5, 2, v2\nv_add_u32 v5, s6, v5",pw=1,drain=True)
    k.st()
    for s in range(12):
        if s and s%4==0: k("s_add_u32 s23, s23, 4096")
        ld(k,A+4*s,4,4,23,(s%4)*1024,sc=SC)
    k(f"""
    v_add_u32 v6, {FC1L}, v4
    v_add_u32 v7, {FC1L+36864}, v4
    s_mul_i32 s32, s53, 48
    s_mul_i32 s33, s52, 3
    s_add_u32 s32, s32, s33
    s_lshl_b32 s32, s32, 10
    s_add_u32 s32, s32, {G_P:#x}
    v_mov_b32 v86, 1.0
    v_mov_b32 v84, {f2u(-2*math.sqrt(2/math.pi)*math.log2(math.e)*0.044715):#x}
    v_mov_b32 v85, {f2u(-2*math.sqrt(2/math.pi)*math.log2(math.e)):#x}
    s_lshl_b32 s35, s51, 6
    s_lshl_b32 s6, s52, 2
    s_add_u32 s35, s35, s6
    s_add_u32 s35, s35, 5120
    """)
    k("v_lshlrev_b32 v1, 4, v3\nv_add_u32 v1, 159744, v1"); ones(k)
    for cb in range(6): k(f"ds_read_b128 {vr(WB+4*cb,4)}, v1 offset:{cb*64}\nds_read_b128 {vr(WB+24+4*cb,4)}, v1 offset:{384+cb*64}")
    k("s_waitcnt lgkmcnt(0)")
    order=[(s,cb) for s in range(12) for cb in range(4)]+[(s,cb) for s in range(12) for cb in (4,5)]
    items=[((6 if cb<3 else 7),((cb%3)*12+s)*1024) for s,cb in order]
    T=[64+j for j in range(8)]
    def gl(i,P=True):
        R=[ACC+8*i+j for j in range(8)]; L=[]
        E=(0,2,4,6)
        pk=globals()['pk']
        if not P:
            def pk(op,d,*src):
                f=lambda x,h: (f"v{x+h}" if isinstance(x,int) else ("-" if x[0]=='nb' else "")+f"v{x[1]}")
                return "\n".join(f"v_{op}_f32 v{d+h}, "+", ".join(f(x,h) for x in src) for h in (0,1))
        for j in E: L.append(pk('fma',R[j],('nb',S),UU+8*i+j,R[j]))
        for j in E: L.append(pk('fma',R[j],R[j],('b',S+1),UU+24+8*i+j))
        for j in E: L.append(pk('mul',T[j],R[j],R[j]))
        for j in E: L.append(pk('fma',T[j],T[j],('b',84),('b',85)))
        for j in E: L.append(pk('mul',T[j],T[j],R[j]))
        for j in range(8): L.append(f"v_exp_f32 v{T[j]}, v{T[j]}")
        for j in E: L.append(pk('add',T[j],T[j],('b',86)))
        for j in range(8): L.append(f"v_rcp_f32 v{T[j]}, v{T[j]}")
        for j in E: L.append(pk('mul',R[j],R[j],T[j]))
        for j in range(4): L.append(f"v_cvt_pk_bf16_f32 v{72+4*i+j}, v{R[2*j]}, v{R[2*j+1]}")
        L.append(f"buffer_store_dwordx4 {vr(72+4*i,4)}, v4, s[8:11], s32 offen offset:{i*1024} sc1")
        return L
    Q=[l for x in gl(0,False) for l in x.split('\n')]
    def m(i,b):
        s,cb=order[i]
        if cb==0: k(f"s_waitcnt vmcnt({11-s+(3 if s==11 else 0)})")
        mf(k,ACC+4*cb,b,A+4*s,s==0)
        if cb==0: mstat(k,A+4*s,s==0)
        if i==48: mstat_fin(k,S)
        if i in (40,46,54,62): f2dma(k,*{40:(0,8),46:(8,16),54:(16,20),62:(20,28)}[i])
        if i>48:
            for _ in range(4):
                if Q: k(Q.pop(0))
    gemm_loop(k,items,BB,8,m); k.st()
    for l in Q+gl(1)+gl(2): k(l)
    k.st()
    signal(k,'4',35); k.st()
    if LOC>1:
        for j in range(3): ld(k,104,4,4,32,j*1024,sc=SC)
    f2dma(k,28,48)

def p5(k):
    X5=WB
    k(f"""
    s_lshr_b32 s23, s3, 2
    s_mul_i32 s25, s56, 49152
    s_mul_i32 s6, s23, 24576
    s_add_u32 s25, s25, s6
    s_add_u32 s25, s25, {G_P:#x}
    s_mul_i32 s29, s56, 12288
    s_mul_i32 s6, s55, 1536
    s_add_u32 s29, s29, s6
    s_add_u32 s29, s29, {X1_P:#x}
    s_lshr_b32 s6, s54, 4
    s_mul_i32 s30, s6, 9216
    s_mul_i32 s6, s55, 192
    s_add_u32 s30, s30, s6
    s_add_u32 s30, s30, {1920*4}
    """)
    poll(k,'5',"s_lshr_b32 s6, s54, 1\ns_lshl_b32 s6, s6, 6\ns_add_u32 s6, s6, 5120\nv_lshlrev_b32 v5, 2, v2\nv_add_u32 v5, s6, v5")
    k.st()
    def lda(s):
        if s and s%4==0: k("s_add_u32 s25, s25, 4096")
        ld(k,A+4*s,4,4,25,(s%4)*1024,sc=SC)
    for s in range(12): lda(s)
    k(f"""
    s_mul_i32 s6, s23, 3072
    v_add_u32 v5, s6, v4
    v_add_u32 v6, 61440, v5
    v_add_u32 v7, 61440, v6
    v_lshlrev_b32 v1, 4, v3
    v_lshrrev_b32 v{S}, 1, v3
    v_lshlrev_b32 v{S}, 8, v{S}
    v_lshl_add_u32 v{S}, v2, 4, v{S}
    v_and_b32 v{S+1}, 1, v3
    v_lshl_add_u32 v{S}, v{S+1}, 3, v{S}
    """)
    items=[(5+f2addr(2*(n//3))//61440,f2addr(2*(n//3))%61440+(n%3)*1024) for n in range(72)]
    def m(i,b):
        s,cb=divmod(i,3)
        if cb==0:
            k(f"s_waitcnt vmcnt({11 if s<12 else 23-s+6})")
            if s<12: lda(12+s)
            if s==8: k('s_barrier')
            if s==11:
                for c in range(3):
                    ld(k,X5+2*c,2,S,29,c*512,sc=SC); ld(k,X5+8+4*c,4,1,30,c*64,sc=SC)
        mf(k,ACC+4*cb,b,A+4*s,s==0)
    gemm_loop(k,items,BB,8,m); k.st()
    k(f"""
    s_and_b32 s6, s3, 3
    s_mul_i32 s6, s6, 3072
    s_add_u32 s6, s6, {RL}
    v_add_u32 v5, s6, v4
    s_cmp_eq_u32 s23, 0
    s_cbranch_scc1 {k.lab('lo')}
    s_nop 4
    """)
    for cb in range(3): k(f"ds_write_b128 v5, {vr(ACC+4*cb,4)} offset:{cb*1024}")
    k(f"s_waitcnt lgkmcnt(0)\ns_barrier\ns_endpgm\n{k.lab('lo')}:")
    k(f"v_mul_u32_u24 v6, 768, v2\nv_lshl_add_u32 v6, v3, 3, v6\ns_mul_i32 s31, s56, {16*768}\ns_mul_i32 s6, s55, 96\ns_add_u32 s31, s31, s6\ns_barrier")
    for cb in range(3): k(f"ds_read_b128 {vr(BB+4*cb,4)}, v5 offset:{cb*1024}")
    k("s_waitcnt vmcnt(0) lgkmcnt(0)")
    for cb in range(3):
        for t in range(4): k(f"v_add_f32 v{ACC+4*cb+t}, v{ACC+4*cb+t}, v{BB+4*cb+t}")
        for j in range(2):
            x=X5+2*cb+j
            a_=ACC+4*cb+2*j
            k(f"v_lshlrev_b32 v8, 16, v{x}\nv_and_b32 v9, 0xffff0000, v{x}")
            k(f"v_fma_f32 v{a_}, v{a_}, v{X5+8+4*cb+2*j}, v8\nv_fma_f32 v{a_+1}, v{a_+1}, v{X5+8+4*cb+2*j+1}, v9")
        if cb==1:
            k("v_mul_u32_u24 v7, 768, v2\nv_and_b32 v8, 1, v3\nv_lshl_add_u32 v7, v8, 5, v7\nv_lshrrev_b32 v8, 1, v3\nv_lshl_add_u32 v7, v8, 4, v7")
            swap_pack(k,ACC,ACC+4,12); k("buffer_store_dwordx4 v[12:15], v7, s[44:47], s31 offen sc1")
    k(f"v_cvt_pk_bf16_f32 v16, v{ACC+8}, v{ACC+9}\nv_cvt_pk_bf16_f32 v17, v{ACC+10}, v{ACC+11}\nbuffer_store_dwordx2 v[16:17], v6, s[44:47], s31 offen offset:64 sc1")

def km():
    k=K(NAME,256,512,163840,256,sgpr=102)
    k(f"s_cmp_ge_u32 s2, 256\ns_cbranch_scc1 {k.lab('end')}")
    k.srds([('ws',8),('x',12),('fc1',16),('wo',20),('wqkv',24),('c',28),('wmod',32),('out',44),('dbg',96)])
    k("v_lshrrev_b32 v1, 6, v0\nv_and_b32 v2, 15, v0\nv_readfirstlane_b32 s3, v1\nv_bfe_u32 v3, v0, 4, 2\nv_and_b32 v4, 63, v0\nv_lshlrev_b32 v4, 4, v4\ns_and_b32 s4, s2, 7\ns_lshr_b32 s5, s2, 3")
    p1(k); p3setup(k); p2(k); p4setup(k); p5setup(k); p3(k); p4(k); p5(k)
    k(f"{k.lab('end')}:\ns_endpgm")
    return k
```

```python
from common import *
from k14 import f2u, stats, stats_fin
import math, os
SC=" sc1"
SLP=int(os.environ.get('SLP','3'))
NAME='standalone__dit_block__diffusion_kernel'
def mf(k,c,a,b,first): k(f"v_mfma_f32_16x16x32_bf16 {vr(c,4)}, {vr(a,4)}, {vr(b,4)}, {0 if first else vr(c,4)}")
def ld(k,dst,n,voff,soff,off=0,srd=8,sc=""):
    w={1:"dword",2:"dwordx2",4:"dwordx4"}[n]
    k(f"buffer_load_{w} {vr(dst,n)}, v{voff}, s[{srd}:{srd+3}], s{soff} offen"+(f" offset:{off}" if off else "")+sc)
def dma(k,soff,off=0,sc=""): k(f"buffer_load_dwordx4 v4, s[8:11], s{soff} offen"+(f" offset:{off}" if off else "")+sc+" lds")
def st4(k,src,voff,soff,off=0): k(f"buffer_store_dwordx4 {vr(src,4)}, v{voff}, s[8:11], s{soff} offen"+(f" offset:{off}" if off else "")+SC)

def signal(k,name,soff,n=0):
    k(f"s_waitcnt vmcnt({n})\ns_barrier\ns_cmp_lg_u32 s3, 0\ns_cbranch_scc1 {k.lab('sg'+name)}")
    k(f"v_mov_b32 v5, 0\nv_mov_b32 v6, 1\ns_lshl_b32 s{soff}, s{soff}, 5\ns_add_u32 s{soff}, s{soff}, {FL:#x}\ns_mov_b64 exec, 1\nbuffer_store_dword v6, v5, s[8:11], s{soff} offen sc1\ns_mov_b64 exec, -1")
    k(f"{k.lab('sg'+name)}:")
def poll(k,name,setup,pw=7,drain=False,bar=True):
    k(f"s_cmp_lg_u32 s3, {pw}\ns_cbranch_scc1 {k.lab('pd'+name)}")
    k(setup)
    k(f"v_lshlrev_b32 v5, 5, v5\ns_mov_b32 s6, {FL:#x}\ns_mov_b32 s7, 0\n{k.lab('pl'+name)}:")
    k(f"buffer_load_dword v6, v5, s[8:11], s6 offen sc1\ns_waitcnt vmcnt(0)\nv_cmp_eq_u32 vcc, 0, v6\ns_add_u32 s7, s7, 1\ns_cmp_ge_u32 s7, 0x10000\ns_cbranch_scc1 {k.lab('pd'+name)}\ns_nop 2")
    k(f"s_cbranch_vccz {k.lab('pd'+name)}\ns_sleep {SLP}\ns_branch {k.lab('pl'+name)}\n{k.lab('pd'+name)}:")
    if drain: k("s_waitcnt vmcnt(0)")
    if bar: k("s_barrier")
def swap_pack(k,X,Y,D):
    k(f"v_cvt_pk_bf16_f32 v{D}, v{X}, v{X+1}\nv_cvt_pk_bf16_f32 v{D+1}, v{X+2}, v{X+3}\nv_cvt_pk_bf16_f32 v{D+2}, v{Y}, v{Y+1}\nv_cvt_pk_bf16_f32 v{D+3}, v{Y+2}, v{Y+3}")
    k(f"s_nop 1\nv_permlane16_swap_b32 v{D}, v{D+2}\nv_permlane16_swap_b32 v{D+1}, v{D+3}\ns_nop 0")

ON=192; SM=184; GR=188
def ones(k):
    for j in range(4): k(f"v_mov_b32 v{ON+j}, 0x3f803f80")
def mstat(k,a,first): mf(k,SM,ON,a,first); mf(k,GR,a,a,first)
def mstat_fin(k,S):
    k(f"""
    v_and_b32 v{S+2}, 1, v2
    v_cmp_eq_u32 vcc, 0, v{S+2}
    v_and_b32 v{S+2}, 2, v2
    v_lshrrev_b32 v{S+3}, 2, v2
    v_cndmask_b32 v{GR}, v{GR+1}, v{GR}, vcc
    v_cndmask_b32 v{GR+2}, v{GR+3}, v{GR+2}, vcc
    v_cmp_eq_u32 vcc, 0, v{S+2}
    v_mul_f32 v{S}, {f2u(1/384):#x}, v{SM}
    s_nop 0
    v_cndmask_b32 v{GR}, v{GR+2}, v{GR}, vcc
    v_cmp_eq_u32 vcc, v3, v{S+3}
    s_nop 1
    v_cndmask_b32 v{S+1}, 0, v{GR}, vcc
    """)
    xreduce(k,[S+1],[S+2],"v_add_f32")
    k(f"v_mul_f32 v{S+1}, {f2u(1/384):#x}, v{S+1}\nv_fma_f32 v{S+1}, -v{S}, v{S}, v{S+1}\nv_max_f32 v{S+1}, 0, v{S+1}\nv_add_f32 v{S+1}, {f2u(1e-5):#x}, v{S+1}\nv_rsq_f32 v{S+1}, v{S+1}\ns_nop 0")
def pk(op,d,*src):
    o=[];lo=[];hi=[];ng=[]
    for x in src:
        if isinstance(x,int): assert x%2==0; o.append(vr(x,2)); lo.append(0); hi.append(1); ng.append(0)
        else: o.append(vr(x[1]&~1,2)); lo.append(x[1]&1); hi.append(x[1]&1); ng.append(int(x[0]=='nb'))
    f=lambda l:"["+",".join(map(str,l))+"]"
    assert d%2==0
    return f"v_pk_{op}_f32 {vr(d,2)}, "+", ".join(o)+f" op_sel:{f(lo)} op_sel_hi:{f(hi)}"+(f" neg_lo:{f(ng)} neg_hi:{f(ng)}" if any(ng) else "")
A=8; ACC=104; BB=128; S=160; U=168; WB=200; XG=248

LOC=int(os.environ.get('LOC','1'))
MAP2=("s_bfe_u32 s21, s5, 0x10002\ns_lshr_b32 s22, s5, 3\ns_and_b32 s23, s4, 3\ns_lshl_b32 s23, s23, 2\ns_and_b32 s6, s5, 3\ns_add_u32 s23, s23, s6" if LOC else
      "s_bfe_u32 s21, s4, 0x10001\ns_and_b32 s22, s4, 1\ns_lshl_b32 s22, s22, 1\ns_and_b32 s6, s5, 1\ns_add_u32 s22, s22, s6\ns_lshr_b32 s23, s5, 1")
MAP4=("s_lshl_b32 s51, s4, 1\ns_and_b32 s6, s5, 1\ns_add_u32 s51, s51, s6\ns_lshr_b32 s52, s5, 1" if LOC else
      "s_lshr_b32 s51, s4, 1\ns_lshl_b32 s51, s51, 2\ns_and_b32 s6, s5, 3\ns_add_u32 s51, s51, s6\ns_and_b32 s52, s4, 1\ns_lshl_b32 s52, s52, 3\ns_lshr_b32 s6, s5, 2\ns_add_u32 s52, s52, s6")
WOL=77824
def tr_loop(k,items,breg0,nbuf,mfn,hoff):
    n=len(items)
    def rd(i):
        a,o=items[i]; r=breg0+4*(i%nbuf)
        k(f"ds_read_b64_tr_b16 {vr(r,2)}, v{a} offset:{o}\nds_read_b64_tr_b16 {vr(r+2,2)}, v{a} offset:{o+hoff}")
    pre=min(nbuf-1,n)
    for i in range(pre): rd(i)
    issued=pre
    for i in range(n):
        k(f"s_waitcnt lgkmcnt({2*(issued-i-1)})")
        mfn(i, breg0+4*(i%nbuf))
        if issued<n: rd(issued); issued+=1
def chunk_offs(k,dst,per,stride,swz,t):
    k(f"s_mov_b32 s6, {(2**32+per-1)//per:#x}\ns_mov_b32 s7, {stride}")
    for i in range(3):
        d=dst+i
        k(f"v_lshrrev_b32 v{t}, 4, v4\nv_add_u32 v{t}, {64*i}, v{t}\nv_mul_hi_u32 v{d}, v{t}, s6\nv_mul_u32_u24 v{t+1}, {per}, v{d}\nv_sub_u32 v{t}, v{t}, v{t+1}")
        if swz: k(f"v_lshrrev_b32 v{t+1}, 2, v{d}\nv_and_b32 v{t+1}, 2, v{t+1}\nv_xor_b32 v{t}, v{t}, v{t+1}")
        k(f"v_mul_lo_u32 v{d}, v{d}, s7\nv_lshl_add_u32 v{d}, v{t}, 4, v{d}")
def w_dma(k,srd,vo,sl,sg,stride):
    for g in range(3):
        for i in range(3):
            k(f"s_mov_b32 m0, s{sl}\ns_add_u32 s{sl}, s{sl}, 1024\nbuffer_load_dwordx4 v{vo+i}, s[{srd}:{srd+3}], s{sg} offen lds")
        k(f"s_add_u32 s{sg}, s{sg}, {16*stride}")
def tr_addr(k,d,base):
    k(f"v_lshrrev_b32 v{d}, 2, v2\nv_lshl_add_u32 v{d}, v3, 3, v{d}\nv_mul_u32_u24 v{d}, 192, v{d}\nv_and_b32 v{d+1}, 3, v2\nv_lshl_add_u32 v{d}, v{d+1}, 3, v{d}\nv_add_u32 v{d}, {base}, v{d}")
    k(f"v_and_b32 v{d+2}, 1, v3\nv_lshlrev_b32 v{d+2}, 5, v{d+2}\nv_sub_u32 v{d+1}, v{d}, v{d+2}\nv_add_u32 v{d}, v{d}, v{d+2}\nv_add_u32 v{d+2}, 36864, v{d}\nv_add_u32 v{d+3}, 36864, v{d+1}")
def wo_dma(k,U=U,setup_only=False):
    chunk_offs(k,U,12,768,True,U+3)
    k(f"s_mul_i32 s36, s3, 9216\ns_add_u32 s36, s36, {WOL}\ns_mul_i32 s37, s3, {48*768}\ns_mul_i32 s6, s49, 192\ns_add_u32 s37, s37, s6")
    if not setup_only: w_dma(k,20,U,36,37,768)
def modpoll(k,name,sl=SLP,both=False):
    ex='v_and_b32 v6, 1, v3\nv_lshlrev_b32 v5, 2, v6\n' if both else ''
    k(f"s_cmp_lg_u32 s3, 7\ns_cbranch_scc1 {k.lab('pd'+name)}\nv_mov_b32 v5, 0\n{ex}s_mov_b32 s7, 0\n{k.lab('pl'+name)}:")
    k(f"buffer_load_dword v6, v5, s[96:99], 0 offen sc1\ns_waitcnt vmcnt(0)\nv_cmp_eq_u32 vcc, 0, v6\ns_add_u32 s7, s7, 1\ns_cmp_ge_u32 s7, 0x10000\ns_cbranch_scc1 {k.lab('pd'+name)}\ns_nop 2")
    k(f"s_cbranch_vccz {k.lab('pd'+name)}\ns_sleep {sl}\ns_branch {k.lab('pl'+name)}\n{k.lab('pd'+name)}:\ns_barrier")

def touch(k,lst,name):
    k(f"s_sub_u32 s6, s2, 64\ns_lshl_b32 s6, s6, 1\ns_and_b32 s7, s3, 1\ns_add_u32 s6, s6, s7\ns_lshl_b32 s6, s6, 12\nv_lshlrev_b32 v7, 2, v4\ns_lshr_b32 s7, s3, 1")
    for i,srd in enumerate(lst):
        k(f"s_cmp_lg_u32 s7, {i}\ns_cbranch_scc1 {k.lab('t%s%d'%(name,i))}\nbuffer_load_dword v199, v7, s[{srd}:{srd+3}], s6 offen\n{k.lab('t%s%d'%(name,i))}:")
def pmod(k):
    k("""
    v_and_b32 v8, 7, v0
    v_lshrrev_b32 v9, 3, v0
    v_mul_u32_u24 v10, 27648, v9
    v_lshl_add_u32 v10, v8, 4, v10
    v_mul_u32_u24 v11, 12, v9
    s_lshl_b32 s7, s2, 7
    """)
    for b in range(2): k(f"buffer_load_dwordx3 v[{80+4*b}:{82+4*b}], v11, s[28:31], 0 offen offset:{b*768}")
    for i in range(6):
        k(f"buffer_load_dwordx4 {vr(16+4*i,4)}, v10, s[32:35], s7 offen")
        if i<5: k(f"s_add_u32 s7, s7, 4608")
    k("s_waitcnt vmcnt(6)"); k.st(106)
    for r in range(40,52):
        src=80+4*((r-40)//6)+((r-40)%6)//2
        k(f"v_and_b32 v{r}, 0xffff0000, v{src}" if r%2 else f"v_lshlrev_b32 v{r}, 16, v{src}")
    for r in range(40,52): k(f"v_mul_f32 v{r+12}, 0xbfb8aa3b, v{r}\nv_exp_f32 v{r+12}, v{r+12}")
    for r in range(40,52): k(f"v_add_f32 v{r+12}, 1.0, v{r+12}\nv_rcp_f32 v{r+12}, v{r+12}")
    for r in range(40,52): k(f"v_mul_f32 v{r}, v{r}, v{r+12}\nv_cvt_pk_bf16_f32 v{r}, v{r}, v{r}\nv_lshlrev_b32 v{r}, 16, v{r}")
    AC=[64,72]
    for i in range(6):
        k(f"s_waitcnt vmcnt({5-i})")
        for j in range(4):
            k(f"v_lshlrev_b32 v5, 16, v{16+4*i+j}\nv_and_b32 v6, 0xffff0000, v{16+4*i+j}")
            op="v_fmac_f32" if i else "v_mul_f32"
            for b in range(2): k(f"{op} v{AC[b]+2*j}, v5, v{40+b*6+i}\n{op} v{AC[b]+2*j+1}, v6, v{40+b*6+i}")
    k.st(107)
    k("s_nop 1")
    for r in range(64,80): k(f"v_add_f32_dpp v{r}, v{r}, v{r} row_ror:8 row_mask:0xf bank_mask:0xf")
    k("s_nop 1")
    for j in range(8): k(f"v_permlane32_swap_b32 v{64+j}, v{72+j}")
    for j in range(8): k(f"v_add_f32 v{64+j}, v{64+j}, v{72+j}")
    k("s_nop 1")
    for j in range(4): k(f"v_permlane16_swap_b32 v{64+j}, v{68+j}")
    k("v_lshlrev_b32 v5, 9, v1\nv_lshl_add_u32 v5, v8, 6, v5\nv_lshl_add_u32 v5, v3, 4, v5")
    for j in range(4): k(f"v_add_f32 v{64+j}, v{64+j}, v{68+j}")
    k("ds_write_b128 v5, v[64:67]")
    k(f"s_waitcnt lgkmcnt(0)\ns_barrier\ns_cmp_ge_u32 s3, 2\ns_cbranch_scc1 {k.lab('m2')}\nv_lshlrev_b32 v5, 2, v0")
    for p in range(8): k(f"ds_read_b32 v{16+p}, v5 offset:{p*512}")
    k("s_waitcnt lgkmcnt(0)")
    for st in (4,2,1):
        for p in range(st): k(f"v_add_f32 v{16+p}, v{16+p}, v{16+p+st}")
    k(f"""
    v_cvt_pk_bf16_f32 v8, v16, v16
    v_lshlrev_b32 v8, 16, v8
    s_sub_u32 s7, s2, 6
    s_cmp_lt_u32 s7, 6
    s_cselect_b32 s6, 1.0, 0
    s_sub_u32 s7, s2, 24
    s_cmp_lt_u32 s7, 6
    s_cselect_b32 s6, 1.0, s6
    v_add_f32 v8, s6, v8
    v_cvt_pk_bf16_f32 v8, v8, v8
    v_lshlrev_b32 v8, 16, v8
    v_lshrrev_b32 v5, 4, v0
    v_lshlrev_b32 v5, 5, v5
    v_and_b32 v6, 7, v0
    v_lshl_add_u32 v5, v6, 2, v5
    v_bfe_u32 v6, v0, 3, 1
    v_mul_u32_u24 v6, 9216, v6
    v_add_u32 v5, v5, v6
    s_lshl_b32 s6, s2, 8
    buffer_store_dword v8, v5, s[8:11], s6 offen sc1
    {k.lab('m2')}:
    """); k.st(108); k(f"""
    s_waitcnt vmcnt(0)
    s_barrier
    """); k.st(109); k(f"""
    s_cmp_lg_u32 s3, 0
    s_cbranch_scc1 {k.lab('m3')}
    s_sub_u32 s7, s2, 18
    s_cmp_lt_u32 s7, 12
    s_cselect_b32 s6, 4, 0
    s_cselect_b32 s24, 11, 15
    s_cbranch_scc1 {k.lab('m5')}
    s_sub_u32 s7, s2, 12
    s_cmp_lt_u32 s7, 48
    s_cbranch_scc1 {k.lab('m3')}
    {k.lab('m5')}:
    v_mov_b32 v5, 0
    v_mov_b32 v6, 1
    s_mov_b64 exec, 1
    buffer_atomic_add v6, v5, s[96:99], s6 offen offset:128 sc0 sc1
    s_waitcnt vmcnt(0)
    v_readfirstlane_b32 s7, v6
    s_nop 3
    s_cmp_lg_u32 s7, s24
    s_cbranch_scc1 {k.lab('m4')}
    buffer_store_dword v6, v5, s[96:99], s6 offen sc1
    {k.lab('m4')}:
    s_mov_b64 exec, -1
    {k.lab('m3')}:
    """)

def pfc1(k):
    F=8; PQ=32; O=128; T=152
    k(f"""
    s_getpc_b64 s[52:53]
    {k.lab('pc')}:
    s_mov_b32 s54, {k.lab('end')}-{k.lab('pc')}
    s_mov_b32 s55, 0x20000
    s_lshl_b32 s6, s3, 13
    v_lshlrev_b32 v7, 3, v4
    buffer_load_dword v199, v7, s[52:55], s6 offen
    s_cmp_lt_u32 s3, 7
    s_cbranch_scc1 {k.lab('nt')}
    v_lshlrev_b32 v7, 15, v4
    buffer_load_dword v198, v7, s[96:99], 0 offen sc1
    buffer_load_dword v197, v7, s[8:11], 0 offen sc1
    buffer_load_dword v196, v7, s[44:47], 0 offen sc1
    {k.lab('nt')}:
    s_sub_u32 s24, s2, 36
    v_lshrrev_b32 v5, 7, v4
    v_mul_u32_u24 v5, 3072, v5
    v_and_b32 v6, 0x70, v4
    v_add_u32 v5, v5, v6
    s_mul_i32 s25, s3, 6144
    s_mul_i32 s26, s3, {48*3072}
    s_lshl_b32 s6, s24, 7
    s_add_u32 s26, s26, s6
    """)
    for i in range(6): k(f"s_mov_b32 m0, s25\ns_add_u32 s25, s25, 1024\nbuffer_load_dwordx4 v5, s[16:19], s26 offen lds\ns_add_u32 s26, s26, {8*3072}")
    wo_dma(k)
    k(f"""
    s_lshr_b32 s27, s3, 1
    s_and_b32 s25, s3, 1
    v_lshrrev_b32 v7, 2, v2
    v_lshl_add_u32 v7, v3, 3, v7
    v_lshlrev_b32 v7, 7, v7
    v_and_b32 v6, 3, v2
    v_lshl_add_u32 v7, v6, 3, v7
    s_mul_i32 s6, s25, 24576
    s_lshl_b32 s7, s27, 5
    s_add_u32 s6, s6, s7
    v_add_u32 v7, s6, v7
    s_lshl_b32 s6, s24, 2
    s_add_u32 s27, s27, s6
    s_min_u32 s6, s3, 5
    s_lshl_b32 s37, s6, 10
    s_cmp_ge_u32 s6, 3
    s_cselect_b32 s26, {9216-3072}, 0
    s_add_u32 s26, s26, s37
    s_add_u32 s26, s26, {1152*4:#x}
    s_add_u32 s37, s37, 53248
    s_mul_i32 s36, s27, 12288
    s_mul_i32 s6, s25, 6144
    s_add_u32 s36, s36, s6
    s_add_u32 s36, s36, {FC1_P:#x}
    s_mov_b32 s40, 0x3f803f80
    s_waitcnt vmcnt(0)
    """)
    ones(k); modpoll(k,'f',6,True)
    k("s_mov_b32 m0, s37\ns_nop 0"); dma(k,26,0,SC)
    for i in range(6): k(f"ds_read_b64_tr_b16 {vr(F+4*i,2)}, v7 offset:{i*4096}\nds_read_b64_tr_b16 {vr(F+4*i+2,2)}, v7 offset:{i*4096+512}")
    k("v_lshlrev_b32 v6, 5, v3\ns_mul_i32 s6, s25, 768\ns_add_u32 s6, s6, 53248\nv_add_u32 v6, s6, v6\ns_waitcnt vmcnt(0) lgkmcnt(0)\ns_barrier")
    for b in range(2):
        k("s_add_u32 s37, s36, 4096")
        u=S+2*b
        for i in range(6):
            if i%3==0:
                for ii in range(i,i+3):
                    for q in range(2):
                        k(f"ds_read_b128 {vr(PQ+16*ii+4*q,4)}, v6 offset:{b*3072+ii*128+16*q}\nds_read_b128 {vr(PQ+16*ii+8+4*q,4)}, v6 offset:{b*3072+1536+ii*128+16*q}")
            k(f"s_waitcnt lgkmcnt({8-4*(i%3)})")
            for j in range(4): k(f"v_lshlrev_b32 v{T+2*j}, 16, v{F+4*i+j}\nv_and_b32 v{T+2*j+1}, 0xffff0000, v{F+4*i+j}\nv_cvt_pk_bf16_f32 v{PQ+16*i+j}, v{PQ+16*i+2*j}, v{PQ+16*i+2*j+1}")
            for j in range(8): k(f"v_mul_f32 v{T+j}, v{T+j}, v{PQ+16*i+8+j}")
            mf(k,200+8*b+4,PQ+16*i,F+4*i,i==0)
            for j in range(4): k(f"v_cvt_pk_bf16_f32 v{O+4*i+j}, v{T+2*j}, v{T+2*j+1}")
            k("s_nop 1"); mf(k,200+8*b,ON,O+4*i,i==0)
            st4(k,O+4*i,4,36 if i<4 else 37,(i%4)*1024)
        if b==0: k("s_add_u32 s36, s36, 0x120000")
    k("s_nop 7")
    for j in range(4): k(f"v_mov_b32 v{S+j}, v{200+4*j}")
    k(f"""
    s_lshr_b32 s6, s3, 1
    s_lshl_b32 s6, s6, 10
    s_add_u32 s6, s6, 49152
    v_add_u32 v5, s6, v4
    s_lshl_b32 s35, s24, 2
    s_add_u32 s35, s35, 1024
    s_cmp_eq_u32 s25, 0
    s_cbranch_scc1 {k.lab('f1')}
    ds_write_b128 v5, {vr(S,4)}
    s_waitcnt lgkmcnt(0)
    s_barrier
    s_branch {k.lab('p1e')}
    {k.lab('f1')}:
    s_barrier
    ds_read_b128 {vr(T,4)}, v5
    s_lshl_b32 s6, s27, 6
    s_add_u32 s6, s6, {UV:#x}
    v_lshlrev_b32 v5, 2, v2
    s_waitcnt lgkmcnt(0)
    """)
    for j in range(4):
        k(f"v_add_f32 v{S+j}, v{S+j}, v{T+j}\nbuffer_store_dword v{S+j}, v5, s[8:11], s6 offen sc1\ns_add_u32 s6, s6, 6144")
    k(f"s_branch {k.lab('p1e')}")

def p1(k):
    k(f"""
    s_lshl_b32 s48, s4, 3
    s_and_b32 s6, s5, 7
    s_add_u32 s48, s48, s6
    s_lshr_b32 s49, s5, 3
    s_mul_i32 s50, s49, 6
    s_add_u32 s50, s50, s3
    s_waitcnt lgkmcnt(0)
    s_cmp_lt_u32 s2, 36
    s_cbranch_scc1 {k.lab('mod')}
    s_cmp_ge_u32 s2, 64
    s_cbranch_scc1 {k.lab('gemm')}
    s_cmp_lt_u32 s2, 36
    s_cbranch_scc1 {k.lab('mod')}
    s_cmp_lt_u32 s2, 60
    s_cbranch_scc1 {k.lab('fc1')}
    v_mov_b32 v12, 0
    v_lshlrev_b32 v5, 7, v0
    s_sub_u32 s6, s2, 60
    s_lshl_b32 s6, s6, 16
    s_add_u32 s6, s6, {FL:#x}
    """)
    k("buffer_store_dword v12, v5, s[8:11], s6 offen sc1")
    k(f"""
    s_branch {k.lab('m2')}
    {k.lab('mod')}:
    """)
    k.st(105); pmod(k)
    k(f"{k.lab('idle')}:"); modpoll(k,'i',16); k.st(114)
    k(f"s_cmp_ge_u32 s2, 36\ns_cbranch_scc1 {k.lab('i2')}\ns_lshl_b32 s35, s2, 2\ns_add_u32 s35, s35, 1120")
    k(f"""
    s_load_dwordx2 s[16:17], s[0:1], {KOFF['fc2']}
    s_mul_hi_u32 s24, s2, 0x2aaaaaab
    s_mul_i32 s6, s24, 6
    s_sub_u32 s25, s2, s6
    s_lshl_b32 s24, s24, 3
    s_add_u32 s24, s24, s3
    s_mul_i32 s26, s24, {32*768}
    s_lshl_b32 s6, s25, 7
    s_add_u32 s26, s26, s6
    s_lshl_b32 s27, s3, 12
    s_add_u32 s27, s27, 8192
    v_lshrrev_b32 v5, 7, v4
    v_mul_u32_u24 v5, 768, v5
    v_and_b32 v6, 0x70, v4
    v_add_u32 v5, v5, v6
    v_lshrrev_b32 v7, 2, v2
    v_lshl_add_u32 v7, v3, 2, v7
    v_lshlrev_b32 v7, 7, v7
    v_and_b32 v6, 3, v2
    v_lshl_add_u32 v7, v6, 3, v7
    v_add_u32 v7, s27, v7
    s_waitcnt lgkmcnt(0)
    """)
    for i in range(4): k(f"s_mov_b32 m0, s27\ns_add_u32 s27, s27, 1024\nbuffer_load_dwordx4 v5, s[16:19], s26 offen lds\ns_add_u32 s26, s26, {8*768}")
    k(f"s_mul_i32 s26, s25, {4*49152}\ns_lshl_b32 s6, s24, 10\ns_add_u32 s26, s26, s6\ns_add_u32 s26, s26, {FC2_P:#x}\ns_waitcnt vmcnt(0)")
    for c in range(4): k(f"ds_read_b64_tr_b16 {vr(8+4*c,2)}, v7 offset:{c*32}\nds_read_b64_tr_b16 {vr(10+4*c,2)}, v7 offset:{c*32+2048}")
    k("s_waitcnt lgkmcnt(0)")
    for c in range(4): st4(k,8+4*c,4,26); k("s_add_u32 s26, s26, 49152")
    signal(k,'m',35)
    k(f"{k.lab('i2')}:"); wo_dma(k); k("s_waitcnt vmcnt(0)\ns_barrier"); k(f"s_branch {k.lab('p1x')}\n{k.lab('fc1')}:")
    pfc1(k)
    k(f"""
    {k.lab('gemm')}:
    """)
    if not os.environ.get('NOTOUCH'): touch(k,[24,20],'a')
    k(f"""
    s_sub_u32 s41, s5, 8
    s_lshl_b32 s28, s4, 1
    s_and_b32 s6, s41, 1
    s_add_u32 s28, s28, s6
    s_lshr_b32 s29, s41, 1
    s_lshl_b32 s42, s28, 3
    s_add_u32 s42, s42, s3
    s_mul_i32 s30, s42, 12288
    """)
    XL=61440; XO=U+4
    k(f"s_mov_b32 s6, {(2**32+47)//48:#x}")
    for i in range(3):
        d=XO+i; t=XO+3
        k(f"v_lshrrev_b32 v{t}, 4, v4\nv_add_u32 v{t}, {64*i}, v{t}\nv_mul_hi_u32 v{d}, v{t}, s6\nv_mul_u32_u24 v{t+1}, 48, v{d}\nv_sub_u32 v{t}, v{t}, v{t+1}\nv_xor_b32 v{t}, v{t}, v{d}\nv_mul_u32_u24 v{d}, 768, v{d}\nv_lshl_add_u32 v{d}, v{t}, 4, v{d}")
    k(f"s_mul_i32 s31, s3, 12288\ns_add_u32 s31, s31, {XL}\nv_mul_u32_u24 v7, 768, v2\nv_add_u32 v7, s31, v7\nv_xor_b32 v6, v2, v3")
    k.st(110)
    for m_ in range(4):
        for i in range(3):
            k(f"s_mov_b32 m0, s31\ns_add_u32 s31, s31, 1024\nv_xor_b32 v5, {m_<<6}, v{XO+i}\nbuffer_load_dwordx4 v5, s[12:15], s30 offen lds")
        k("s_add_u32 s30, s30, 3072")
    k.st(112)
    for b_ in range(4): k(f"v_xor_b32 v{XO+8+b_}, {4*b_}, v6\nv_lshl_add_u32 v{XO+8+b_}, v{XO+8+b_}, 4, v7")
    chunk_offs(k,U,12,2304,True,S)
    k(f"s_mul_i32 s36, s3, 3072\ns_mul_i32 s37, s3, {16*2304}\ns_mul_i32 s6, s29, 192\ns_add_u32 s37, s37, s6")
    def wgrp():
        for i in range(3): k(f"s_mov_b32 m0, s36\ns_add_u32 s36, s36, 1024\nbuffer_load_dwordx4 v{U+i}, s[24:27], s37 offen lds")
    k("s_waitcnt vmcnt(0) lgkmcnt(0)"); k.st(113)
    for s in range(12): k(f"ds_read_b128 {vr(A+4*s,4)}, v{XO+8+s%4} offset:{(s//4)*256}")
    ones(k); k("s_waitcnt lgkmcnt(0)"); k.st(1)
    for s_ in range(12): mstat(k,A+4*s_,s_==0)
    for g in range(2):
        wgrp(); k(f"s_add_u32 s36, s36, {7*3072}\ns_add_u32 s37, s37, {128*2304}")
    XF=lambda e: (56+e if e<48 else 200+e-48)
    for i in range(48): k(f"v_lshlrev_b32 v{XF(2*i)}, 16, v{A+i}\nv_and_b32 v{XF(2*i+1)}, 0xffff0000, v{A+i}")
    k("s_barrier")
    wgrp(); wo_dma(k,XO,True)
    k(f"s_cmp_lg_u32 s3, 6\ns_cbranch_scc1 {k.lab('n6')}\nv_lshlrev_b32 v7, 15, v4\nbuffer_load_dword v197, v7, s[8:11], 0 offen sc1\nbuffer_load_dword v196, v7, s[44:47], 0 offen sc1\n{k.lab('n6')}:")
    k(f"v_mov_b32 v198, 0\ns_cmp_lg_u32 s3, 7\ns_cbranch_scc1 {k.lab('n7')}\nbuffer_load_dword v198, v198, s[96:99], 0 offen sc1\n{k.lab('n7')}:")
    mstat_fin(k,S)
    k(f"v_mul_f32 v{S}, v{S}, v{S+1}")
    for e in range(0,96,2): k(pk('fma',XF(e),XF(e),('b',S+1),('nb',S)))
    k(f"""
    s_lshr_b32 s43, s28, 3
    s_mul_i32 s30, s43, 9216
    s_and_b32 s6, s3, 1
    s_lshl_b32 s6, s6, 10
    s_add_u32 s30, s30, s6
    s_bitcmp1_b32 s3, 1
    s_cselect_b32 s6, 1536, 0
    s_add_u32 s30, s30, s6
    s_and_b32 s31, s3, 3
    s_lshl_b32 s31, s31, 10
    s_add_u32 s31, s31, 73728
    """)
    k.st(2)
    k(f"s_waitcnt vmcnt(0)\nv_cmp_eq_u32 vcc, 0, v198\ns_nop 4\ns_cbranch_vccz {k.lab('pdg')}")
    modpoll(k,'g'); k.st(21)
    k("s_mov_b32 m0, s31\ns_nop 0"); dma(k,30,0,SC)
    tr_addr(k,U,0)
    qs=f2u(192**-0.5*math.log2(math.e))
    k(f"""
    s_cmp_lt_u32 s29, 4
    s_cselect_b32 s30, {qs:#x}, 1.0
    s_cselect_b64 vcc, -1, 0
    s_cselect_b32 s33, -1, -2
    s_and_b32 s33, s42, s33
    s_mul_i32 s33, s33, 12
    s_lshr_b32 s31, s29, 2
    s_mul_i32 s31, s31, {ACT:#x}
    s_and_b32 s32, s29, 3
    s_mul_i32 s32, s32, 3
    s_add_u32 s32, s32, s33
    s_lshl_b32 s32, s32, 10
    s_add_u32 s31, s31, s32
    s_add_u32 s31, s31, {Q_P:#x}
    s_and_b32 s34, s3, 1
    v_bfe_u32 v5, v2, 2, 1
    v_mul_u32_u24 v5, 12288, v5
    v_lshl_add_u32 v5, v3, 8, v5
    v_lshrrev_b32 v6, 3, v2
    v_lshl_add_u32 v5, v6, 6, v5
    v_and_b32 v6, 3, v2
    v_lshl_add_u32 v5, v6, 4, v5
    s_lshl_b32 s6, s34, 7
    v_add_u32 v5, s6, v5
    v_cndmask_b32 v5, v5, v4, vcc
    s_lshl_b32 s35, s28, 6
    s_lshl_b32 s6, s29, 2
    s_add_u32 s35, s35, s6
    v_lshlrev_b32 v1, 5, v3
    v_add_u32 v1, 73728, v1
    s_waitcnt vmcnt(0)
    s_barrier
    """)
    k.st(22)
    k(f"s_cmp_ge_u32 s29, 8\ns_cbranch_scc1 {k.lab('v')}")
    def body(isv):
        PP=176
        order=[(s,cb) for s in range(12) for cb in range(4)]+[(s,cb) for s in range(12) for cb in (4,5)]
        ops=[]
        for i,(s,cb) in enumerate(order):
            if cb==0: ops+=[('p',s,0),('p',s,1)]
            ops.append(('w',s,cb))
        nw=[0]; reg={}; iss=[0]
        def rd(n):
            t,s,x=ops[n]
            if t=='p': k(f"ds_read_b128 {vr(PP+8*x,4)}, v1 offset:{s*128+16*x}\nds_read_b128 {vr(PP+8*x+4,4)}, v1 offset:{2048+s*128+16*x}")
            else:
                r=BB+4*(nw[0]%8); nw[0]+=1; reg[n]=r; a_=U+(x%2)+2*(s//6); o=(s%6)*6144+x*32
                k(f"ds_read_b64_tr_b16 {vr(r,2)}, v{a_} offset:{o}\nds_read_b64_tr_b16 {vr(r+2,2)}, v{a_} offset:{o+768}")
        def fill(n):
            while iss[0]<len(ops) and iss[0]<n+6: rd(iss[0]); iss[0]+=1
        def epi(c):
            R=ACC+8*c; D=S+4*(c%2)
            if isv:
                swap_pack(k,R,R+4,D); st4(k,D,5,31); k("s_add_u32 s31, s31, 65536")
            else:
                for j in range(8): k(f"v_mul_f32 v{R+j}, s30, v{R+j}")
                for j in range(4): k(f"v_cvt_pk_bf16_f32 v{D+j}, v{R+2*j}, v{R+2*j+1}")
                st4(k,D,5,31,c*1024)
        fill(0); i=0
        for n,(t,s,x) in enumerate(ops):
            k(f"s_waitcnt lgkmcnt({2*(iss[0]-n-1)})")
            if t=='p':
                for j in range(4): e=8*s+4*x+j; k(f"v_fma_f32 v{XF(e)}, v{XF(e)}, v{PP+8*x+4+j}, v{PP+8*x+j}")
                for j in range(2): e=8*s+4*x+2*j; k(f"v_cvt_pk_bf16_f32 v{A+4*s+2*x+j}, v{XF(e)}, v{XF(e+1)}")
            else:
                if isv: mf(k,ACC+4*x,A+4*s,reg[n],s==0)
                else: mf(k,ACC+4*x,reg[n],A+4*s,s==0)
                if i==52: epi(0)
                if i==60: epi(1)
                if i%5==0 and i<45:
                    q=i//5
                    k(f"s_mov_b32 m0, s36\ns_add_u32 s36, s36, 1024\nbuffer_load_dwordx4 v{XO+q%3}, s[20:23], s37 offen lds")
                    if q%3==2: k(f"s_add_u32 s37, s37, {16*768}")
                i+=1
            fill(n+1)
        k("s_nop 7"); epi(2)
        k("v_lshrrev_b32 v1, 6, v0")
    body(False)
    k(f"""
    s_branch {k.lab('p1e')}
    {k.lab('v')}:
    s_sub_u32 s31, s29, 8
    s_mul_i32 s31, s31, 6
    s_mul_i32 s32, s43, 24
    s_add_u32 s31, s31, s32
    s_lshl_b32 s31, s31, 5
    s_and_b32 s32, s42, 63
    s_lshr_b32 s32, s32, 1
    s_add_u32 s31, s31, s32
    s_lshl_b32 s31, s31, 10
    s_lshl_b32 s32, s34, 9
    s_add_u32 s31, s31, s32
    s_add_u32 s31, s31, {VT_P:#x}
    v_and_b32 v5, 1, v3
    v_lshlrev_b32 v5, 15, v5
    v_lshrrev_b32 v6, 1, v3
    v_lshl_add_u32 v5, v6, 8, v5
    v_lshl_add_u32 v5, v2, 4, v5
    """)
    body(True)
    k(f"{k.lab('p1e')}:"); k.st(3)
    signal(k,'1',35)
    k(f"{k.lab('p1x')}:"); k.st(4)

def p3setup(k):
    k(f"""
    s_cmp_ge_u32 s3, 6
    s_cbranch_scc1 {k.lab('p3s')}
    v_mul_u32_u24 v6, 768, v2
    v_lshl_add_u32 v6, v3, 3, v6
    s_mul_i32 s29, s48, {32*768}
    s_lshl_b32 s6, s50, 5
    s_add_u32 s29, s29, s6
    s_add_u32 s30, s29, {16*768}
    """)
    ld(k,XG,2,6,29,srd=12); ld(k,XG+2,2,6,30,srd=12)
    tr_addr(k,U,WOL)
    k(f"s_bitcmp1_b32 s3, 0\ns_cselect_b64 vcc, -1, 0\ns_lshl_b32 s6, s3, 5\nv_cndmask_b32 v{U}, v{U}, v{U+1}, vcc\nv_add_u32 v{U}, s6, v{U}\nv_add_u32 v{U+1}, 36864, v{U}")
    for s in range(12):
        for hh in range(2): k(f"ds_read_b64_tr_b16 {vr(WB+4*s+2*hh,2)}, v{U+s//6} offset:{(s%6)*6144+hh*768}")
    k(f"s_waitcnt lgkmcnt(0)\n{k.lab('p3s')}:")

def p2(k):
    QL=0; PL=24576; VL=57344; ML=155648; SL=157696
    KF=8; SA=56; B2=88; T=120
    k(f"""
    s_lshr_b32 s20, s4, 2
    {MAP2}
    s_lshl_b32 s24, s20, 6
    s_lshl_b32 s6, s23, 2
    s_add_u32 s24, s24, s6
    s_lshr_b32 s6, s3, 1
    s_add_u32 s25, s24, s6
    s_mul_i32 s25, s25, 12
    s_mul_i32 s26, s21, 6
    s_add_u32 s25, s25, s26
    s_and_b32 s6, s3, 1
    s_mul_i32 s6, s6, 3
    s_add_u32 s25, s25, s6
    s_lshl_b32 s25, s25, 10
    s_add_u32 s25, s25, {Q_P:#x}
    s_lshl_b32 s27, s20, 6
    s_lshl_b32 s6, s22, 4
    s_add_u32 s27, s27, s6
    s_lshl_b32 s6, s3, 1
    s_add_u32 s27, s27, s6
    s_mul_i32 s27, s27, 12
    s_add_u32 s27, s27, s26
    s_lshl_b32 s27, s27, 10
    s_add_u32 s27, s27, {K_P:#x}
    s_add_u32 s36, s27, 12288
    s_mul_i32 s28, s20, 24
    s_mul_i32 s6, s21, 12
    s_add_u32 s28, s28, s6
    s_lshl_b32 s28, s28, 5
    s_lshl_b32 s6, s22, 3
    s_add_u32 s28, s28, s6
    s_add_u32 s28, s28, s3
    s_lshl_b32 s28, s28, 10
    s_add_u32 s28, s28, {VT_P:#x}
    s_lshl_b32 s29, s3, 10
    s_add_u32 s29, s29, {VL}
    """)
    poll(k,'2',f"""
    v_bfe_u32 v6, v0, 2, 2
    v_min_u32 v6, 2, v6
    v_bfe_u32 v7, v0, 1, 1
    s_lshl_b32 s6, s22, 1
    v_add_u32 v7, s6, v7
    s_lshr_b32 s6, s23, 1
    v_mov_b32 v5, s6
    v_cmp_eq_u32 vcc, 0, v6
    s_lshl_b32 s6, s20, 9
    s_lshl_b32 s7, s21, 3
    v_cndmask_b32 v7, v7, v5, vcc
    s_add_u32 s6, s6, s7
    v_lshlrev_b32 v7, 6, v7
    v_lshl_add_u32 v7, v6, 4, v7
    v_and_b32 v6, 1, v0
    v_lshl_add_u32 v7, v6, 2, v7
    v_add_u32 v5, s6, v7
    """)
    k.st()
    k("s_mul_i32 s6, s3, 3072\ns_mov_b32 m0, s6\ns_nop 0")
    for i in range(3): dma(k,25,i*1024,SC)
    def ldk(s):
        if s==4: k("s_add_u32 s27, s27, 4096\ns_add_u32 s36, s36, 4096")
        for kb in range(2): ld(k,KF+24*kb+4*s,4,4,(27,36)[kb],(s%4)*1024,sc=SC)
    for s in range(6): ldk(s)
    k("s_waitcnt vmcnt(12)\ns_barrier"); k.st()
    items=[(4,QL+(qb*6+s)*1024) for s in range(6) for qb in range(4)]
    def mf1(i,b):
        s,qb=divmod(i,4)
        if qb==0: k("s_waitcnt vmcnt(10)")
        if qb in (0,2):
            k(f"s_mov_b32 m0, s29\ns_add_u32 s29, s29, 8192"); dma(k,28,0,SC); k("s_add_u32 s28, s28, 32768")
        for kb in range(2): mf(k,SA+8*qb+4*kb,KF+24*kb+4*s,b,s==0)
    gemm_loop(k,items,B2,8,mf1); k.st()
    k(f"v_lshrrev_b32 v5, 4, v4\nv_min_u32 v5, 59, v5\nv_lshlrev_b32 v5, 2, v5\nv_add_u32 v5, 1024, v5\nv_lshlrev_b32 v5, 5, v5\ns_mov_b32 s6, {FL:#x}\nbuffer_load_dword v199, v5, s[8:11], s6 offen sc1")
    k(f"""
    v_and_b32 v5, 63, v0
    v_lshlrev_b32 v5, 5, v5
    v_lshl_add_u32 v5, v1, 2, v5
    v_add_u32 v5, {ML}, v5
    v_lshlrev_b32 v6, 5, v2
    v_add_u32 v6, {ML}, v6
    s_lshl_b32 s6, s3, 10
    s_add_u32 s6, s6, {PL}
    v_add_u32 v7, s6, v4
    """)
    M=KF
    def max8(m,r): k(f"v_max3_f32 v{m}, v{r}, v{r+1}, v{r+2}\nv_max3_f32 v{m}, v{m}, v{r+3}, v{r+4}\nv_max3_f32 v{m}, v{m}, v{r+5}, v{r+6}\nv_max_f32 v{m}, v{m}, v{r+7}")
    for qb in range(4): max8(M+qb,SA+8*qb)
    def treduce(op,addr_off):
        k(f"s_nop 1\nv_permlane32_swap_b32 v{M}, v{M+2}\nv_permlane32_swap_b32 v{M+1}, v{M+3}\ns_nop 1\n{op} v{M}, v{M}, v{M+2}\n{op} v{M+1}, v{M+1}, v{M+3}")
        k(f"s_nop 1\nv_permlane16_swap_b32 v{M}, v{M+1}\ns_nop 1\n{op} v{M}, v{M}, v{M+1}\nds_write_b32 v5, v{M} offset:{addr_off}")
    treduce("v_max_f32",0)
    k("s_waitcnt lgkmcnt(0)\ns_barrier")
    G=KF+8
    for qb in range(4):
        for q in range(2): k(f"ds_read_b128 {vr(G+8*qb+4*q,4)}, v6 offset:{qb*512+16*q}")
    for qb in range(4):
        k(f"s_waitcnt lgkmcnt({6-2*qb})"); max8(T+qb,G+8*qb)
    k("s_mov_b32 s40, 0x3f803f80")
    for qb in range(4):
        r=SA+8*qb
        for j in (0,2,4,6): k(pk('add',r+j,r+j,('nb',T+qb)))
        for j in range(8): k(f"v_exp_f32 v{r+j}, v{r+j}")
        k("s_nop 0")
        for j in range(4): k(f"v_cvt_pk_bf16_f32 v{B2+4*qb+j}, v{r+2*j}, v{r+2*j+1}")
        k(f"ds_write_b128 v7, {vr(B2+4*qb,4)} offset:{qb*8192}")
        k(pk('add',r,r,r+2)); k(pk('add',r+4,r+4,r+6)); k(pk('add',r,r,r+4)); k(f"v_add_f32 v{M+qb}, v{r}, v{r+1}")
    k("s_nop 1")
    treduce("v_add_f32",SL-ML)
    k(f"s_waitcnt vmcnt(0) lgkmcnt(0)\nv_cmp_eq_u32 vcc, 0, v199\nv_mov_b32 v198, v6\ns_nop 3\ns_cbranch_vccz {k.lab('pds')}")
    poll(k,'s',"v_lshrrev_b32 v5, 4, v4\nv_min_u32 v5, 59, v5\nv_lshlrev_b32 v5, 2, v5\nv_add_u32 v5, 1024, v5",bar=False)
    k("v_mov_b32 v6, v198")
    k(f"""
    s_and_b32 s30, s3, 3
    s_lshr_b32 s31, s3, 2
    s_mul_i32 s6, s30, 24576
    s_add_u32 s6, s6, {VL}
    v_add_u32 v5, s6, v4
    s_lshl_b32 s6, s31, 14
    s_add_u32 s6, s6, {PL}
    v_add_u32 v7, s6, v4
    s_lshl_b32 s6, s31, 10
    v_add_u32 v6, s6, v6
    s_cmp_eq_u32 s31, 0
    s_cselect_b64 vcc, -1, 0
    v_cndmask_b32 v{T}, v{T+2}, v{T}, vcc
    v_cndmask_b32 v{T+1}, v{T+3}, v{T+1}, vcc
    """)
    k.st(); k("s_waitcnt vmcnt(0) lgkmcnt(0)\ns_barrier"); k.st()
    for qq in range(2):
        for q in range(2): k(f"ds_read_b128 {vr(G+8*qq+4*q,4)}, v6 offset:{SL-ML+qq*512+16*q}")
    OA=SA; PR=128
    k(f"""
    s_lshl_b32 s6, s31, 1
    s_add_u32 s24, s24, s6
    s_mul_i32 s32, s24, 12288
    s_mul_i32 s6, s22, {ACT:#x}
    s_add_u32 s32, s32, s6
    s_add_u32 s32, s32, {O_P:#x}
    s_mul_i32 s33, s21, 12
    s_mul_i32 s6, s30, 3
    s_add_u32 s33, s33, s6
    s_lshl_b32 s33, s33, 9
    s_add_u32 s32, s32, s33
    v_and_b32 v197, 1, v3
    v_mul_u32_u24 v197, 12288, v197
    v_lshrrev_b32 v6, 1, v3
    v_lshl_add_u32 v197, v6, 8, v197
    v_lshl_add_u32 v197, v2, 4, v197
    """)
    seq=[]
    for ks in range(8): seq+=[('p',0,ks),('p',1,ks),('v',0,ks)]
    seq+=[('v',j,ks) for j in (1,2) for ks in range(8)]
    nv=[0]; reg={}
    def rd(i):
        t,x,ks=seq[i]
        if t=='p': r=PR+32*x+4*ks; a_=7
        else: r=B2+4*(nv[0]%8); nv[0]+=1; a_=5
        reg[i]=r; k(f"ds_read_b128 {vr(r,4)}, v{a_} offset:{x*8192+ks*1024}")
    def oepi(j):
        for qq in range(2):
            r=OA+8*j+4*qq
            for t in range(4): k(f"v_mul_f32 v{r+t}, v{r+t}, v{G+8*qq+1}")
        swap_pack(k,OA+8*j,OA+8*j+4,40+4*j); st4(k,40+4*j,197,32,j*512)
    issued=0
    def fill(i):
        nonlocal issued
        while issued<len(seq) and issued<i+9 and sum(1 for q in range(i,issued+1) if seq[q][0]=='v')<=7:
            rd(issued); issued+=1
    fill(0)
    for i,(t,x,ks) in enumerate(seq):
        if t=='v':
            k(f"s_waitcnt lgkmcnt({issued-i-1})")
            for qq in range(2): mf(k,OA+8*x+4*qq,reg[i],PR+32*qq+4*ks,ks==0)
            if x==0 and ks==1:
                for qq in range(2):
                    r=G+8*qq
                    k(f"v_add_f32 v{r}, v{r}, v{r+1}")
                    for j in range(2,8): k(f"v_add_f32 v{r}, v{r}, v{r+j}")
                    k(f"v_rcp_f32 v{r+1}, v{r}\nv_log_f32 v{r+2}, v{r}")
            if x and ks==3: oepi(x-1)
        fill(i+1)
    k.st()
    k("s_nop 7"); oepi(2)
    k(f"""
    s_lshl_b32 s35, s20, 4
    s_add_u32 s35, s35, s23
    s_lshl_b32 s35, s35, 6
    s_lshl_b32 s6, s21, 4
    s_add_u32 s35, s35, s6
    s_lshl_b32 s6, s22, 2
    s_add_u32 s35, s35, s6
    s_add_u32 s35, s35, 2048
    s_cmp_lg_u32 s30, 0
    s_cbranch_scc1 {k.lab('p2e')}
    v_add_f32 v{T}, v{T}, v{G+2}
    v_add_f32 v{T+1}, v{T+1}, v{G+10}
    v_cmp_eq_u32 vcc, 0, v3
    s_lshl_b32 s6, s22, 1
    s_add_u32 s6, s6, s21
    v_cndmask_b32 v{T}, v{T+1}, v{T}, vcc
    s_lshl_b32 s6, s6, 13
    s_lshl_b32 s7, s24, 6
    s_add_u32 s6, s6, s7
    s_add_u32 s6, s6, {LSE:#x}
    v_lshrrev_b32 v5, 2, v4
    s_mov_b32 exec_hi, 0
    buffer_store_dword v{T}, v5, s[8:11], s6 offen sc1
    s_mov_b64 exec, -1
    {k.lab('p2e')}:
    """)
    signal(k,'2',35); k.st()
    if LOC>1:
        for j in range(3): ld(k,64,4,197,32,j*512,sc=SC)

FC1L=24576
def p4setup(k):
    k(f"""
    {MAP4}
    s_lshl_b32 s53, s51, 3
    s_add_u32 s53, s53, s3
    s_lshr_b32 s25, s51, 3
    s_and_b32 s27, s3, 1
    s_mul_i32 s27, s27, 20480
    s_lshl_b32 s6, s3, 13
    s_add_u32 s6, s6, 40960
    s_cmp_lt_u32 s3, 4
    s_cselect_b32 s27, s6, s27
    s_mul_i32 s28, s52, 73728
    s_add_u32 s28, s28, s27
    s_mul_i32 s29, s25, 0x120000
    s_add_u32 s28, s28, s29
    s_add_u32 s28, s28, {FC1_P:#x}
    s_add_u32 s27, s27, {FC1L}
    """)
    k(f"s_lshr_b32 s6, s48, 5\ns_mul_i32 s31, s6, 9216\ns_lshl_b32 s6, s50, 6\ns_add_u32 s31, s31, s6\ns_add_u32 s31, s31, {768*4}\nv_lshlrev_b32 v7, 4, v3")
    ld(k,XG+4,4,7,31,sc=SC)
    k(f"s_cmp_ge_u32 s3, 4\ns_cbranch_scc1 {k.lab('p4z')}"); f1loop(k,2,'p4l'); k(f"{k.lab('p4z')}:")
def f1loop(k,n,nm):
    k(f"s_mov_b32 s39, {n}\n{k.lab(nm)}:\ns_mov_b32 m0, s27\ns_add_u32 s27, s27, 4096")
    for i in range(4): dma(k,28,i*1024,SC)
    k(f"s_add_u32 s28, s28, 4096\ns_sub_u32 s39, s39, 1\ns_cmp_lg_u32 s39, 0\ns_cbranch_scc1 {k.lab(nm)}")

def p3(k):
    OP=8; LS=56; t=ACC
    k(f"""
    s_lshl_b32 s22, s48, 1
    s_lshr_b32 s6, s3, 2
    s_add_u32 s23, s22, s6
    s_and_b32 s24, s3, 3
    s_mul_i32 s25, s23, 12288
    s_mul_i32 s6, s24, 3072
    s_add_u32 s25, s25, s6
    s_add_u32 s25, s25, {O_P:#x}
    s_lshr_b32 s6, s24, 1
    s_lshl_b32 s26, s6, 13
    s_lshl_b32 s6, s23, 6
    s_add_u32 s26, s26, s6
    s_add_u32 s26, s26, {LSE:#x}
    """)
    poll(k,'3',"s_lshr_b32 s6, s48, 1\ns_lshl_b32 s6, s6, 6\ns_add_u32 s6, s6, 2048\nv_and_b32 v5, 7, v0\nv_lshlrev_b32 v5, 2, v5\nv_add_u32 v5, s6, v5")
    k.st(); k("v_lshlrev_b32 v5, 2, v2")
    for sp in range(4):
        ld(k,LS+sp,1,5,26,sc=SC)
        if sp<3: k("s_add_u32 s26, s26, 16384")
    for i in range(3):
        for sp in range(4):
            k(f"s_add_u32 s6, s25, {sp*ACT:#x}"); ld(k,OP+16*i+4*sp,4,4,6,i*1024,sc=SC)
    k(f"s_waitcnt vmcnt(12)\nv_max3_f32 v{t}, v{LS}, v{LS+1}, v{LS+2}\nv_max_f32 v{t}, v{t}, v{LS+3}")
    for sp in range(4): k(f"v_sub_f32 v{LS+sp}, v{LS+sp}, v{t}")
    for sp in range(4): k(f"v_exp_f32 v{LS+sp}, v{LS+sp}")
    k(f"s_nop 0\nv_add_f32 v{t}, v{LS}, v{LS+1}\nv_add_f32 v{t}, v{t}, v{LS+2}\nv_add_f32 v{t}, v{t}, v{LS+3}\nv_rcp_f32 v{t}, v{t}\ns_mul_i32 s6, s3, 3072")
    for sp in range(4): k(f"v_mul_f32 v{LS+sp}, v{LS+sp}, v{t}")
    k("v_add_u32 v5, s6, v4")
    for i in range(3):
        for sp in range(4):
            k(f"s_waitcnt vmcnt({11-4*i-sp})")
            for j in range(4):
                r=OP+16*i+4*sp+j
                u=60+2*j
                k(f"v_lshlrev_b32 v{u}, 16, v{r}\nv_and_b32 v{u+1}, 0xffff0000, v{r}")
            for j in range(4):
                u=60+2*j
                k(pk('fma',t+2*j,u,('b',LS+sp),t+2*j) if sp else pk('mul',t+2*j,u,('b',LS+sp)))
        for j in range(4): k(f"v_cvt_pk_bf16_f32 v{OP+16*i+j}, v{t+2*j}, v{t+2*j+1}")
        k(f"ds_write_b128 v5, {vr(OP+16*i,4)} offset:{i*1024}")
    k(f"""
    s_lshr_b32 s35, s48, 2
    s_lshl_b32 s35, s35, 6
    s_and_b32 s6, s48, 3
    s_lshl_b32 s6, s6, 4
    s_add_u32 s35, s35, s6
    s_lshl_b32 s6, s49, 2
    s_add_u32 s35, s35, s6
    s_add_u32 s35, s35, 4096
    s_waitcnt lgkmcnt(0)
    s_barrier
    """)
    k.st(); k(f"s_cmp_ge_u32 s3, 6\ns_cbranch_scc1 {k.lab('p3d')}")
    items=[(4,(rb*12+s)*1024) for s in range(12) for rb in range(2)]
    gemm_loop(k,items,OP,12,lambda i,b: mf(k,ACC+4*(i%2),WB+4*(i//2),b,i<2))
    k(f"""
    s_mul_i32 s32, s22, 12288
    s_lshl_b32 s6, s50, 9
    s_add_u32 s32, s32, s6
    s_add_u32 s32, s32, {X1_P:#x}
    v_and_b32 v5, 1, v3
    v_mul_u32_u24 v5, 12288, v5
    v_lshrrev_b32 v6, 1, v3
    v_lshl_add_u32 v5, v6, 8, v5
    v_lshl_add_u32 v5, v2, 4, v5
    """)
    for rb in range(2):
        for j in range(2):
            x=XG+2*rb+j; a=ACC+4*rb+2*j
            k(f"v_lshlrev_b32 v8, 16, v{x}\nv_and_b32 v9, 0xffff0000, v{x}\nv_fma_f32 v{a}, v{a}, v{XG+4+2*j}, v8\nv_fma_f32 v{a+1}, v{a+1}, v{XG+4+2*j+1}, v9")
    swap_pack(k,ACC,ACC+4,12); st4(k,12,5,32)
    k(f"s_waitcnt vmcnt(0)\ns_branch {k.lab('p3e')}\n{k.lab('p3d')}:")
    f1loop(k,5,'p3l')
    k(f"{k.lab('p3e')}:")
    signal(k,'3',35,63); k.st()

def f2addr(q):
    if q<20: return 98304+q*3072
    if q<28: return (q-20)*3072
    return FC1L+(q-28)*3072
RL=FC1L+60*1024
def f2dma(k,q0,q1):
    for q in range(q0,q1,8):
        hi=min(q+8,q1)
        if hi-q<8: k(f"s_cmp_ge_u32 s3, {hi-q}\ns_cbranch_scc1 {k.lab('f2_%d'%q)}")
        k(f"s_add_u32 s6, s57, {(q//2)*1024}\ns_add_u32 s7, s38, {f2addr(q)}")
        for i in range(3): k(f"s_mov_b32 m0, s7\ns_add_u32 s7, s7, 1024\nbuffer_load_dwordx4 v{U+i}, s[8:11], s6 offen sc1 lds")
        if hi-q<8: k(f"{k.lab('f2_%d'%q)}:")
def p5setup(k):
    k(f"""
    s_lshl_b32 s54, s4, 2
    s_and_b32 s6, s5, 3
    s_add_u32 s54, s54, s6
    s_lshr_b32 s55, s5, 2
    s_lshl_b32 s56, s54, 2
    s_and_b32 s6, s3, 3
    s_add_u32 s56, s56, s6
    s_mul_i32 s57, s55, 147456
    s_and_b32 s6, s3, 1
    s_mul_i32 s6, s6, 24576
    s_add_u32 s57, s57, s6
    s_lshr_b32 s6, s3, 1
    s_lshl_b32 s6, s6, 10
    s_add_u32 s57, s57, s6
    s_add_u32 s57, s57, {FC2_P:#x}
    s_mul_i32 s38, s3, 3072
    s_lshr_b32 s25, s51, 3
    s_mul_i32 s30, s25, 12288
    s_mul_i32 s31, s52, 384
    s_add_u32 s30, s30, s31
    s_add_u32 s30, s30, {UV:#x}
    v_cmp_le_u32 vcc, 384, v4
    v_add_u32 v6, {6144-384}, v4
    s_mov_b32 m0, 159744
    v_cndmask_b32 v6, v4, v6, vcc
    s_cmp_lg_u32 s3, 0
    s_cbranch_scc1 {k.lab('uv')}
    buffer_load_dwordx4 v6, s[8:11], s30 offen sc1 lds
    {k.lab('uv')}:
    """)
    for i in range(3): k(f"v_add_u32 v{U+i}, {i*49152}, v4")

def p4(k):
    UU=WB
    k(f"s_mul_i32 s23, s53, 12288\ns_add_u32 s23, s23, {X1_P:#x}")
    poll(k,'4',"s_lshl_b32 s6, s51, 6\ns_add_u32 s6, s6, 4096\nv_lshlrev_b32 v5, 2, v2\nv_add_u32 v5, s6, v5",pw=1,drain=True)
    k.st()
    for s in range(12):
        if s and s%4==0: k("s_add_u32 s23, s23, 4096")
        ld(k,A+4*s,4,4,23,(s%4)*1024,sc=SC)
    k(f"""
    v_add_u32 v6, {FC1L}, v4
    v_add_u32 v7, {FC1L+36864}, v4
    s_mul_i32 s32, s53, 48
    s_mul_i32 s33, s52, 3
    s_add_u32 s32, s32, s33
    s_lshl_b32 s32, s32, 10
    s_add_u32 s32, s32, {G_P:#x}
    v_mov_b32 v86, 1.0
    v_mov_b32 v84, {f2u(-2*math.sqrt(2/math.pi)*math.log2(math.e)*0.044715):#x}
    v_mov_b32 v85, {f2u(-2*math.sqrt(2/math.pi)*math.log2(math.e)):#x}
    s_lshl_b32 s35, s51, 6
    s_lshl_b32 s6, s52, 2
    s_add_u32 s35, s35, s6
    s_add_u32 s35, s35, 5120
    """)
    k("v_lshlrev_b32 v1, 4, v3\nv_add_u32 v1, 159744, v1"); ones(k)
    for cb in range(6): k(f"ds_read_b128 {vr(WB+4*cb,4)}, v1 offset:{cb*64}\nds_read_b128 {vr(WB+24+4*cb,4)}, v1 offset:{384+cb*64}")
    k("s_waitcnt lgkmcnt(0)")
    order=[(s,cb) for s in range(12) for cb in range(4)]+[(s,cb) for s in range(12) for cb in (4,5)]
    items=[((6 if cb<3 else 7),((cb%3)*12+s)*1024) for s,cb in order]
    T=[64+j for j in range(8)]
    def gl(i,P=True):
        R=[ACC+8*i+j for j in range(8)]; L=[]
        E=(0,2,4,6)
        pk=globals()['pk']
        if not P:
            def pk(op,d,*src):
                f=lambda x,h: (f"v{x+h}" if isinstance(x,int) else ("-" if x[0]=='nb' else "")+f"v{x[1]}")
                return "\n".join(f"v_{op}_f32 v{d+h}, "+", ".join(f(x,h) for x in src) for h in (0,1))
        for j in E: L.append(pk('fma',R[j],('nb',S),UU+8*i+j,R[j]))
        for j in E: L.append(pk('fma',R[j],R[j],('b',S+1),UU+24+8*i+j))
        for j in E: L.append(pk('mul',T[j],R[j],R[j]))
        for j in E: L.append(pk('fma',T[j],T[j],('b',84),('b',85)))
        for j in E: L.append(pk('mul',T[j],T[j],R[j]))
        for j in range(8): L.append(f"v_exp_f32 v{T[j]}, v{T[j]}")
        for j in E: L.append(pk('add',T[j],T[j],('b',86)))
        for j in range(8): L.append(f"v_rcp_f32 v{T[j]}, v{T[j]}")
        for j in E: L.append(pk('mul',R[j],R[j],T[j]))
        for j in range(4): L.append(f"v_cvt_pk_bf16_f32 v{72+4*i+j}, v{R[2*j]}, v{R[2*j+1]}")
        L.append(f"buffer_store_dwordx4 {vr(72+4*i,4)}, v4, s[8:11], s32 offen offset:{i*1024} sc1")
        return L
    Q=[l for x in gl(0,False) for l in x.split('\n')]
    def m(i,b):
        s,cb=order[i]
        if cb==0: k(f"s_waitcnt vmcnt({11-s+(3 if s==11 else 0)})")
        mf(k,ACC+4*cb,b,A+4*s,s==0)
        if cb==0: mstat(k,A+4*s,s==0)
        if i==48: mstat_fin(k,S)
        if i in (40,46,54,62): f2dma(k,*{40:(0,8),46:(8,16),54:(16,20),62:(20,28)}[i])
        if i>48:
            for _ in range(4):
                if Q: k(Q.pop(0))
    gemm_loop(k,items,BB,8,m); k.st()
    for l in Q+gl(1)+gl(2): k(l)
    k.st()
    signal(k,'4',35); k.st()
    if LOC>1:
        for j in range(3): ld(k,104,4,4,32,j*1024,sc=SC)
    f2dma(k,28,48)

def p5(k):
    X5=WB
    k(f"""
    s_lshr_b32 s23, s3, 2
    s_mul_i32 s25, s56, 49152
    s_mul_i32 s6, s23, 24576
    s_add_u32 s25, s25, s6
    s_add_u32 s25, s25, {G_P:#x}
    s_mul_i32 s29, s56, 12288
    s_mul_i32 s6, s55, 1536
    s_add_u32 s29, s29, s6
    s_add_u32 s29, s29, {X1_P:#x}
    s_lshr_b32 s6, s54, 4
    s_mul_i32 s30, s6, 9216
    s_mul_i32 s6, s55, 192
    s_add_u32 s30, s30, s6
    s_add_u32 s30, s30, {1920*4}
    """)
    poll(k,'5',"s_lshr_b32 s6, s54, 1\ns_lshl_b32 s6, s6, 6\ns_add_u32 s6, s6, 5120\nv_lshlrev_b32 v5, 2, v2\nv_add_u32 v5, s6, v5")
    k.st()
    def lda(s):
        if s and s%4==0: k("s_add_u32 s25, s25, 4096")
        ld(k,A+4*s,4,4,25,(s%4)*1024,sc=SC)
    for s in range(12): lda(s)
    k(f"""
    s_mul_i32 s6, s23, 3072
    v_add_u32 v5, s6, v4
    v_add_u32 v6, 61440, v5
    v_add_u32 v7, 61440, v6
    v_lshlrev_b32 v1, 4, v3
    v_lshrrev_b32 v{S}, 1, v3
    v_lshlrev_b32 v{S}, 8, v{S}
    v_lshl_add_u32 v{S}, v2, 4, v{S}
    v_and_b32 v{S+1}, 1, v3
    v_lshl_add_u32 v{S}, v{S+1}, 3, v{S}
    """)
    items=[(5+f2addr(2*(n//3))//61440,f2addr(2*(n//3))%61440+(n%3)*1024) for n in range(72)]
    def m(i,b):
        s,cb=divmod(i,3)
        if cb==0:
            k(f"s_waitcnt vmcnt({11 if s<12 else 23-s+6})")
            if s<12: lda(12+s)
            if s==8: k('s_barrier')
            if s==11:
                for c in range(3):
                    ld(k,X5+2*c,2,S,29,c*512,sc=SC); ld(k,X5+8+4*c,4,1,30,c*64,sc=SC)
        mf(k,ACC+4*cb,b,A+4*s,s==0)
    gemm_loop(k,items,BB,8,m); k.st()
    k(f"""
    s_and_b32 s6, s3, 3
    s_mul_i32 s6, s6, 3072
    s_add_u32 s6, s6, {RL}
    v_add_u32 v5, s6, v4
    s_cmp_eq_u32 s23, 0
    s_cbranch_scc1 {k.lab('lo')}
    s_nop 4
    """)
    for cb in range(3): k(f"ds_write_b128 v5, {vr(ACC+4*cb,4)} offset:{cb*1024}")
    k(f"s_waitcnt lgkmcnt(0)\ns_barrier\ns_endpgm\n{k.lab('lo')}:")
    k(f"v_mul_u32_u24 v6, 768, v2\nv_lshl_add_u32 v6, v3, 3, v6\ns_mul_i32 s31, s56, {16*768}\ns_mul_i32 s6, s55, 96\ns_add_u32 s31, s31, s6\ns_barrier")
    for cb in range(3): k(f"ds_read_b128 {vr(BB+4*cb,4)}, v5 offset:{cb*1024}")
    k("s_waitcnt vmcnt(0) lgkmcnt(0)")
    for cb in range(3):
        for t in range(4): k(f"v_add_f32 v{ACC+4*cb+t}, v{ACC+4*cb+t}, v{BB+4*cb+t}")
        for j in range(2):
            x=X5+2*cb+j
            a_=ACC+4*cb+2*j
            k(f"v_lshlrev_b32 v8, 16, v{x}\nv_and_b32 v9, 0xffff0000, v{x}")
            k(f"v_fma_f32 v{a_}, v{a_}, v{X5+8+4*cb+2*j}, v8\nv_fma_f32 v{a_+1}, v{a_+1}, v{X5+8+4*cb+2*j+1}, v9")
        if cb==1:
            k("v_mul_u32_u24 v7, 768, v2\nv_and_b32 v8, 1, v3\nv_lshl_add_u32 v7, v8, 5, v7\nv_lshrrev_b32 v8, 1, v3\nv_lshl_add_u32 v7, v8, 4, v7")
            swap_pack(k,ACC,ACC+4,12); k("buffer_store_dwordx4 v[12:15], v7, s[44:47], s31 offen sc1")
    k(f"v_cvt_pk_bf16_f32 v16, v{ACC+8}, v{ACC+9}\nv_cvt_pk_bf16_f32 v17, v{ACC+10}, v{ACC+11}\nbuffer_store_dwordx2 v[16:17], v6, s[44:47], s31 offen offset:64 sc1")

def km():
    k=K(NAME,256,512,163840,256,sgpr=102)
    k(f"s_cmp_ge_u32 s2, 256\ns_cbranch_scc1 {k.lab('end')}")
    k.srds([('ws',8),('x',12),('fc1',16),('wo',20),('wqkv',24),('c',28),('wmod',32),('out',44),('dbg',96)])
    k("v_lshrrev_b32 v1, 6, v0\nv_and_b32 v2, 15, v0\nv_readfirstlane_b32 s3, v1\nv_bfe_u32 v3, v0, 4, 2\nv_and_b32 v4, 63, v0\nv_lshlrev_b32 v4, 4, v4\ns_and_b32 s4, s2, 7\ns_lshr_b32 s5, s2, 3")
    p1(k); p3setup(k); p2(k); p4setup(k); p5setup(k); p3(k); p4(k); p5(k)
    k(f"{k.lab('end')}:\ns_endpgm")
    return k
```

```python
from common import *
from k14 import f2u, stats, stats_fin
import math, os
SC=" sc1"
SLP=int(os.environ.get('SLP','3'))
NAME='standalone__dit_block__diffusion_kernel'
def mf(k,c,a,b,first): k(f"v_mfma_f32_16x16x32_bf16 {vr(c,4)}, {vr(a,4)}, {vr(b,4)}, {0 if first else vr(c,4)}")
def ld(k,dst,n,voff,soff,off=0,srd=8,sc=""):
    w={1:"dword",2:"dwordx2",4:"dwordx4"}[n]
    k(f"buffer_load_{w} {vr(dst,n)}, v{voff}, s[{srd}:{srd+3}], s{soff} offen"+(f" offset:{off}" if off else "")+sc)
def dma(k,soff,off=0,sc=""): k(f"buffer_load_dwordx4 v4, s[8:11], s{soff} offen"+(f" offset:{off}" if off else "")+sc+" lds")
def st4(k,src,voff,soff,off=0): k(f"buffer_store_dwordx4 {vr(src,4)}, v{voff}, s[8:11], s{soff} offen"+(f" offset:{off}" if off else "")+SC)

def signal(k,name,soff,n=0):
    k(f"s_waitcnt vmcnt({n})\ns_barrier\ns_cmp_lg_u32 s3, 0\ns_cbranch_scc1 {k.lab('sg'+name)}")
    k(f"v_mov_b32 v5, 0\nv_mov_b32 v6, 1\ns_lshl_b32 s{soff}, s{soff}, 5\ns_add_u32 s{soff}, s{soff}, {FL:#x}\ns_mov_b64 exec, 1\nbuffer_store_dword v6, v5, s[8:11], s{soff} offen sc1\ns_mov_b64 exec, -1")
    k(f"{k.lab('sg'+name)}:")
def poll(k,name,setup,pw=7,drain=False,bar=True):
    k(f"s_cmp_lg_u32 s3, {pw}\ns_cbranch_scc1 {k.lab('pd'+name)}")
    k(setup)
    k(f"v_lshlrev_b32 v5, 5, v5\ns_mov_b32 s6, {FL:#x}\ns_mov_b32 s7, 0\n{k.lab('pl'+name)}:")
    k(f"buffer_load_dword v6, v5, s[8:11], s6 offen sc1\ns_waitcnt vmcnt(0)\nv_cmp_eq_u32 vcc, 0, v6\ns_add_u32 s7, s7, 1\ns_cmp_ge_u32 s7, 0x10000\ns_cbranch_scc1 {k.lab('pd'+name)}\ns_nop 2")
    k(f"s_cbranch_vccz {k.lab('pd'+name)}\ns_sleep {SLP}\ns_branch {k.lab('pl'+name)}\n{k.lab('pd'+name)}:")
    if drain: k("s_waitcnt vmcnt(0)")
    if bar: k("s_barrier")
def swap_pack(k,X,Y,D):
    k(f"v_cvt_pk_bf16_f32 v{D}, v{X}, v{X+1}\nv_cvt_pk_bf16_f32 v{D+1}, v{X+2}, v{X+3}\nv_cvt_pk_bf16_f32 v{D+2}, v{Y}, v{Y+1}\nv_cvt_pk_bf16_f32 v{D+3}, v{Y+2}, v{Y+3}")
    k(f"s_nop 1\nv_permlane16_swap_b32 v{D}, v{D+2}\nv_permlane16_swap_b32 v{D+1}, v{D+3}\ns_nop 0")

ON=192; SM=184; GR=188
def ones(k):
    for j in range(4): k(f"v_mov_b32 v{ON+j}, 0x3f803f80")
def mstat(k,a,first): mf(k,SM,ON,a,first); mf(k,GR,a,a,first)
def mstat_fin(k,S):
    k(f"""
    v_and_b32 v{S+2}, 1, v2
    v_cmp_eq_u32 vcc, 0, v{S+2}
    v_and_b32 v{S+2}, 2, v2
    v_lshrrev_b32 v{S+3}, 2, v2
    v_cndmask_b32 v{GR}, v{GR+1}, v{GR}, vcc
    v_cndmask_b32 v{GR+2}, v{GR+3}, v{GR+2}, vcc
    v_cmp_eq_u32 vcc, 0, v{S+2}
    v_mul_f32 v{S}, {f2u(1/384):#x}, v{SM}
    s_nop 0
    v_cndmask_b32 v{GR}, v{GR+2}, v{GR}, vcc
    v_cmp_eq_u32 vcc, v3, v{S+3}
    s_nop 1
    v_cndmask_b32 v{S+1}, 0, v{GR}, vcc
    """)
    xreduce(k,[S+1],[S+2],"v_add_f32")
    k(f"v_mul_f32 v{S+1}, {f2u(1/384):#x}, v{S+1}\nv_fma_f32 v{S+1}, -v{S}, v{S}, v{S+1}\nv_max_f32 v{S+1}, 0, v{S+1}\nv_add_f32 v{S+1}, {f2u(1e-5):#x}, v{S+1}\nv_rsq_f32 v{S+1}, v{S+1}\ns_nop 0")
def pk(op,d,*src):
    o=[];lo=[];hi=[];ng=[]
    for x in src:
        if isinstance(x,int): assert x%2==0; o.append(vr(x,2)); lo.append(0); hi.append(1); ng.append(0)
        else: o.append(vr(x[1]&~1,2)); lo.append(x[1]&1); hi.append(x[1]&1); ng.append(int(x[0]=='nb'))
    f=lambda l:"["+",".join(map(str,l))+"]"
    assert d%2==0
    return f"v_pk_{op}_f32 {vr(d,2)}, "+", ".join(o)+f" op_sel:{f(lo)} op_sel_hi:{f(hi)}"+(f" neg_lo:{f(ng)} neg_hi:{f(ng)}" if any(ng) else "")
A=8; ACC=104; BB=128; S=160; U=168; WB=200; XG=248

LOC=int(os.environ.get('LOC','1'))
MAP2=("s_bfe_u32 s21, s5, 0x10002\ns_lshr_b32 s22, s5, 3\ns_and_b32 s23, s4, 3\ns_lshl_b32 s23, s23, 2\ns_and_b32 s6, s5, 3\ns_add_u32 s23, s23, s6" if LOC else
      "s_bfe_u32 s21, s4, 0x10001\ns_and_b32 s22, s4, 1\ns_lshl_b32 s22, s22, 1\ns_and_b32 s6, s5, 1\ns_add_u32 s22, s22, s6\ns_lshr_b32 s23, s5, 1")
MAP4=("s_lshl_b32 s51, s4, 1\ns_and_b32 s6, s5, 1\ns_add_u32 s51, s51, s6\ns_lshr_b32 s52, s5, 1" if LOC else
      "s_lshr_b32 s51, s4, 1\ns_lshl_b32 s51, s51, 2\ns_and_b32 s6, s5, 3\ns_add_u32 s51, s51, s6\ns_and_b32 s52, s4, 1\ns_lshl_b32 s52, s52, 3\ns_lshr_b32 s6, s5, 2\ns_add_u32 s52, s52, s6")
WOL=77824
def tr_loop(k,items,breg0,nbuf,mfn,hoff):
    n=len(items)
    def rd(i):
        a,o=items[i]; r=breg0+4*(i%nbuf)
        k(f"ds_read_b64_tr_b16 {vr(r,2)}, v{a} offset:{o}\nds_read_b64_tr_b16 {vr(r+2,2)}, v{a} offset:{o+hoff}")
    pre=min(nbuf-1,n)
    for i in range(pre): rd(i)
    issued=pre
    for i in range(n):
        k(f"s_waitcnt lgkmcnt({2*(issued-i-1)})")
        mfn(i, breg0+4*(i%nbuf))
        if issued<n: rd(issued); issued+=1
def chunk_offs(k,dst,per,stride,swz,t):
    k(f"s_mov_b32 s6, {(2**32+per-1)//per:#x}\ns_mov_b32 s7, {stride}")
    for i in range(3):
        d=dst+i
        k(f"v_lshrrev_b32 v{t}, 4, v4\nv_add_u32 v{t}, {64*i}, v{t}\nv_mul_hi_u32 v{d}, v{t}, s6\nv_mul_u32_u24 v{t+1}, {per}, v{d}\nv_sub_u32 v{t}, v{t}, v{t+1}")
        if swz: k(f"v_lshrrev_b32 v{t+1}, 2, v{d}\nv_and_b32 v{t+1}, 2, v{t+1}\nv_xor_b32 v{t}, v{t}, v{t+1}")
        k(f"v_mul_lo_u32 v{d}, v{d}, s7\nv_lshl_add_u32 v{d}, v{t}, 4, v{d}")
def w_dma(k,srd,vo,sl,sg,stride):
    for g in range(3):
        for i in range(3):
            k(f"s_mov_b32 m0, s{sl}\ns_add_u32 s{sl}, s{sl}, 1024\nbuffer_load_dwordx4 v{vo+i}, s[{srd}:{srd+3}], s{sg} offen lds")
        k(f"s_add_u32 s{sg}, s{sg}, {16*stride}")
def tr_addr(k,d,base):
    k(f"v_lshrrev_b32 v{d}, 2, v2\nv_lshl_add_u32 v{d}, v3, 3, v{d}\nv_mul_u32_u24 v{d}, 192, v{d}\nv_and_b32 v{d+1}, 3, v2\nv_lshl_add_u32 v{d}, v{d+1}, 3, v{d}\nv_add_u32 v{d}, {base}, v{d}")
    k(f"v_and_b32 v{d+2}, 1, v3\nv_lshlrev_b32 v{d+2}, 5, v{d+2}\nv_sub_u32 v{d+1}, v{d}, v{d+2}\nv_add_u32 v{d}, v{d}, v{d+2}\nv_add_u32 v{d+2}, 36864, v{d}\nv_add_u32 v{d+3}, 36864, v{d+1}")
def wo_dma(k,U=U,setup_only=False):
    chunk_offs(k,U,12,768,True,U+3)
    k(f"s_mul_i32 s36, s3, 9216\ns_add_u32 s36, s36, {WOL}\ns_mul_i32 s37, s3, {48*768}\ns_mul_i32 s6, s49, 192\ns_add_u32 s37, s37, s6")
    if not setup_only: w_dma(k,20,U,36,37,768)
def modpoll(k,name,sl=SLP,both=False):
    ex='v_and_b32 v6, 1, v3\nv_lshlrev_b32 v5, 2, v6\n' if both else ''
    k(f"s_cmp_lg_u32 s3, 7\ns_cbranch_scc1 {k.lab('pd'+name)}\nv_mov_b32 v5, 0\n{ex}s_mov_b32 s7, 0\n{k.lab('pl'+name)}:")
    k(f"buffer_load_dword v6, v5, s[96:99], 0 offen sc1\ns_waitcnt vmcnt(0)\nv_cmp_eq_u32 vcc, 0, v6\ns_add_u32 s7, s7, 1\ns_cmp_ge_u32 s7, 0x10000\ns_cbranch_scc1 {k.lab('pd'+name)}\ns_nop 2")
    k(f"s_cbranch_vccz {k.lab('pd'+name)}\ns_sleep {sl}\ns_branch {k.lab('pl'+name)}\n{k.lab('pd'+name)}:\ns_barrier")

def touch(k,lst,name):
    k(f"s_sub_u32 s6, s2, 64\ns_lshl_b32 s6, s6, 1\ns_and_b32 s7, s3, 1\ns_add_u32 s6, s6, s7\ns_lshl_b32 s6, s6, 12\nv_lshlrev_b32 v7, 2, v4\ns_lshr_b32 s7, s3, 1")
    for i,srd in enumerate(lst):
        k(f"s_cmp_lg_u32 s7, {i}\ns_cbranch_scc1 {k.lab('t%s%d'%(name,i))}\nbuffer_load_dword v199, v7, s[{srd}:{srd+3}], s6 offen\n{k.lab('t%s%d'%(name,i))}:")
def pmod(k):
    k("""
    v_and_b32 v8, 7, v0
    v_lshrrev_b32 v9, 3, v0
    v_mul_u32_u24 v10, 27648, v9
    v_lshl_add_u32 v10, v8, 4, v10
    v_mul_u32_u24 v11, 12, v9
    s_lshl_b32 s7, s2, 7
    """)
    for b in range(2): k(f"buffer_load_dwordx3 v[{80+4*b}:{82+4*b}], v11, s[28:31], 0 offen offset:{b*768}")
    for i in range(6):
        k(f"buffer_load_dwordx4 {vr(16+4*i,4)}, v10, s[32:35], s7 offen")
        if i<5: k(f"s_add_u32 s7, s7, 4608")
    k("s_waitcnt vmcnt(6)"); k.st(106)
    for r in range(40,52):
        src=80+4*((r-40)//6)+((r-40)%6)//2
        k(f"v_and_b32 v{r}, 0xffff0000, v{src}" if r%2 else f"v_lshlrev_b32 v{r}, 16, v{src}")
    for r in range(40,52): k(f"v_mul_f32 v{r+12}, 0xbfb8aa3b, v{r}\nv_exp_f32 v{r+12}, v{r+12}")
    for r in range(40,52): k(f"v_add_f32 v{r+12}, 1.0, v{r+12}\nv_rcp_f32 v{r+12}, v{r+12}")
    for r in range(40,52): k(f"v_mul_f32 v{r}, v{r}, v{r+12}\nv_cvt_pk_bf16_f32 v{r}, v{r}, v{r}\nv_lshlrev_b32 v{r}, 16, v{r}")
    AC=[64,72]
    for i in range(6):
        k(f"s_waitcnt vmcnt({5-i})")
        for j in range(4):
            k(f"v_lshlrev_b32 v5, 16, v{16+4*i+j}\nv_and_b32 v6, 0xffff0000, v{16+4*i+j}")
            op="v_fmac_f32" if i else "v_mul_f32"
            for b in range(2): k(f"{op} v{AC[b]+2*j}, v5, v{40+b*6+i}\n{op} v{AC[b]+2*j+1}, v6, v{40+b*6+i}")
    k.st(107)
    k(f"s_cmp_ge_u32 s2, 12\ns_cbranch_scc1 {k.lab('nz')}\nv_mov_b32 v12, 0\nv_mov_b32 v13, 0\nv_mov_b32 v14, 0\nv_mov_b32 v15, 0\nv_lshlrev_b32 v5, 4, v0\ns_lshl_b32 s6, s2, 14\ns_add_u32 s6, s6, {FL:#x}")
    k(f"buffer_store_dwordx4 v[12:15], v5, s[8:11], s6 offen sc1\ns_add_u32 s6, s6, 8192\nbuffer_store_dwordx4 v[12:15], v5, s[8:11], s6 offen sc1\n{k.lab('nz')}:")
    k("s_nop 1")
    for r in range(64,80): k(f"v_add_f32_dpp v{r}, v{r}, v{r} row_ror:8 row_mask:0xf bank_mask:0xf")
    k("s_nop 1")
    for j in range(8): k(f"v_permlane32_swap_b32 v{64+j}, v{72+j}")
    for j in range(8): k(f"v_add_f32 v{64+j}, v{64+j}, v{72+j}")
    k("s_nop 1")
    for j in range(4): k(f"v_permlane16_swap_b32 v{64+j}, v{68+j}")
    k("v_lshlrev_b32 v5, 9, v1\nv_lshl_add_u32 v5, v8, 6, v5\nv_lshl_add_u32 v5, v3, 4, v5")
    for j in range(4): k(f"v_add_f32 v{64+j}, v{64+j}, v{68+j}")
    k("ds_write_b128 v5, v[64:67]")
    k(f"s_waitcnt lgkmcnt(0)\ns_barrier\ns_cmp_ge_u32 s3, 2\ns_cbranch_scc1 {k.lab('m2')}\nv_lshlrev_b32 v5, 2, v0")
    for p in range(8): k(f"ds_read_b32 v{16+p}, v5 offset:{p*512}")
    k("s_waitcnt lgkmcnt(0)")
    for st in (4,2,1):
        for p in range(st): k(f"v_add_f32 v{16+p}, v{16+p}, v{16+p+st}")
    k(f"""
    v_cvt_pk_bf16_f32 v8, v16, v16
    v_lshlrev_b32 v8, 16, v8
    s_sub_u32 s7, s2, 6
    s_cmp_lt_u32 s7, 6
    s_cselect_b32 s6, 1.0, 0
    s_sub_u32 s7, s2, 24
    s_cmp_lt_u32 s7, 6
    s_cselect_b32 s6, 1.0, s6
    v_add_f32 v8, s6, v8
    v_cvt_pk_bf16_f32 v8, v8, v8
    v_lshlrev_b32 v8, 16, v8
    v_lshrrev_b32 v5, 4, v0
    v_lshlrev_b32 v5, 5, v5
    v_and_b32 v6, 7, v0
    v_lshl_add_u32 v5, v6, 2, v5
    v_bfe_u32 v6, v0, 3, 1
    v_mul_u32_u24 v6, 9216, v6
    v_add_u32 v5, v5, v6
    s_lshl_b32 s6, s2, 8
    buffer_store_dword v8, v5, s[8:11], s6 offen sc1
    {k.lab('m2')}:
    """); k.st(108); k(f"""
    s_waitcnt vmcnt(0)
    s_barrier
    """); k.st(109); k(f"""
    s_cmp_lg_u32 s3, 0
    s_cbranch_scc1 {k.lab('m3')}
    s_cmp_lt_u32 s2, 12
    s_cselect_b32 s6, 0, 4
    s_sub_u32 s7, s2, 12
    s_cmp_lt_u32 s7, 6
    s_cbranch_scc1 {k.lab('m3')}
    s_cmp_ge_u32 s2, 30
    s_cbranch_scc1 {k.lab('m3')}
    v_mov_b32 v5, 0
    v_mov_b32 v6, 1
    s_mov_b64 exec, 1
    buffer_atomic_add v6, v5, s[96:99], s6 offen offset:128 sc0 sc1
    s_waitcnt vmcnt(0)
    v_readfirstlane_b32 s7, v6
    s_nop 3
    s_cmp_lg_u32 s7, 11
    s_cbranch_scc1 {k.lab('m4')}
    buffer_store_dword v6, v5, s[96:99], s6 offen sc1
    {k.lab('m4')}:
    s_mov_b64 exec, -1
    {k.lab('m3')}:
    """)

def pfc1(k):
    F=8; PQ=32; O=128; T=152
    k(f"""
    s_sub_u32 s24, s2, 36
    v_lshrrev_b32 v5, 7, v4
    v_mul_u32_u24 v5, 3072, v5
    v_and_b32 v6, 0x70, v4
    v_add_u32 v5, v5, v6
    s_mul_i32 s25, s3, 6144
    s_mul_i32 s26, s3, {48*3072}
    s_lshl_b32 s6, s24, 7
    s_add_u32 s26, s26, s6
    """)
    for i in range(6): k(f"s_mov_b32 m0, s25\ns_add_u32 s25, s25, 1024\nbuffer_load_dwordx4 v5, s[16:19], s26 offen lds\ns_add_u32 s26, s26, {8*3072}")
    wo_dma(k)
    k(f"""
    s_lshr_b32 s27, s3, 1
    s_and_b32 s25, s3, 1
    v_lshrrev_b32 v7, 2, v2
    v_lshl_add_u32 v7, v3, 3, v7
    v_lshlrev_b32 v7, 7, v7
    v_and_b32 v6, 3, v2
    v_lshl_add_u32 v7, v6, 3, v7
    s_mul_i32 s6, s25, 24576
    s_lshl_b32 s7, s27, 5
    s_add_u32 s6, s6, s7
    v_add_u32 v7, s6, v7
    s_lshl_b32 s6, s24, 2
    s_add_u32 s27, s27, s6
    s_min_u32 s6, s3, 5
    s_lshl_b32 s37, s6, 10
    s_cmp_ge_u32 s6, 3
    s_cselect_b32 s26, {9216-3072}, 0
    s_add_u32 s26, s26, s37
    s_add_u32 s26, s26, {1152*4:#x}
    s_add_u32 s37, s37, 53248
    s_mul_i32 s36, s27, 12288
    s_mul_i32 s6, s25, 6144
    s_add_u32 s36, s36, s6
    s_add_u32 s36, s36, {FC1_P:#x}
    s_mov_b32 s40, 0x3f803f80
    s_waitcnt vmcnt(0)
    """)
    ones(k); modpoll(k,'f',6,True)
    k("s_mov_b32 m0, s37\ns_nop 0"); dma(k,26,0,SC)
    for i in range(6): k(f"ds_read_b64_tr_b16 {vr(F+4*i,2)}, v7 offset:{i*4096}\nds_read_b64_tr_b16 {vr(F+4*i+2,2)}, v7 offset:{i*4096+512}")
    k("v_lshlrev_b32 v6, 5, v3\ns_mul_i32 s6, s25, 768\ns_add_u32 s6, s6, 53248\nv_add_u32 v6, s6, v6\ns_waitcnt vmcnt(0) lgkmcnt(0)\ns_barrier")
    for b in range(2):
        k("s_add_u32 s37, s36, 4096")
        u=S+2*b
        for i in range(6):
            if i%3==0:
                for ii in range(i,i+3):
                    for q in range(2):
                        k(f"ds_read_b128 {vr(PQ+16*ii+4*q,4)}, v6 offset:{b*3072+ii*128+16*q}\nds_read_b128 {vr(PQ+16*ii+8+4*q,4)}, v6 offset:{b*3072+1536+ii*128+16*q}")
            k(f"s_waitcnt lgkmcnt({8-4*(i%3)})")
            for j in range(4): k(f"v_lshlrev_b32 v{T+2*j}, 16, v{F+4*i+j}\nv_and_b32 v{T+2*j+1}, 0xffff0000, v{F+4*i+j}\nv_cvt_pk_bf16_f32 v{PQ+16*i+j}, v{PQ+16*i+2*j}, v{PQ+16*i+2*j+1}")
            for j in range(8): k(f"v_mul_f32 v{T+j}, v{T+j}, v{PQ+16*i+8+j}")
            mf(k,200+8*b+4,PQ+16*i,F+4*i,i==0)
            for j in range(4): k(f"v_cvt_pk_bf16_f32 v{O+4*i+j}, v{T+2*j}, v{T+2*j+1}")
            k("s_nop 1"); mf(k,200+8*b,ON,O+4*i,i==0)
            st4(k,O+4*i,4,36 if i<4 else 37,(i%4)*1024)
        if b==0: k("s_add_u32 s36, s36, 0x120000")
    k("s_nop 7")
    for j in range(4): k(f"v_mov_b32 v{S+j}, v{200+4*j}")
    k(f"""
    s_lshr_b32 s6, s3, 1
    s_lshl_b32 s6, s6, 10
    s_add_u32 s6, s6, 49152
    v_add_u32 v5, s6, v4
    s_lshl_b32 s35, s24, 2
    s_add_u32 s35, s35, 1024
    s_cmp_eq_u32 s25, 0
    s_cbranch_scc1 {k.lab('f1')}
    ds_write_b128 v5, {vr(S,4)}
    s_waitcnt lgkmcnt(0)
    s_barrier
    s_branch {k.lab('p1e')}
    {k.lab('f1')}:
    s_barrier
    ds_read_b128 {vr(T,4)}, v5
    s_lshl_b32 s6, s27, 6
    s_add_u32 s6, s6, {UV:#x}
    v_lshlrev_b32 v5, 2, v2
    s_waitcnt lgkmcnt(0)
    """)
    for j in range(4):
        k(f"v_add_f32 v{S+j}, v{S+j}, v{T+j}\nbuffer_store_dword v{S+j}, v5, s[8:11], s6 offen sc1\ns_add_u32 s6, s6, 6144")
    k(f"s_branch {k.lab('p1e')}")

def p1(k):
    k(f"""
    s_lshl_b32 s48, s4, 3
    s_and_b32 s6, s5, 7
    s_add_u32 s48, s48, s6
    s_lshr_b32 s49, s5, 3
    s_mul_i32 s50, s49, 6
    s_add_u32 s50, s50, s3
    s_waitcnt lgkmcnt(0)
    s_cmp_lt_u32 s2, 36
    s_cbranch_scc1 {k.lab('mod')}
    s_cmp_lt_u32 s3, 7
    s_cbranch_scc1 {k.lab('nt')}
    v_lshlrev_b32 v7, 15, v4
    buffer_load_dword v198, v7, s[96:99], 0 offen sc1
    buffer_load_dword v197, v7, s[8:11], 0 offen sc1
    buffer_load_dword v196, v7, s[44:47], 0 offen sc1
    {k.lab('nt')}:
    s_cmp_ge_u32 s2, 64
    s_cbranch_scc1 {k.lab('gemm')}
    s_cmp_lt_u32 s2, 36
    s_cbranch_scc1 {k.lab('mod')}
    s_getpc_b64 s[52:53]
    {k.lab('pc')}:
    s_mov_b32 s54, {k.lab('end')}-{k.lab('pc')}
    s_mov_b32 s55, 0x20000
    s_lshl_b32 s6, s3, 13
    v_lshlrev_b32 v7, 3, v4
    buffer_load_dword v199, v7, s[52:55], s6 offen
    s_cmp_ge_u32 s2, 60
    s_cbranch_scc1 {k.lab('idle')}
    s_branch {k.lab('fc1')}
    {k.lab('mod')}:
    """)
    k.st(105); pmod(k)
    k(f"{k.lab('idle')}:"); modpoll(k,'i',16); k.st(114)
    k(f"s_cmp_ge_u32 s2, 36\ns_cbranch_scc1 {k.lab('i2')}\ns_lshl_b32 s35, s2, 2\ns_add_u32 s35, s35, 1120")
    k(f"""
    s_load_dwordx2 s[16:17], s[0:1], {KOFF['fc2']}
    s_mul_hi_u32 s24, s2, 0x2aaaaaab
    s_mul_i32 s6, s24, 6
    s_sub_u32 s25, s2, s6
    s_lshl_b32 s24, s24, 3
    s_add_u32 s24, s24, s3
    s_mul_i32 s26, s24, {32*768}
    s_lshl_b32 s6, s25, 7
    s_add_u32 s26, s26, s6
    s_lshl_b32 s27, s3, 12
    s_add_u32 s27, s27, 8192
    v_lshrrev_b32 v5, 7, v4
    v_mul_u32_u24 v5, 768, v5
    v_and_b32 v6, 0x70, v4
    v_add_u32 v5, v5, v6
    v_lshrrev_b32 v7, 2, v2
    v_lshl_add_u32 v7, v3, 2, v7
    v_lshlrev_b32 v7, 7, v7
    v_and_b32 v6, 3, v2
    v_lshl_add_u32 v7, v6, 3, v7
    v_add_u32 v7, s27, v7
    s_waitcnt lgkmcnt(0)
    """)
    for i in range(4): k(f"s_mov_b32 m0, s27\ns_add_u32 s27, s27, 1024\nbuffer_load_dwordx4 v5, s[16:19], s26 offen lds\ns_add_u32 s26, s26, {8*768}")
    k(f"s_mul_i32 s26, s25, {4*49152}\ns_lshl_b32 s6, s24, 10\ns_add_u32 s26, s26, s6\ns_add_u32 s26, s26, {FC2_P:#x}\ns_waitcnt vmcnt(0)")
    for c in range(4): k(f"ds_read_b64_tr_b16 {vr(8+4*c,2)}, v7 offset:{c*32}\nds_read_b64_tr_b16 {vr(10+4*c,2)}, v7 offset:{c*32+2048}")
    k("s_waitcnt lgkmcnt(0)")
    for c in range(4): st4(k,8+4*c,4,26); k("s_add_u32 s26, s26, 49152")
    signal(k,'m',35)
    k(f"{k.lab('i2')}:"); wo_dma(k); k("s_waitcnt vmcnt(0)\ns_barrier"); k(f"s_branch {k.lab('p1x')}\n{k.lab('fc1')}:")
    pfc1(k)
    k(f"""
    {k.lab('gemm')}:
    """)
    if not os.environ.get('NOTOUCH'): touch(k,[24,20],'a')
    k(f"""
    s_sub_u32 s41, s5, 8
    s_lshl_b32 s28, s4, 1
    s_and_b32 s6, s41, 1
    s_add_u32 s28, s28, s6
    s_lshr_b32 s29, s41, 1
    s_lshl_b32 s42, s28, 3
    s_add_u32 s42, s42, s3
    s_mul_i32 s30, s42, 12288
    """)
    XL=61440; XO=U+4
    k(f"s_mov_b32 s6, {(2**32+47)//48:#x}")
    for i in range(3):
        d=XO+i; t=XO+3
        k(f"v_lshrrev_b32 v{t}, 4, v4\nv_add_u32 v{t}, {64*i}, v{t}\nv_mul_hi_u32 v{d}, v{t}, s6\nv_mul_u32_u24 v{t+1}, 48, v{d}\nv_sub_u32 v{t}, v{t}, v{t+1}\nv_xor_b32 v{t}, v{t}, v{d}\nv_mul_u32_u24 v{d}, 768, v{d}\nv_lshl_add_u32 v{d}, v{t}, 4, v{d}")
    k(f"s_mul_i32 s31, s3, 12288\ns_add_u32 s31, s31, {XL}\nv_mul_u32_u24 v7, 768, v2\nv_add_u32 v7, s31, v7\nv_xor_b32 v6, v2, v3")
    k.st(110)
    for m_ in range(4):
        for i in range(3):
            k(f"s_mov_b32 m0, s31\ns_add_u32 s31, s31, 1024\nv_xor_b32 v5, {m_<<6}, v{XO+i}\nbuffer_load_dwordx4 v5, s[12:15], s30 offen lds")
        k("s_add_u32 s30, s30, 3072")
    k.st(112)
    for b_ in range(4): k(f"v_xor_b32 v{XO+8+b_}, {4*b_}, v6\nv_lshl_add_u32 v{XO+8+b_}, v{XO+8+b_}, 4, v7")
    chunk_offs(k,U,12,2304,True,S)
    k(f"s_mul_i32 s36, s3, 3072\ns_mul_i32 s37, s3, {16*2304}\ns_mul_i32 s6, s29, 192\ns_add_u32 s37, s37, s6")
    def wgrp():
        for i in range(3): k(f"s_mov_b32 m0, s36\ns_add_u32 s36, s36, 1024\nbuffer_load_dwordx4 v{U+i}, s[24:27], s37 offen lds")
    k("s_waitcnt vmcnt(0) lgkmcnt(0)"); k.st(113)
    for s in range(12): k(f"ds_read_b128 {vr(A+4*s,4)}, v{XO+8+s%4} offset:{(s//4)*256}")
    for g in range(2):
        wgrp(); k(f"s_add_u32 s36, s36, {7*3072}\ns_add_u32 s37, s37, {128*2304}")
    k("s_waitcnt lgkmcnt(0)\ns_barrier"); k.st(1)
    ones(k); k("s_nop 1")
    for s_ in range(12): mstat(k,A+4*s_,s_==0)
    wgrp(); wo_dma(k,XO,True)
    XF=lambda e: (56+e if e<48 else 200+e-48)
    for i in range(48): k(f"v_lshlrev_b32 v{XF(2*i)}, 16, v{A+i}\nv_and_b32 v{XF(2*i+1)}, 0xffff0000, v{A+i}")
    mstat_fin(k,S)
    k(f"v_mul_f32 v{S}, v{S}, v{S+1}")
    for e in range(0,96,2): k(pk('fma',XF(e),XF(e),('b',S+1),('nb',S)))
    k(f"""
    s_lshr_b32 s43, s28, 3
    s_mul_i32 s30, s43, 9216
    s_and_b32 s6, s3, 1
    s_lshl_b32 s6, s6, 10
    s_add_u32 s30, s30, s6
    s_bitcmp1_b32 s3, 1
    s_cselect_b32 s6, 1536, 0
    s_add_u32 s30, s30, s6
    s_and_b32 s31, s3, 3
    s_lshl_b32 s31, s31, 10
    s_add_u32 s31, s31, 73728
    """)
    k.st(2); modpoll(k,'g'); k.st(21)
    k("s_mov_b32 m0, s31\ns_nop 0"); dma(k,30,0,SC)
    tr_addr(k,U,0)
    qs=f2u(192**-0.5*math.log2(math.e))
    k(f"""
    s_cmp_lt_u32 s29, 4
    s_cselect_b32 s30, {qs:#x}, 1.0
    s_cselect_b64 vcc, -1, 0
    s_cselect_b32 s33, -1, -2
    s_and_b32 s33, s42, s33
    s_mul_i32 s33, s33, 12
    s_lshr_b32 s31, s29, 2
    s_mul_i32 s31, s31, {ACT:#x}
    s_and_b32 s32, s29, 3
    s_mul_i32 s32, s32, 3
    s_add_u32 s32, s32, s33
    s_lshl_b32 s32, s32, 10
    s_add_u32 s31, s31, s32
    s_add_u32 s31, s31, {Q_P:#x}
    s_and_b32 s34, s3, 1
    v_bfe_u32 v5, v2, 2, 1
    v_mul_u32_u24 v5, 12288, v5
    v_lshl_add_u32 v5, v3, 8, v5
    v_lshrrev_b32 v6, 3, v2
    v_lshl_add_u32 v5, v6, 6, v5
    v_and_b32 v6, 3, v2
    v_lshl_add_u32 v5, v6, 4, v5
    s_lshl_b32 s6, s34, 7
    v_add_u32 v5, s6, v5
    v_cndmask_b32 v5, v5, v4, vcc
    s_lshl_b32 s35, s28, 6
    s_lshl_b32 s6, s29, 2
    s_add_u32 s35, s35, s6
    v_lshlrev_b32 v1, 5, v3
    v_add_u32 v1, 73728, v1
    s_waitcnt vmcnt(0)
    s_barrier
    """)
    k.st(22)
    k(f"s_cmp_ge_u32 s29, 8\ns_cbranch_scc1 {k.lab('v')}")
    def body(isv):
        PP=176
        order=[(s,cb) for s in range(12) for cb in range(4)]+[(s,cb) for s in range(12) for cb in (4,5)]
        ops=[]
        for i,(s,cb) in enumerate(order):
            if cb==0: ops+=[('p',s,0),('p',s,1)]
            ops.append(('w',s,cb))
        nw=[0]; reg={}; iss=[0]
        def rd(n):
            t,s,x=ops[n]
            if t=='p': k(f"ds_read_b128 {vr(PP+8*x,4)}, v1 offset:{s*128+16*x}\nds_read_b128 {vr(PP+8*x+4,4)}, v1 offset:{2048+s*128+16*x}")
            else:
                r=BB+4*(nw[0]%8); nw[0]+=1; reg[n]=r; a_=U+(x%2)+2*(s//6); o=(s%6)*6144+x*32
                k(f"ds_read_b64_tr_b16 {vr(r,2)}, v{a_} offset:{o}\nds_read_b64_tr_b16 {vr(r+2,2)}, v{a_} offset:{o+768}")
        def fill(n):
            while iss[0]<len(ops) and iss[0]<n+6: rd(iss[0]); iss[0]+=1
        def epi(c):
            R=ACC+8*c; D=S+4*(c%2)
            if isv:
                swap_pack(k,R,R+4,D); st4(k,D,5,31); k("s_add_u32 s31, s31, 65536")
            else:
                for j in range(8): k(f"v_mul_f32 v{R+j}, s30, v{R+j}")
                for j in range(4): k(f"v_cvt_pk_bf16_f32 v{D+j}, v{R+2*j}, v{R+2*j+1}")
                st4(k,D,5,31,c*1024)
        fill(0); i=0
        for n,(t,s,x) in enumerate(ops):
            k(f"s_waitcnt lgkmcnt({2*(iss[0]-n-1)})")
            if t=='p':
                for j in range(4): e=8*s+4*x+j; k(f"v_fma_f32 v{XF(e)}, v{XF(e)}, v{PP+8*x+4+j}, v{PP+8*x+j}")
                for j in range(2): e=8*s+4*x+2*j; k(f"v_cvt_pk_bf16_f32 v{A+4*s+2*x+j}, v{XF(e)}, v{XF(e+1)}")
            else:
                if isv: mf(k,ACC+4*x,A+4*s,reg[n],s==0)
                else: mf(k,ACC+4*x,reg[n],A+4*s,s==0)
                if i==52: epi(0)
                if i==60: epi(1)
                if i%5==0 and i<45:
                    q=i//5
                    k(f"s_mov_b32 m0, s36\ns_add_u32 s36, s36, 1024\nbuffer_load_dwordx4 v{XO+q%3}, s[20:23], s37 offen lds")
                    if q%3==2: k(f"s_add_u32 s37, s37, {16*768}")
                i+=1
            fill(n+1)
        k("s_nop 7"); epi(2)
        k("v_lshrrev_b32 v1, 6, v0")
    body(False)
    k(f"""
    s_branch {k.lab('p1e')}
    {k.lab('v')}:
    s_sub_u32 s31, s29, 8
    s_mul_i32 s31, s31, 6
    s_mul_i32 s32, s43, 24
    s_add_u32 s31, s31, s32
    s_lshl_b32 s31, s31, 5
    s_and_b32 s32, s42, 63
    s_lshr_b32 s32, s32, 1
    s_add_u32 s31, s31, s32
    s_lshl_b32 s31, s31, 10
    s_lshl_b32 s32, s34, 9
    s_add_u32 s31, s31, s32
    s_add_u32 s31, s31, {VT_P:#x}
    v_and_b32 v5, 1, v3
    v_lshlrev_b32 v5, 15, v5
    v_lshrrev_b32 v6, 1, v3
    v_lshl_add_u32 v5, v6, 8, v5
    v_lshl_add_u32 v5, v2, 4, v5
    """)
    body(True)
    k(f"{k.lab('p1e')}:"); k.st(3)
    signal(k,'1',35)
    k(f"{k.lab('p1x')}:"); k.st(4)

def p3setup(k):
    k(f"""
    s_cmp_ge_u32 s3, 6
    s_cbranch_scc1 {k.lab('p3s')}
    v_mul_u32_u24 v6, 768, v2
    v_lshl_add_u32 v6, v3, 3, v6
    s_mul_i32 s29, s48, {32*768}
    s_lshl_b32 s6, s50, 5
    s_add_u32 s29, s29, s6
    s_add_u32 s30, s29, {16*768}
    """)
    ld(k,XG,2,6,29,srd=12); ld(k,XG+2,2,6,30,srd=12)
    tr_addr(k,U,WOL)
    k(f"s_bitcmp1_b32 s3, 0\ns_cselect_b64 vcc, -1, 0\ns_lshl_b32 s6, s3, 5\nv_cndmask_b32 v{U}, v{U}, v{U+1}, vcc\nv_add_u32 v{U}, s6, v{U}\nv_add_u32 v{U+1}, 36864, v{U}")
    for s in range(12):
        for hh in range(2): k(f"ds_read_b64_tr_b16 {vr(WB+4*s+2*hh,2)}, v{U+s//6} offset:{(s%6)*6144+hh*768}")
    k(f"s_waitcnt lgkmcnt(0)\n{k.lab('p3s')}:")

def p2(k):
    QL=0; PL=24576; VL=57344; ML=155648; SL=157696
    KF=8; SA=56; B2=88; T=120
    k(f"""
    s_lshr_b32 s20, s4, 2
    {MAP2}
    s_lshl_b32 s24, s20, 6
    s_lshl_b32 s6, s23, 2
    s_add_u32 s24, s24, s6
    s_lshr_b32 s6, s3, 1
    s_add_u32 s25, s24, s6
    s_mul_i32 s25, s25, 12
    s_mul_i32 s26, s21, 6
    s_add_u32 s25, s25, s26
    s_and_b32 s6, s3, 1
    s_mul_i32 s6, s6, 3
    s_add_u32 s25, s25, s6
    s_lshl_b32 s25, s25, 10
    s_add_u32 s25, s25, {Q_P:#x}
    s_lshl_b32 s27, s20, 6
    s_lshl_b32 s6, s22, 4
    s_add_u32 s27, s27, s6
    s_lshl_b32 s6, s3, 1
    s_add_u32 s27, s27, s6
    s_mul_i32 s27, s27, 12
    s_add_u32 s27, s27, s26
    s_lshl_b32 s27, s27, 10
    s_add_u32 s27, s27, {K_P:#x}
    s_add_u32 s36, s27, 12288
    s_mul_i32 s28, s20, 24
    s_mul_i32 s6, s21, 12
    s_add_u32 s28, s28, s6
    s_lshl_b32 s28, s28, 5
    s_lshl_b32 s6, s22, 3
    s_add_u32 s28, s28, s6
    s_add_u32 s28, s28, s3
    s_lshl_b32 s28, s28, 10
    s_add_u32 s28, s28, {VT_P:#x}
    s_lshl_b32 s29, s3, 10
    s_add_u32 s29, s29, {VL}
    """)
    poll(k,'2',f"""
    v_bfe_u32 v6, v0, 2, 2
    v_min_u32 v6, 2, v6
    v_bfe_u32 v7, v0, 1, 1
    s_lshl_b32 s6, s22, 1
    v_add_u32 v7, s6, v7
    s_lshr_b32 s6, s23, 1
    v_mov_b32 v5, s6
    v_cmp_eq_u32 vcc, 0, v6
    s_lshl_b32 s6, s20, 9
    s_lshl_b32 s7, s21, 3
    v_cndmask_b32 v7, v7, v5, vcc
    s_add_u32 s6, s6, s7
    v_lshlrev_b32 v7, 6, v7
    v_lshl_add_u32 v7, v6, 4, v7
    v_and_b32 v6, 1, v0
    v_lshl_add_u32 v7, v6, 2, v7
    v_add_u32 v5, s6, v7
    """)
    k.st()
    k("s_mul_i32 s6, s3, 3072\ns_mov_b32 m0, s6\ns_nop 0")
    for i in range(3): dma(k,25,i*1024,SC)
    def ldk(s):
        if s==4: k("s_add_u32 s27, s27, 4096\ns_add_u32 s36, s36, 4096")
        for kb in range(2): ld(k,KF+24*kb+4*s,4,4,(27,36)[kb],(s%4)*1024,sc=SC)
    for s in range(6): ldk(s)
    k("s_waitcnt vmcnt(12)\ns_barrier"); k.st()
    items=[(4,QL+(qb*6+s)*1024) for s in range(6) for qb in range(4)]
    def mf1(i,b):
        s,qb=divmod(i,4)
        if qb==0: k("s_waitcnt vmcnt(10)")
        if qb in (0,2):
            k(f"s_mov_b32 m0, s29\ns_add_u32 s29, s29, 8192"); dma(k,28,0,SC); k("s_add_u32 s28, s28, 32768")
        for kb in range(2): mf(k,SA+8*qb+4*kb,KF+24*kb+4*s,b,s==0)
    gemm_loop(k,items,B2,8,mf1); k.st()
    k(f"v_lshrrev_b32 v5, 4, v4\nv_min_u32 v5, 59, v5\nv_lshlrev_b32 v5, 2, v5\nv_add_u32 v5, 1024, v5\nv_lshlrev_b32 v5, 5, v5\ns_mov_b32 s6, {FL:#x}\nbuffer_load_dword v199, v5, s[8:11], s6 offen sc1")
    k(f"""
    v_and_b32 v5, 63, v0
    v_lshlrev_b32 v5, 5, v5
    v_lshl_add_u32 v5, v1, 2, v5
    v_add_u32 v5, {ML}, v5
    v_lshlrev_b32 v6, 5, v2
    v_add_u32 v6, {ML}, v6
    s_lshl_b32 s6, s3, 10
    s_add_u32 s6, s6, {PL}
    v_add_u32 v7, s6, v4
    """)
    M=KF
    def max8(m,r): k(f"v_max3_f32 v{m}, v{r}, v{r+1}, v{r+2}\nv_max3_f32 v{m}, v{m}, v{r+3}, v{r+4}\nv_max3_f32 v{m}, v{m}, v{r+5}, v{r+6}\nv_max_f32 v{m}, v{m}, v{r+7}")
    for qb in range(4): max8(M+qb,SA+8*qb)
    def treduce(op,addr_off):
        k(f"s_nop 1\nv_permlane32_swap_b32 v{M}, v{M+2}\nv_permlane32_swap_b32 v{M+1}, v{M+3}\ns_nop 1\n{op} v{M}, v{M}, v{M+2}\n{op} v{M+1}, v{M+1}, v{M+3}")
        k(f"s_nop 1\nv_permlane16_swap_b32 v{M}, v{M+1}\ns_nop 1\n{op} v{M}, v{M}, v{M+1}\nds_write_b32 v5, v{M} offset:{addr_off}")
    treduce("v_max_f32",0)
    k("s_waitcnt lgkmcnt(0)\ns_barrier")
    G=KF+8
    for qb in range(4):
        for q in range(2): k(f"ds_read_b128 {vr(G+8*qb+4*q,4)}, v6 offset:{qb*512+16*q}")
    for qb in range(4):
        k(f"s_waitcnt lgkmcnt({6-2*qb})"); max8(T+qb,G+8*qb)
    k("s_mov_b32 s40, 0x3f803f80")
    for qb in range(4):
        r=SA+8*qb
        for j in (0,2,4,6): k(pk('add',r+j,r+j,('nb',T+qb)))
        for j in range(8): k(f"v_exp_f32 v{r+j}, v{r+j}")
        k("s_nop 0")
        for j in range(4): k(f"v_cvt_pk_bf16_f32 v{B2+4*qb+j}, v{r+2*j}, v{r+2*j+1}")
        k(f"ds_write_b128 v7, {vr(B2+4*qb,4)} offset:{qb*8192}")
        k(pk('add',r,r,r+2)); k(pk('add',r+4,r+4,r+6)); k(pk('add',r,r,r+4)); k(f"v_add_f32 v{M+qb}, v{r}, v{r+1}")
    k("s_nop 1")
    treduce("v_add_f32",SL-ML)
    k(f"s_waitcnt vmcnt(0) lgkmcnt(0)\nv_cmp_eq_u32 vcc, 0, v199\nv_mov_b32 v198, v6\ns_nop 3\ns_cbranch_vccz {k.lab('pds')}")
    poll(k,'s',"v_lshrrev_b32 v5, 4, v4\nv_min_u32 v5, 59, v5\nv_lshlrev_b32 v5, 2, v5\nv_add_u32 v5, 1024, v5",bar=False)
    k("v_mov_b32 v6, v198")
    k(f"""
    s_and_b32 s30, s3, 3
    s_lshr_b32 s31, s3, 2
    s_mul_i32 s6, s30, 24576
    s_add_u32 s6, s6, {VL}
    v_add_u32 v5, s6, v4
    s_lshl_b32 s6, s31, 14
    s_add_u32 s6, s6, {PL}
    v_add_u32 v7, s6, v4
    s_lshl_b32 s6, s31, 10
    v_add_u32 v6, s6, v6
    s_cmp_eq_u32 s31, 0
    s_cselect_b64 vcc, -1, 0
    v_cndmask_b32 v{T}, v{T+2}, v{T}, vcc
    v_cndmask_b32 v{T+1}, v{T+3}, v{T+1}, vcc
    """)
    k.st(); k("s_waitcnt vmcnt(0) lgkmcnt(0)\ns_barrier"); k.st()
    for qq in range(2):
        for q in range(2): k(f"ds_read_b128 {vr(G+8*qq+4*q,4)}, v6 offset:{SL-ML+qq*512+16*q}")
    OA=SA; PR=128
    k(f"""
    s_lshl_b32 s6, s31, 1
    s_add_u32 s24, s24, s6
    s_mul_i32 s32, s24, 12288
    s_mul_i32 s6, s22, {ACT:#x}
    s_add_u32 s32, s32, s6
    s_add_u32 s32, s32, {O_P:#x}
    s_mul_i32 s33, s21, 12
    s_mul_i32 s6, s30, 3
    s_add_u32 s33, s33, s6
    s_lshl_b32 s33, s33, 9
    s_add_u32 s32, s32, s33
    v_and_b32 v197, 1, v3
    v_mul_u32_u24 v197, 12288, v197
    v_lshrrev_b32 v6, 1, v3
    v_lshl_add_u32 v197, v6, 8, v197
    v_lshl_add_u32 v197, v2, 4, v197
    """)
    seq=[]
    for ks in range(8): seq+=[('p',0,ks),('p',1,ks),('v',0,ks)]
    seq+=[('v',j,ks) for j in (1,2) for ks in range(8)]
    nv=[0]; reg={}
    def rd(i):
        t,x,ks=seq[i]
        if t=='p': r=PR+32*x+4*ks; a_=7
        else: r=B2+4*(nv[0]%8); nv[0]+=1; a_=5
        reg[i]=r; k(f"ds_read_b128 {vr(r,4)}, v{a_} offset:{x*8192+ks*1024}")
    def oepi(j):
        for qq in range(2):
            r=OA+8*j+4*qq
            for t in range(4): k(f"v_mul_f32 v{r+t}, v{r+t}, v{G+8*qq+1}")
        swap_pack(k,OA+8*j,OA+8*j+4,40+4*j); st4(k,40+4*j,197,32,j*512)
    issued=0
    def fill(i):
        nonlocal issued
        while issued<len(seq) and issued<i+9 and sum(1 for q in range(i,issued+1) if seq[q][0]=='v')<=7:
            rd(issued); issued+=1
    fill(0)
    for i,(t,x,ks) in enumerate(seq):
        if t=='v':
            k(f"s_waitcnt lgkmcnt({issued-i-1})")
            for qq in range(2): mf(k,OA+8*x+4*qq,reg[i],PR+32*qq+4*ks,ks==0)
            if x==0 and ks==1:
                for qq in range(2):
                    r=G+8*qq
                    k(f"v_add_f32 v{r}, v{r}, v{r+1}")
                    for j in range(2,8): k(f"v_add_f32 v{r}, v{r}, v{r+j}")
                    k(f"v_rcp_f32 v{r+1}, v{r}\nv_log_f32 v{r+2}, v{r}")
            if x and ks==3: oepi(x-1)
        fill(i+1)
    k.st()
    k("s_nop 7"); oepi(2)
    k(f"""
    s_lshl_b32 s35, s20, 4
    s_add_u32 s35, s35, s23
    s_lshl_b32 s35, s35, 6
    s_lshl_b32 s6, s21, 4
    s_add_u32 s35, s35, s6
    s_lshl_b32 s6, s22, 2
    s_add_u32 s35, s35, s6
    s_add_u32 s35, s35, 2048
    s_cmp_lg_u32 s30, 0
    s_cbranch_scc1 {k.lab('p2e')}
    v_add_f32 v{T}, v{T}, v{G+2}
    v_add_f32 v{T+1}, v{T+1}, v{G+10}
    v_cmp_eq_u32 vcc, 0, v3
    s_lshl_b32 s6, s22, 1
    s_add_u32 s6, s6, s21
    v_cndmask_b32 v{T}, v{T+1}, v{T}, vcc
    s_lshl_b32 s6, s6, 13
    s_lshl_b32 s7, s24, 6
    s_add_u32 s6, s6, s7
    s_add_u32 s6, s6, {LSE:#x}
    v_lshrrev_b32 v5, 2, v4
    s_mov_b32 exec_hi, 0
    buffer_store_dword v{T}, v5, s[8:11], s6 offen sc1
    s_mov_b64 exec, -1
    {k.lab('p2e')}:
    """)
    signal(k,'2',35); k.st()
    if LOC>1:
        for j in range(3): ld(k,64,4,197,32,j*512,sc=SC)

FC1L=24576
def p4setup(k):
    k(f"""
    {MAP4}
    s_lshl_b32 s53, s51, 3
    s_add_u32 s53, s53, s3
    s_lshr_b32 s25, s51, 3
    s_and_b32 s27, s3, 1
    s_mul_i32 s27, s27, 20480
    s_lshl_b32 s6, s3, 13
    s_add_u32 s6, s6, 40960
    s_cmp_lt_u32 s3, 4
    s_cselect_b32 s27, s6, s27
    s_mul_i32 s28, s52, 73728
    s_add_u32 s28, s28, s27
    s_mul_i32 s29, s25, 0x120000
    s_add_u32 s28, s28, s29
    s_add_u32 s28, s28, {FC1_P:#x}
    s_add_u32 s27, s27, {FC1L}
    """)
    k(f"s_lshr_b32 s6, s48, 5\ns_mul_i32 s31, s6, 9216\ns_lshl_b32 s6, s50, 6\ns_add_u32 s31, s31, s6\ns_add_u32 s31, s31, {768*4}\nv_lshlrev_b32 v7, 4, v3")
    ld(k,XG+4,4,7,31,sc=SC)
    k(f"s_cmp_ge_u32 s3, 4\ns_cbranch_scc1 {k.lab('p4z')}"); f1loop(k,2,'p4l'); k(f"{k.lab('p4z')}:")
def f1loop(k,n,nm):
    k(f"s_mov_b32 s39, {n}\n{k.lab(nm)}:\ns_mov_b32 m0, s27\ns_add_u32 s27, s27, 4096")
    for i in range(4): dma(k,28,i*1024,SC)
    k(f"s_add_u32 s28, s28, 4096\ns_sub_u32 s39, s39, 1\ns_cmp_lg_u32 s39, 0\ns_cbranch_scc1 {k.lab(nm)}")

def p3(k):
    OP=8; LS=56; t=ACC
    k(f"""
    s_lshl_b32 s22, s48, 1
    s_lshr_b32 s6, s3, 2
    s_add_u32 s23, s22, s6
    s_and_b32 s24, s3, 3
    s_mul_i32 s25, s23, 12288
    s_mul_i32 s6, s24, 3072
    s_add_u32 s25, s25, s6
    s_add_u32 s25, s25, {O_P:#x}
    s_lshr_b32 s6, s24, 1
    s_lshl_b32 s26, s6, 13
    s_lshl_b32 s6, s23, 6
    s_add_u32 s26, s26, s6
    s_add_u32 s26, s26, {LSE:#x}
    """)
    poll(k,'3',"s_lshr_b32 s6, s48, 1\ns_lshl_b32 s6, s6, 6\ns_add_u32 s6, s6, 2048\nv_and_b32 v5, 7, v0\nv_lshlrev_b32 v5, 2, v5\nv_add_u32 v5, s6, v5")
    k.st(); k("v_lshlrev_b32 v5, 2, v2")
    for sp in range(4):
        ld(k,LS+sp,1,5,26,sc=SC)
        if sp<3: k("s_add_u32 s26, s26, 16384")
    for i in range(3):
        for sp in range(4):
            k(f"s_add_u32 s6, s25, {sp*ACT:#x}"); ld(k,OP+16*i+4*sp,4,4,6,i*1024,sc=SC)
    k(f"s_waitcnt vmcnt(12)\nv_max3_f32 v{t}, v{LS}, v{LS+1}, v{LS+2}\nv_max_f32 v{t}, v{t}, v{LS+3}")
    for sp in range(4): k(f"v_sub_f32 v{LS+sp}, v{LS+sp}, v{t}")
    for sp in range(4): k(f"v_exp_f32 v{LS+sp}, v{LS+sp}")
    k(f"s_nop 0\nv_add_f32 v{t}, v{LS}, v{LS+1}\nv_add_f32 v{t}, v{t}, v{LS+2}\nv_add_f32 v{t}, v{t}, v{LS+3}\nv_rcp_f32 v{t}, v{t}\ns_mul_i32 s6, s3, 3072")
    for sp in range(4): k(f"v_mul_f32 v{LS+sp}, v{LS+sp}, v{t}")
    k("v_add_u32 v5, s6, v4")
    for i in range(3):
        for sp in range(4):
            k(f"s_waitcnt vmcnt({11-4*i-sp})")
            for j in range(4):
                r=OP+16*i+4*sp+j
                u=60+2*j
                k(f"v_lshlrev_b32 v{u}, 16, v{r}\nv_and_b32 v{u+1}, 0xffff0000, v{r}")
            for j in range(4):
                u=60+2*j
                k(pk('fma',t+2*j,u,('b',LS+sp),t+2*j) if sp else pk('mul',t+2*j,u,('b',LS+sp)))
        for j in range(4): k(f"v_cvt_pk_bf16_f32 v{OP+16*i+j}, v{t+2*j}, v{t+2*j+1}")
        k(f"ds_write_b128 v5, {vr(OP+16*i,4)} offset:{i*1024}")
    k(f"""
    s_lshr_b32 s35, s48, 2
    s_lshl_b32 s35, s35, 6
    s_and_b32 s6, s48, 3
    s_lshl_b32 s6, s6, 4
    s_add_u32 s35, s35, s6
    s_lshl_b32 s6, s49, 2
    s_add_u32 s35, s35, s6
    s_add_u32 s35, s35, 4096
    s_waitcnt lgkmcnt(0)
    s_barrier
    """)
    k.st(); k(f"s_cmp_ge_u32 s3, 6\ns_cbranch_scc1 {k.lab('p3d')}")
    items=[(4,(rb*12+s)*1024) for s in range(12) for rb in range(2)]
    gemm_loop(k,items,OP,12,lambda i,b: mf(k,ACC+4*(i%2),WB+4*(i//2),b,i<2))
    k(f"""
    s_mul_i32 s32, s22, 12288
    s_lshl_b32 s6, s50, 9
    s_add_u32 s32, s32, s6
    s_add_u32 s32, s32, {X1_P:#x}
    v_and_b32 v5, 1, v3
    v_mul_u32_u24 v5, 12288, v5
    v_lshrrev_b32 v6, 1, v3
    v_lshl_add_u32 v5, v6, 8, v5
    v_lshl_add_u32 v5, v2, 4, v5
    """)
    for rb in range(2):
        for j in range(2):
            x=XG+2*rb+j; a=ACC+4*rb+2*j
            k(f"v_lshlrev_b32 v8, 16, v{x}\nv_and_b32 v9, 0xffff0000, v{x}\nv_fma_f32 v{a}, v{a}, v{XG+4+2*j}, v8\nv_fma_f32 v{a+1}, v{a+1}, v{XG+4+2*j+1}, v9")
    swap_pack(k,ACC,ACC+4,12); st4(k,12,5,32)
    k(f"s_waitcnt vmcnt(0)\ns_branch {k.lab('p3e')}\n{k.lab('p3d')}:")
    f1loop(k,5,'p3l')
    k(f"{k.lab('p3e')}:")
    signal(k,'3',35,63); k.st()

def f2addr(q):
    if q<20: return 98304+q*3072
    if q<28: return (q-20)*3072
    return FC1L+(q-28)*3072
RL=FC1L+60*1024
def f2dma(k,q0,q1):
    for q in range(q0,q1,8):
        hi=min(q+8,q1)
        if hi-q<8: k(f"s_cmp_ge_u32 s3, {hi-q}\ns_cbranch_scc1 {k.lab('f2_%d'%q)}")
        k(f"s_add_u32 s6, s57, {(q//2)*1024}\ns_add_u32 s7, s38, {f2addr(q)}")
        for i in range(3): k(f"s_mov_b32 m0, s7\ns_add_u32 s7, s7, 1024\nbuffer_load_dwordx4 v{U+i}, s[8:11], s6 offen sc1 lds")
        if hi-q<8: k(f"{k.lab('f2_%d'%q)}:")
def p5setup(k):
    k(f"""
    s_lshl_b32 s54, s4, 2
    s_and_b32 s6, s5, 3
    s_add_u32 s54, s54, s6
    s_lshr_b32 s55, s5, 2
    s_lshl_b32 s56, s54, 2
    s_and_b32 s6, s3, 3
    s_add_u32 s56, s56, s6
    s_mul_i32 s57, s55, 147456
    s_and_b32 s6, s3, 1
    s_mul_i32 s6, s6, 24576
    s_add_u32 s57, s57, s6
    s_lshr_b32 s6, s3, 1
    s_lshl_b32 s6, s6, 10
    s_add_u32 s57, s57, s6
    s_add_u32 s57, s57, {FC2_P:#x}
    s_mul_i32 s38, s3, 3072
    s_lshr_b32 s25, s51, 3
    s_mul_i32 s30, s25, 12288
    s_mul_i32 s31, s52, 384
    s_add_u32 s30, s30, s31
    s_add_u32 s30, s30, {UV:#x}
    v_cmp_le_u32 vcc, 384, v4
    v_add_u32 v6, {6144-384}, v4
    s_mov_b32 m0, 159744
    v_cndmask_b32 v6, v4, v6, vcc
    s_cmp_lg_u32 s3, 0
    s_cbranch_scc1 {k.lab('uv')}
    buffer_load_dwordx4 v6, s[8:11], s30 offen sc1 lds
    {k.lab('uv')}:
    """)
    for i in range(3): k(f"v_add_u32 v{U+i}, {i*49152}, v4")

def p4(k):
    UU=WB
    k(f"s_mul_i32 s23, s53, 12288\ns_add_u32 s23, s23, {X1_P:#x}")
    poll(k,'4',"s_lshl_b32 s6, s51, 6\ns_add_u32 s6, s6, 4096\nv_lshlrev_b32 v5, 2, v2\nv_add_u32 v5, s6, v5",pw=1,drain=True)
    k.st()
    for s in range(12):
        if s and s%4==0: k("s_add_u32 s23, s23, 4096")
        ld(k,A+4*s,4,4,23,(s%4)*1024,sc=SC)
    k(f"""
    v_add_u32 v6, {FC1L}, v4
    v_add_u32 v7, {FC1L+36864}, v4
    s_mul_i32 s32, s53, 48
    s_mul_i32 s33, s52, 3
    s_add_u32 s32, s32, s33
    s_lshl_b32 s32, s32, 10
    s_add_u32 s32, s32, {G_P:#x}
    v_mov_b32 v86, 1.0
    v_mov_b32 v84, {f2u(-2*math.sqrt(2/math.pi)*math.log2(math.e)*0.044715):#x}
    v_mov_b32 v85, {f2u(-2*math.sqrt(2/math.pi)*math.log2(math.e)):#x}
    s_lshl_b32 s35, s51, 6
    s_lshl_b32 s6, s52, 2
    s_add_u32 s35, s35, s6
    s_add_u32 s35, s35, 5120
    """)
    k("v_lshlrev_b32 v1, 4, v3\nv_add_u32 v1, 159744, v1"); ones(k)
    for cb in range(6): k(f"ds_read_b128 {vr(WB+4*cb,4)}, v1 offset:{cb*64}\nds_read_b128 {vr(WB+24+4*cb,4)}, v1 offset:{384+cb*64}")
    k("s_waitcnt lgkmcnt(0)")
    order=[(s,cb) for s in range(12) for cb in range(4)]+[(s,cb) for s in range(12) for cb in (4,5)]
    items=[((6 if cb<3 else 7),((cb%3)*12+s)*1024) for s,cb in order]
    T=[64+j for j in range(8)]
    def gl(i,P=True):
        R=[ACC+8*i+j for j in range(8)]; L=[]
        E=(0,2,4,6)
        pk=globals()['pk']
        if not P:
            def pk(op,d,*src):
                f=lambda x,h: (f"v{x+h}" if isinstance(x,int) else ("-" if x[0]=='nb' else "")+f"v{x[1]}")
                return "\n".join(f"v_{op}_f32 v{d+h}, "+", ".join(f(x,h) for x in src) for h in (0,1))
        for j in E: L.append(pk('fma',R[j],('nb',S),UU+8*i+j,R[j]))
        for j in E: L.append(pk('fma',R[j],R[j],('b',S+1),UU+24+8*i+j))
        for j in E: L.append(pk('mul',T[j],R[j],R[j]))
        for j in E: L.append(pk('fma',T[j],T[j],('b',84),('b',85)))
        for j in E: L.append(pk('mul',T[j],T[j],R[j]))
        for j in range(8): L.append(f"v_exp_f32 v{T[j]}, v{T[j]}")
        for j in E: L.append(pk('add',T[j],T[j],('b',86)))
        for j in range(8): L.append(f"v_rcp_f32 v{T[j]}, v{T[j]}")
        for j in E: L.append(pk('mul',R[j],R[j],T[j]))
        for j in range(4): L.append(f"v_cvt_pk_bf16_f32 v{72+4*i+j}, v{R[2*j]}, v{R[2*j+1]}")
        L.append(f"buffer_store_dwordx4 {vr(72+4*i,4)}, v4, s[8:11], s32 offen offset:{i*1024} sc1")
        return L
    Q=[l for x in gl(0,False) for l in x.split('\n')]
    def m(i,b):
        s,cb=order[i]
        if cb==0: k(f"s_waitcnt vmcnt({11-s+(3 if s==11 else 0)})")
        mf(k,ACC+4*cb,b,A+4*s,s==0)
        if cb==0: mstat(k,A+4*s,s==0)
        if i==48: mstat_fin(k,S)
        if i in (40,46,54,62): f2dma(k,*{40:(0,8),46:(8,16),54:(16,20),62:(20,28)}[i])
        if i>48:
            for _ in range(4):
                if Q: k(Q.pop(0))
    gemm_loop(k,items,BB,8,m); k.st()
    for l in Q+gl(1)+gl(2): k(l)
    k.st()
    signal(k,'4',35); k.st()
    if LOC>1:
        for j in range(3): ld(k,104,4,4,32,j*1024,sc=SC)
    f2dma(k,28,48)

def p5(k):
    X5=WB
    k(f"""
    s_lshr_b32 s23, s3, 2
    s_mul_i32 s25, s56, 49152
    s_mul_i32 s6, s23, 24576
    s_add_u32 s25, s25, s6
    s_add_u32 s25, s25, {G_P:#x}
    s_mul_i32 s29, s56, 12288
    s_mul_i32 s6, s55, 1536
    s_add_u32 s29, s29, s6
    s_add_u32 s29, s29, {X1_P:#x}
    s_lshr_b32 s6, s54, 4
    s_mul_i32 s30, s6, 9216
    s_mul_i32 s6, s55, 192
    s_add_u32 s30, s30, s6
    s_add_u32 s30, s30, {1920*4}
    """)
    poll(k,'5',"s_lshr_b32 s6, s54, 1\ns_lshl_b32 s6, s6, 6\ns_add_u32 s6, s6, 5120\nv_lshlrev_b32 v5, 2, v2\nv_add_u32 v5, s6, v5")
    k.st()
    def lda(s):
        if s and s%4==0: k("s_add_u32 s25, s25, 4096")
        ld(k,A+4*s,4,4,25,(s%4)*1024,sc=SC)
    for s in range(12): lda(s)
    k(f"""
    s_mul_i32 s6, s23, 3072
    v_add_u32 v5, s6, v4
    v_add_u32 v6, 61440, v5
    v_add_u32 v7, 61440, v6
    v_lshlrev_b32 v1, 4, v3
    v_lshrrev_b32 v{S}, 1, v3
    v_lshlrev_b32 v{S}, 8, v{S}
    v_lshl_add_u32 v{S}, v2, 4, v{S}
    v_and_b32 v{S+1}, 1, v3
    v_lshl_add_u32 v{S}, v{S+1}, 3, v{S}
    """)
    items=[(5+f2addr(2*(n//3))//61440,f2addr(2*(n//3))%61440+(n%3)*1024) for n in range(72)]
    def m(i,b):
        s,cb=divmod(i,3)
        if cb==0:
            k(f"s_waitcnt vmcnt({11 if s<12 else 23-s+6})")
            if s<12: lda(12+s)
            if s==8: k('s_barrier')
            if s==11:
                for c in range(3):
                    ld(k,X5+2*c,2,S,29,c*512,sc=SC); ld(k,X5+8+4*c,4,1,30,c*64,sc=SC)
        mf(k,ACC+4*cb,b,A+4*s,s==0)
    gemm_loop(k,items,BB,8,m); k.st()
    k(f"""
    s_and_b32 s6, s3, 3
    s_mul_i32 s6, s6, 3072
    s_add_u32 s6, s6, {RL}
    v_add_u32 v5, s6, v4
    s_cmp_eq_u32 s23, 0
    s_cbranch_scc1 {k.lab('lo')}
    s_nop 4
    """)
    for cb in range(3): k(f"ds_write_b128 v5, {vr(ACC+4*cb,4)} offset:{cb*1024}")
    k(f"s_waitcnt lgkmcnt(0)\ns_barrier\ns_endpgm\n{k.lab('lo')}:")
    k(f"v_mul_u32_u24 v6, 768, v2\nv_lshl_add_u32 v6, v3, 3, v6\ns_mul_i32 s31, s56, {16*768}\ns_mul_i32 s6, s55, 96\ns_add_u32 s31, s31, s6\ns_barrier")
    for cb in range(3): k(f"ds_read_b128 {vr(BB+4*cb,4)}, v5 offset:{cb*1024}")
    k("s_waitcnt vmcnt(0) lgkmcnt(0)")
    for cb in range(3):
        for t in range(4): k(f"v_add_f32 v{ACC+4*cb+t}, v{ACC+4*cb+t}, v{BB+4*cb+t}")
        for j in range(2):
            x=X5+2*cb+j
            k(f"v_lshlrev_b32 v8, 16, v{x}\nv_and_b32 v9, 0xffff0000, v{x}")
            k(f"v_fma_f32 v8, v{ACC+4*cb+2*j}, v{X5+8+4*cb+2*j}, v8\nv_fma_f32 v9, v{ACC+4*cb+2*j+1}, v{X5+8+4*cb+2*j+1}, v9\nv_cvt_pk_bf16_f32 v{x}, v8, v9")
        k(f"buffer_store_dwordx2 {vr(X5+2*cb,2)}, v6, s[44:47], s31 offen offset:{cb*32} sc1")

def km():
    k=K(NAME,256,512,163840,256,sgpr=102)
    k(f"s_cmp_ge_u32 s2, 256\ns_cbranch_scc1 {k.lab('end')}")
    k.srds([('ws',8),('x',12),('fc1',16),('wo',20),('wqkv',24),('c',28),('wmod',32),('out',44),('dbg',96)])
    k("v_lshrrev_b32 v1, 6, v0\nv_and_b32 v2, 15, v0\nv_readfirstlane_b32 s3, v1\nv_bfe_u32 v3, v0, 4, 2\nv_and_b32 v4, 63, v0\nv_lshlrev_b32 v4, 4, v4\ns_and_b32 s4, s2, 7\ns_lshr_b32 s5, s2, 3")
    p1(k); p3setup(k); p2(k); p4setup(k); p5setup(k); p3(k); p4(k); p5(k)
    k(f"{k.lab('end')}:\ns_endpgm")
    return k
```
